```python
import torch

def _softmax(x, axis=-1):
    return torch.softmax(x, dim=axis)
def _gelu(x):
    return torch.nn.functional.gelu(x, approximate="tanh")
def _silu(x):
    return torch.nn.functional.silu(x)
def _sigmoid(x):
    return torch.sigmoid(x)
def _layernorm(x, axis=-1, eps=1e-5):
    m = x.mean(dim=axis, keepdim=True)
    v = x.var(dim=axis, keepdim=True, unbiased=False)
    return (x - m) / torch.sqrt(v + eps)
def _scatter_add(tgt, idx, src, axis=0):
    return tgt.clone().index_add_(axis, idx, src)
def _segment_sum(src, seg, n):
    out = torch.zeros((n,) + src.shape[1:], dtype=src.dtype)
    return out.index_add_(0, seg, src)
def _pad(x, pw):
    flat = tuple(v for pair in reversed(pw) for v in pair)
    return torch.nn.functional.pad(x, flat)

kernel_name = 'concat_heads__mha_block_cached__mha_block_cached__near_ridge'

def setup_inputs():

    _w = (lambda a: (lambda t: t.to(torch.bfloat16) if t.is_floating_point() else t)(torch.as_tensor(a)))
    def _A_setup():
        B, Sq, D = 16, 192, 576
        H, Sk, Dh = 32, 512, 128
        return {
            "x": _w((lambda *s: torch.randn(*s, dtype=torch.bfloat16) * 0.8)(B, Sq, D)),
            "k_cache": _w((lambda *s: torch.randn(*s, dtype=torch.bfloat16) * 0.8)(B, H, Sk, Dh)),
            "v_cache": _w((lambda *s: torch.randn(*s, dtype=torch.bfloat16) * 0.05)(B, H, Sk, Dh)),
            "wq": _w((lambda *s: torch.randn(*s, dtype=torch.bfloat16) * 0.8)(D, H * Dh) * (D ** -0.5)),
            "wo": _w((lambda *s: torch.randn(*s, dtype=torch.bfloat16) * 0.05)(H * Dh, D) * ((H * Dh) ** -0.5)),
        }
    _A_in = _A_setup()

    def _B_setup():
        B, Sq, D = 16, 192, 576
        H, Sk, Dh = 32, 512, 128
        return {
            "x": _w((lambda *s: torch.randn(*s, dtype=torch.bfloat16) * 0.8)(B, Sq, D)),
            "k_cache": _w((lambda *s: torch.randn(*s, dtype=torch.bfloat16) * 0.8)(B, H, Sk, Dh)),
            "v_cache": _w((lambda *s: torch.randn(*s, dtype=torch.bfloat16) * 0.05)(B, H, Sk, Dh)),
            "wq": _w((lambda *s: torch.randn(*s, dtype=torch.bfloat16) * 0.8)(D, H * Dh) * (D ** -0.5)),
            "wo": _w((lambda *s: torch.randn(*s, dtype=torch.bfloat16) * 0.05)(H * Dh, D) * ((H * Dh) ** -0.5)),
        }
    _B_in = _B_setup()

    return {
        "A_x": _A_in["x"],
        "A_k_cache": _A_in["k_cache"],
        "A_v_cache": _A_in["v_cache"],
        "A_wq": _A_in["wq"],
        "A_wo": _A_in["wo"],
        "B_x": _B_in["x"],
        "B_k_cache": _B_in["k_cache"],
        "B_v_cache": _B_in["v_cache"],
        "B_wq": _B_in["wq"],
        "B_wo": _B_in["wo"],
    }

def reference(A_x, A_k_cache, A_v_cache, A_wq, A_wo, B_x, B_k_cache, B_v_cache, B_wq, B_wo):
    def _A_ref(x, k_cache, v_cache, wq, wo):
        B, Sq, D = x.shape
        H, Dh = 32, 128
        q = (lambda x, *d: x.permute(*d))((x @ wq).reshape(B, Sq, H, Dh), 0, 2, 1, 3)
        scores = torch.einsum("bhqd,bhkd->bhqk", q, k_cache) * (Dh ** -0.5)
        p = _softmax(scores, axis=-1)
        o = torch.einsum("bhqk,bhkd->bhqd", p, v_cache)
        return (lambda x, *d: x.permute(*d))(o, 0, 2, 1, 3).reshape(B, Sq, H * Dh) @ wo

    def _B_ref(x, k_cache, v_cache, wq, wo):
        B, Sq, D = x.shape
        H, Dh = 32, 128
        q = (lambda x, *d: x.permute(*d))((x @ wq).reshape(B, Sq, H, Dh), 0, 2, 1, 3)
        scores = torch.einsum("bhqd,bhkd->bhqk", q, k_cache) * (Dh ** -0.5)
        p = _softmax(scores, axis=-1)
        o = torch.einsum("bhqk,bhkd->bhqd", p, v_cache)
        return (lambda x, *d: x.permute(*d))(o, 0, 2, 1, 3).reshape(B, Sq, H * Dh) @ wo

    a = _A_ref(A_x, A_k_cache, A_v_cache, A_wq, A_wo)
    b = _B_ref(B_x, B_k_cache, B_v_cache, B_wq, B_wo)
    return torch.concatenate([a, b], axis=-1)
```

```python
class V:
    __slots__ = ('n', 'c')

    def __init__(self, n, c=1):
        assert 0 <= n and n + c <= 256, (n, c)
        if c > 1:
            assert n % 2 == 0, ('unaligned tuple', n, c)
        self.n = n
        self.c = c

    def __str__(self):
        return f'v{self.n}' if self.c == 1 else f'v[{self.n}:{self.n + self.c - 1}]'

    def regs(self):
        return range(self.n, self.n + self.c)


class Neg:
    def __init__(self, v):
        self.v = v

    def __str__(self):
        return f'-{self.v}'

    def regs(self):
        return self.v.regs()


TRANS = ('v_exp_f32', 'v_rcp_f32', 'v_log_f32', 'v_rsq_f32', 'v_sqrt_f32')


class Ins:
    __slots__ = ('text', 'kind', 'rd', 'wr', 'srd', 'swr', 'tag', 'wvm', 'wlg', 'nvm', 'nlg', 'nop', 'c', 'cost',
                 'stdata', 'cmt')

    def __init__(self, text, kind, rd=(), wr=(), srd=(), swr=(), tag=None):
        self.text = text
        self.kind = kind
        self.rd = tuple(rd)
        self.wr = tuple(wr)
        self.srd = tuple(srd)
        self.swr = tuple(swr)
        self.tag = tag
        self.wvm = None
        self.wlg = None
        self.nvm = None
        self.nlg = None
        self.nop = 0
        self.c = None
        self.cost = 4
        self.stdata = ()
        self.cmt = None


def _vr(ops):
    r = []
    for o in ops:
        if isinstance(o, (V, Neg)):
            r.extend(o.regs())
    return r


def _sr(ops):
    r = []
    for o in ops:
        if isinstance(o, str):
            if o == 'vcc' or o == 'm0' or o == 'exec':
                r.append(o)
            elif o.startswith('s[') and o.endswith(']'):
                a, b = o[2:-1].split(':')
                r.extend(f's{i}' for i in range(int(a), int(b) + 1))
            elif o.startswith('s') and o[1:].isdigit():
                r.append(o)
    return r


def fmt(o):
    if isinstance(o, float):
        import struct
        inl = {0.5: '0.5', -0.5: '-0.5', 1.0: '1.0', -1.0: '-1.0', 2.0: '2.0', -2.0: '-2.0', 4.0: '4.0', -4.0: '-4.0', 0.0: '0'}
        if o in inl:
            return inl[o]
        return hex(struct.unpack('<I', struct.pack('<f', o))[0])
    if isinstance(o, int):
        return str(o) if -16 <= o <= 64 else hex(o & 0xffffffff)
    return str(o)


def mfma(d, a, b, c):
    D, A, B = V(d, 4), V(a, 4), V(b, 4)
    cs = '0' if c is None else str(V(c, 4))
    i = Ins(f'v_mfma_f32_16x16x32_bf16 {D}, {A}, {B}, {cs}', 'mfma', rd=list(A.regs()) + list(B.regs()), wr=D.regs())
    i.c = c
    i.cost = 8
    return i


def valu(op, dst, *src, mods=''):
    ops = [dst] + list(src)
    text = f'{op} ' + ', '.join(fmt(o) for o in ops) + (' ' + mods if mods else '')
    kind = 'trans' if op in TRANS else 'valu'
    rd = _vr(src)
    if op.startswith('v_fmac') or op.startswith('v_permlane'):
        rd = rd + _vr([dst])
    wr = _vr([dst])
    if op.startswith('v_permlane'):
        wr = wr + _vr(src)
        kind = 'perm'
    if op.startswith('v_readfirstlane') or op.startswith('v_readlane'):
        kind = 'rfl'
    i = Ins(text, kind, rd=rd, wr=wr, srd=_sr(src), swr=_sr([dst]))
    i.cost = 8 if kind == 'trans' else 4
    return i


def salu(op, *ops):
    text = f'{op} ' + ', '.join(fmt(o) for o in ops)
    if op.startswith('s_cmp') or op.startswith('s_setprio') or op.startswith('s_bitcmp'):
        return Ins(text, 'salu', srd=_sr(ops))
    return Ins(text, 'salu', srd=_sr(ops[1:]), swr=_sr(ops[:1]))


def raw(text, kind='salu'):
    return Ins(text, kind)


def label(name):
    return Ins(f'{name}:', 'label')


def nop(n):
    i = Ins(f's_nop {n - 1}', 'nop')
    i.c = n
    return i


def barrier():
    return Ins('s_barrier', 'barrier')


def ds_read(op, dst, addr, off=0, tag=None):
    assert 0 <= off < 65536, off
    return Ins(f'{op} {dst}, {addr}' + (f' offset:{off}' if off else ''), 'ds', rd=addr.regs(), wr=dst.regs(), tag=tag)


def ds_write(op, addr, data, off=0, tag=None):
    assert 0 <= off < 65536, off
    return Ins(f'{op} {addr}, {data}' + (f' offset:{off}' if off else ''), 'ds', rd=list(addr.regs()) + list(data.regs()), tag=tag)


def buf_load(dst, voff, srd, soff, off=0, tag=None, pol='', op=None):
    assert 0 <= off < 4096, off
    op = op or {1: 'buffer_load_dword', 2: 'buffer_load_dwordx2', 4: 'buffer_load_dwordx4'}[dst.c]
    t = f'{op} {dst}, {voff}, {srd}, {fmt(soff)} offen' + (f' offset:{off}' if off else '') + (f' {pol}' if pol else '')
    return Ins(t, 'vm', rd=voff.regs(), wr=dst.regs(), srd=_sr([srd, soff]), tag=tag)


def buf_store(data, voff, srd, soff, off=0, tag=None, pol=''):
    assert 0 <= off < 4096, off
    op = {1: 'buffer_store_dword', 2: 'buffer_store_dwordx2', 4: 'buffer_store_dwordx4'}[data.c]
    t = f'{op} {data}, {voff}, {srd}, {fmt(soff)} offen' + (f' offset:{off}' if off else '') + (f' {pol}' if pol else '')
    i = Ins(t, 'vm', rd=list(voff.regs()) + list(data.regs()), srd=_sr([srd, soff]), tag=tag)
    if data.c >= 3:
        i.stdata = tuple(data.regs())
    return i


def dma(voff, srd, soff, off=0, tag=None, pol=''):
    assert 0 <= off < 4096, off
    t = f'buffer_load_dwordx4 {voff}, {srd}, {fmt(soff)} offen' + (f' offset:{off}' if off else '') + (f' {pol}' if pol else '') + ' lds'
    return Ins(t, 'dma', rd=voff.regs(), srd=_sr([srd, soff]) + ['m0'], tag=tag)


def wait(vm=None, lg=None):
    i = Ins('s_waitcnt', 'wait')
    i.wvm = vm
    i.wlg = lg
    return i


def _aslist(x):
    if x is None:
        return []
    if isinstance(x, (list, set)):
        return list(x)
    return [x]


def resolve_waits(seq):
    vm_idx = {}
    lg_idx = {}
    nvm = nlg = 0
    vm_done = lg_done = 0
    for i in seq:
        if i.kind in ('vm', 'dma'):
            nvm += 1
            if i.tag is not None:
                vm_idx[i.tag] = nvm
        elif i.kind == 'ds':
            nlg += 1
            if i.tag is not None:
                lg_idx[i.tag] = nlg
        elif i.kind == 'wait':
            need = 0
            for t in _aslist(i.wvm):
                if t == 'all':
                    need = max(need, nvm)
                else:
                    assert t in vm_idx, ('vm tag never issued', t)
                    need = max(need, vm_idx[t])
            if need > vm_done:
                n = min(nvm - need, 63)
                i.nvm = n if i.nvm is None else min(i.nvm, n)
                vm_done = nvm - n
            need = 0
            for t in _aslist(i.wlg):
                if t == 'all':
                    need = max(need, nlg)
                else:
                    assert t in lg_idx, ('lg tag never issued', t)
                    need = max(need, lg_idx[t])
            if need > lg_done:
                n = min(nlg - need, 15)
                i.nlg = n if i.nlg is None else min(i.nlg, n)
                lg_done = nlg - n


def fold(instances):
    base = instances[0]
    for inst in instances[1:]:
        assert len(inst) <= len(base)
        for a, b in zip(base, inst):
            assert a.text == b.text and a.kind == b.kind, ('fold mismatch', a.text, b.text)
            if a.kind == 'wait':
                if b.nvm is not None:
                    a.nvm = b.nvm if a.nvm is None else min(a.nvm, b.nvm)
                if b.nlg is not None:
                    a.nlg = b.nlg if a.nlg is None else min(a.nlg, b.nlg)
    return base


def live(i):
    return not (i.kind == 'wait' and i.nvm is None and i.nlg is None)


def hazards(path):
    changed = False
    pos = 0
    vw = {}
    mw = {}
    cr = {}
    sd = {}
    sw = {}
    m0w = -100
    for i in path:
        if i.kind == 'label' or not live(i):
            continue
        need = 0

        def req(p, n):
            nonlocal need
            have = pos - p - 1
            if n - have > need:
                need = n - have
        k = i.kind
        if k == 'mfma':
            for r in i.rd:
                if r in vw:
                    req(vw[r][0], 2)
                if r in mw:
                    req(mw[r][0], 8)
            if i.c is not None:
                for r in range(i.c, i.c + 4):
                    if r in vw:
                        req(vw[r][0], 2)
                    if r in mw and mw[r][1] != i.c:
                        req(mw[r][0], 6)
            d0 = i.wr[0]
            if i.c != d0:
                for r in i.wr:
                    if r in mw:
                        req(mw[r][0], 6)
        elif k in ('valu', 'trans', 'perm', 'rfl'):
            for r in i.rd:
                if r in mw:
                    req(mw[r][0], 8)
                if r in vw:
                    if vw[r][1] == 'trans':
                        req(vw[r][0], 1)
                    if k == 'perm':
                        req(vw[r][0], 2)
                    if k == 'rfl':
                        req(vw[r][0], 1)
            for r in i.wr:
                if r in mw:
                    req(mw[r][0], 8)
                if r in cr:
                    req(cr[r], 3)
                if r in sd:
                    req(sd[r], 2)
            for s in i.srd:
                if s in sw:
                    req(sw[s], 2)
        elif k in ('ds', 'vm', 'dma'):
            for r in list(i.rd) + list(i.wr):
                if r in mw:
                    req(mw[r][0], 8)
            for r in i.rd:
                if r in vw and vw[r][1] == 'trans':
                    req(vw[r][0], 1)
            for r in i.wr:
                if r in sd:
                    req(sd[r], 2)
            for s in i.srd:
                if s in sw:
                    req(sw[s], 5)
            if k == 'dma':
                req(m0w, 1)
        elif k in ('salu', 'branch'):
            for s in i.srd:
                if s in sw:
                    req(sw[s], 1)
        if need > i.nop:
            i.nop = need
            changed = True
        pos += i.nop
        if k == 'mfma':
            for r in i.wr:
                mw[r] = (pos, i.wr[0])
                vw.pop(r, None)
            if i.c is not None:
                for r in range(i.c, i.c + 4):
                    cr[r] = pos
        elif k in ('valu', 'trans', 'perm', 'rfl'):
            for r in i.wr:
                vw[r] = (pos, k)
                mw.pop(r, None)
            for s in i.swr:
                sw[s] = pos
        elif k in ('ds', 'vm'):
            for r in i.wr:
                vw.pop(r, None)
                mw.pop(r, None)
            for r in i.stdata:
                sd[r] = pos
        elif k == 'salu':
            for s in i.swr:
                sw.pop(s, None)
                if s == 'm0':
                    m0w = pos
        pos += i.c if k == 'nop' else 1
    return changed


def render(seq):
    out = []
    for i in seq:
        if not live(i):
            continue
        n = i.nop
        while n > 0:
            k = min(n, 16)
            out.append(f's_nop {k - 1}')
            n -= k
        if i.kind == 'wait':
            t = 's_waitcnt'
            if i.nvm is not None:
                t += f' vmcnt({i.nvm})'
            if i.nlg is not None:
                t += f' lgkmcnt({i.nlg})'
            out.append(t)
        else:
            out.append(i.text)
    return out


def stats(seq, name=''):
    from collections import Counter
    c = Counter(i.kind for i in seq if live(i))
    nops = sum(i.nop for i in seq if live(i))
    return f'{name}: ' + ' '.join(f'{k}={v}' for k, v in sorted(c.items())) + f' padded_states={nops}'
```

```python
import sys, math
sys.path.insert(0, 'gen')
from asmlib import *

NAME = 'concat_heads__mha_block_cached__mha_block_cached__near_ridge'
CSCALE = math.log2(math.e) / math.sqrt(128.0)
THR = 1024.0

KV_BASE = 0
WQ_BASE = 65536
NWQ = 6
H_BASE = WQ_BASE + NWQ * 8192
LDS_BYTES = 163840

SRD_K, SRD_V, SRD_WQ, SRD_X, SRD_WS, SRD_WO = 's[8:11]', 's[12:15]', 's[16:19]', 's[20:23]', 's[24:27]', 's[28:31]'
S_W = 's50'
S_WAVE = 's39'
S_ID = 's51'

O_WS_OFF = 0
PART_WS_OFF = 50331648


def kslot(t): return (2 * t - 1) % 8
def vslot(t): return (2 * t + 2) % 8


def common_prologue(e, nwg=256):
    e(raw(f's_cmp_ge_u32 s2, {nwg}'))
    e(raw('s_cbranch_scc0 L_go'))
    e(raw('s_endpgm'))
    e(label('L_go'))
    e(raw('s_load_dwordx2 s[4:5], s[0:1], 80'))
    e(raw('s_load_dwordx2 s[6:7], s[0:1], 96'))
    e(salu('s_and_b32', 's32', 's2', 7))
    e(salu('s_lshr_b32', 's33', 's2', 3))
    e(salu('s_lshl_b32', 's34', 's32', 2))
    e(salu('s_lshr_b32', 's35', 's33', 3))
    e(salu('s_add_u32', 's34', 's34', 's35'))
    e(salu('s_and_b32', 's35', 's33', 7))
    e(salu('s_lshr_b32', 's36', 's34', 4))
    e(salu('s_and_b32', 's37', 's34', 15))
    e(salu('s_lshl_b32', S_ID, 's34', 3))
    e(salu('s_add_u32', S_ID, S_ID, 's35'))
    e(salu('s_mul_i32', 's38', 's36', 40))
    e(salu('s_add_u32', 's52', 's0', 's38'))
    e(salu('s_addc_u32', 's53', 's1', 0))
    e(raw('s_load_dwordx4 s[40:43], s[52:53], 0'))
    e(raw('s_load_dwordx4 s[44:47], s[52:53], 16'))
    e(raw('s_load_dwordx2 s[48:49], s[52:53], 32'))
    e(valu('v_lshrrev_b32', V(1), 6, V(0)))
    e(valu('v_readfirstlane_b32', S_WAVE, V(1)))
    e(valu('v_and_b32', V(0), 63, V(0)))
    e(salu('s_and_b32', S_W, S_WAVE, 3))
    e(raw('s_waitcnt lgkmcnt(0)'))
    e(salu('s_lshl_b32', 's54', 's37', 3))
    e(salu('s_add_u32', 's54', 's54', 's35'))
    e(salu('s_lshl_b32', 's54', 's54', 19))
    e(salu('s_add_u32', 's8', 's42', 's54')); e(salu('s_addc_u32', 's9', 's43', 0))
    e(salu('s_mov_b32', 's10', 524288)); e(salu('s_mov_b32', 's11', 0x20000))
    e(salu('s_add_u32', 's12', 's44', 's54')); e(salu('s_addc_u32', 's13', 's45', 0))
    e(salu('s_mov_b32', 's14', 524288)); e(salu('s_mov_b32', 's15', 0x20000))
    e(salu('s_lshl_b32', 's54', 's35', 10))
    e(salu('s_add_u32', 's16', 's46', 's54')); e(salu('s_addc_u32', 's17', 's47', 0))
    e(salu('s_sub_u32', 's18', 576 * 8192, 's54')); e(salu('s_mov_b32', 's19', 0x20000))
    e(salu('s_mul_i32', 's54', 's37', 221184))
    e(salu('s_add_u32', 's20', 's40', 's54')); e(salu('s_addc_u32', 's21', 's41', 0))
    e(salu('s_mov_b32', 's22', 221184)); e(salu('s_mov_b32', 's23', 0x20000))
    e(salu('s_mov_b32', 's24', 's6')); e(salu('s_mov_b32', 's25', 's7'))
    e(salu('s_mov_b32', 's26', PART_WS_OFF + 256 * 221184)); e(salu('s_mov_b32', 's27', 0x20000))
    e(salu('s_mul_i32', 's54', 's35', 589824))
    e(salu('s_add_u32', 's28', 's48', 's54')); e(salu('s_addc_u32', 's29', 's49', 0))
    e(salu('s_mov_b32', 's30', 589824)); e(salu('s_mov_b32', 's31', 0x20000))


def kv_dma_addrs(e, vK, vV, t0, t1):
    e(salu('s_and_b32', 's54', S_W, 1))
    e(salu('s_lshl_b32', 's55', 's54', 1))
    e(valu('v_and_b32', t0, 3, V(0)))
    e(valu('v_xor_b32', t0, 's55', t0))
    e(valu('v_lshrrev_b32', t1, 4, V(0)))
    e(valu('v_lshl_add_u32', t0, t1, 2, t0))
    e(valu('v_lshlrev_b32', t0, 4, t0))
    e(valu('v_bfe_u32', t1, V(0), 2, 2))
    e(valu('v_lshl_add_u32', t0, t1, 8, t0))
    e(salu('s_lshl_b32', 's56', S_W, 11))
    e(salu('s_lshr_b32', 's57', S_W, 1))
    e(salu('s_lshl_b32', 's57', 's57', 2))
    e(salu('s_add_u32', 's57', 's57', 's54'))
    e(salu('s_lshl_b32', 's57', 's57', 10))
    e(valu('v_add_u32', vK, 's56', t0))
    e(valu('v_add_u32', vV, 's57', t0))


def k_dma(vK, t):
    return [salu('s_add_u32', 'm0', 's56', KV_BASE + kslot(t) * 8192), salu('s_mov_b32', 's58', t * 8192),
            dma(vK, SRD_K, 's58', 0, tag=('K', t), pol='nt'), dma(vK, SRD_K, 's58', 1024, tag=('K', t), pol='nt')]


def v_dma(vV, t):
    return [salu('s_add_u32', 'm0', 's57', KV_BASE + vslot(t) * 8192), salu('s_mov_b32', 's59', t * 8192),
            dma(vV, SRD_V, 's59', 0, tag=('V', t), pol='nt'), dma(vV, SRD_V, 's59', 2048, tag=('V', t), pol='nt')]


class A:
    vK, vV0, vV1, vH, vO = V(2), V(3), V(4), V(5), V(6)
    T0, T1 = V(1), V(7)
    E = 8
    TA, TB = 16, 17
    TS = 18
    L = 21
    LI = 24
    MX = 27
    NM = 28
    F = 40
    S = (56, 68)
    P = (80, 92)
    Q = 104
    O = 152
    X = 248

    @staticmethod
    def q(qt, ks): return A.Q + (qt * 4 + ks) * 4
    @staticmethod
    def o(qt, dt): return A.O + (qt * 8 + dt) * 4
    @staticmethod
    def s(kt, qt): return A.S[kt] + qt * 4
    @staticmethod
    def p(par, qt): return A.P[par] + qt * 4
    @staticmethod
    def nm(qt): return A.NM + qt * 4


rare_variants = {}
rare_sites = []


def sm_groups(kt, par, site, variant, first, pending):
    g = []
    pend = list(pending)

    def E(q, i): return V(A.E + (q % 2) * 4 + i)
    def ex(q, i): return valu('v_exp_f32', E(q, i), V(A.s(kt, q) + i))
    def ad1(q): return valu('v_add_f32', V(A.TA), E(q, 0), E(q, 1))
    def cv1(q): return valu('v_cvt_pk_bf16_f32', V(A.p(par, q) + 2 * kt), E(q, 0), E(q, 1))
    def ad2(q): return valu('v_add_f32', V(A.TB), E(q, 2), E(q, 3))
    def cv2(q): return valu('v_cvt_pk_bf16_f32', V(A.p(par, q) + 2 * kt + 1), E(q, 2), E(q, 3))
    def ts(q): return valu('v_add_f32', V(A.TS + q), V(A.TA), V(A.TB))
    g.append([ex(0, 0)])
    g.append(pend[:2]); rest = pend[2:]
    g.append([ex(0, 1)])
    g.append([ex(0, 2)])
    g.append([ad1(0), cv1(0)])
    g.append([ex(0, 3)])
    g.append([ex(1, 0)])
    g.append([ad2(0), cv2(0)])
    g.append([ex(1, 1)])
    g.append(rest + [ts(0)])
    g.append([ex(1, 2)])
    g.append([ad1(1), cv1(1)])
    g.append([ex(1, 3)])
    g.append([ex(2, 0)])
    g.append([ad2(1), cv2(1)])
    g.append([ex(2, 1)])
    g.append([ts(1), ex(2, 2)])
    g.append([ad1(2), cv1(2)])
    g.append([ex(2, 3)])
    g.append([])
    g.append([ad2(2), cv2(2)])
    if variant is not None:
        g.append([ts(2), valu('v_max3_f32', V(A.MX), V(A.TS), V(A.TS + 1), V(A.TS + 2))])
        br = Ins(f's_cbranch_vccnz TR_{site}', 'branch', srd=['vcc'])
        g.append([valu('v_cmp_lt_f32', 'vcc', 's60', V(A.MX)), br, label(f'RET_{site}')])
        if variant not in rare_variants:
            rare_variants[variant] = f'RARE_{len(rare_variants)}'
        if (site, rare_variants[variant]) not in rare_sites:
            rare_sites.append((site, rare_variants[variant]))
    else:
        g.append([ts(2)])
        g.append([])
    if first:
        left = [valu('v_mov_b32', V(A.L + q), V(A.TS + q)) for q in range(3)]
    else:
        left = [valu('v_add_f32', V(A.L + q), V(A.L + q), V(A.TS + q)) for q in range(3)]
    g = [x for x in g]
    assert len(g) == 23
    return g, left


def xlane(op, r, tmp):
    return [valu('v_mov_b32', tmp, r), valu('v_permlane32_swap_b32', r, tmp), valu(op, r, r, tmp),
            valu('v_mov_b32', tmp, r), valu('v_permlane16_swap_b32', r, tmp), valu(op, r, r, tmp)]


def init_ops():
    ops = []
    for q in range(3):
        m = V(A.nm(q)); t = V(A.nm(q) + 1); s = A.s(0, q)
        ops.append(valu('v_max3_f32', m, V(s), V(s + 1), V(s + 2)))
        ops.append(valu('v_max_f32', m, m, V(s + 3)))
    xl = [xlane('v_max_f32', V(A.nm(q)), V(A.nm(q) + 1)) for q in range(3)]
    for k in range(6):
        for q in range(3):
            ops.append(xl[q][k])
    for q in range(3):
        ops.append(valu('v_ceil_f32', V(A.nm(q)), V(A.nm(q))))
    for q in range(3):
        ops.append(valu('v_sub_f32', V(A.nm(q)), 0, V(A.nm(q))))
    for q in range(3):
        s = A.s(0, q)
        for i in range(4):
            ops.append(valu('v_add_f32', V(s + i), V(A.nm(q)), V(s + i)))
    for q in range(3):
        for i in range(1, 4):
            ops.append(valu('v_mov_b32', V(A.nm(q) + i), V(A.nm(q))))
    return ops


def init_sb_ops():
    ops = []
    for q in range(3):
        s = A.s(1, q)
        for i in range(4):
            ops.append(valu('v_add_f32', V(s + i), V(A.nm(q)), V(s + i)))
    return ops


def linv_ops():
    ops = []
    for q in range(3):
        ops.append(valu('v_mov_b32', V(A.LI + q), V(A.L + q)))
    xl = [xlane('v_add_f32', V(A.LI + q), V(A.X + q)) for q in range(3)]
    for k in range(6):
        for q in range(3):
            ops.append(xl[q][k])
    for q in range(3):
        ops.append(valu('v_rcp_f32', V(A.LI + q), V(A.LI + q)))
    return ops


def epilogue_ops(sink):
    ops = []
    n = 0
    for i in range(4):
        for qt in range(3):
            buf = A.X + (n % 2) * 4
            n += 1
            for half in range(2):
                o = A.o(qt, 2 * i + half)
                for r in range(4):
                    ops.append(valu('v_mul_f32', V(o + r), V(A.LI + qt), V(o + r)))
                ops.append(valu('v_cvt_pk_bf16_f32', V(buf + 2 * half), V(o), V(o + 1)))
                ops.append(valu('v_cvt_pk_bf16_f32', V(buf + 2 * half + 1), V(o + 2), V(o + 3)))
            ops.extend(sink(qt, i, V(buf, 4)))
    return ops


def rare_code(variant, lab):
    kt, par, do_o, do_l, presc, adj = variant
    c = [label(lab), nop(16)]
    n = V(A.TA); f = V(A.TB); t = V(A.MX)
    for q in range(3):
        s = A.s(kt, q)
        c.append(valu('v_max3_f32', n, V(s), V(s + 1), V(s + 2)))
        c.append(valu('v_max_f32', n, n, V(s + 3)))
        c.extend(xlane('v_max_f32', n, t))
        c.append(valu('v_ceil_f32', n, n))
        c.append(valu('v_max_f32', n, 0, n))
        c.append(valu('v_sub_f32', f, 0, n))
        c.append(valu('v_exp_f32', f, f))
        for i in range(4):
            c.append(valu('v_sub_f32', V(s + i), V(s + i), n))
            if adj:
                so = A.s(1 - kt, q)
                c.append(valu('v_sub_f32', V(so + i), V(so + i), n))
            c.append(valu('v_sub_f32', V(A.nm(q) + i), V(A.nm(q) + i), n))
        if do_l:
            c.append(valu('v_mul_f32', V(A.L + q), f, V(A.L + q)))
        if do_o:
            for r in range(32):
                c.append(valu('v_mul_f32', V(A.o(q, 0) + r), f, V(A.o(q, 0) + r)))
        for (pp, off) in presc:
            r = V(A.p(pp, q) + off)
            lo, hi = V(A.E), V(A.E + 1)
            c.append(valu('v_lshlrev_b32', lo, 16, r))
            c.append(valu('v_and_b32', hi, 0xffff0000, r))
            c.append(valu('v_mul_f32', lo, f, lo))
            c.append(valu('v_mul_f32', hi, f, hi))
            c.append(valu('v_cvt_pk_bf16_f32', r, lo, hi))
        for i in range(4):
            c.append(valu('v_exp_f32', V(A.E + i), V(s + i)))
        c.append(valu('v_cvt_pk_bf16_f32', V(A.p(par, q) + 2 * kt), V(A.E), V(A.E + 1)))
        c.append(valu('v_cvt_pk_bf16_f32', V(A.p(par, q) + 2 * kt + 1), V(A.E + 2), V(A.E + 3)))
        c.append(valu('v_add_f32', V(A.E), V(A.E), V(A.E + 1)))
        c.append(valu('v_add_f32', V(A.E + 2), V(A.E + 2), V(A.E + 3)))
        c.append(valu('v_add_f32', V(A.TS + q), V(A.E), V(A.E + 2)))
    c.append(nop(4))
    c.append(raw('s_setpc_b64 s[62:63]', 'branch'))
    return c


class AGen:
    def __init__(self, osink):
        self.carry = []
        self.pendL = []
        self.osink = osink
        self.frags = []
        for t in range(-1, 64):
            if t + 1 <= 63:
                for kt in range(2):
                    for ks in range(4):
                        self.frags.append((t, 'K', kt, ks))
            if t >= 0:
                for dt in range(8):
                    self.frags.append((t, 'V', dt, 0))
        self.fidx = {f: n for n, f in enumerate(self.frags)}

    def read(self, n):
        if n >= len(self.frags):
            return []
        t, kind, a, b = self.frags[n]
        buf = A.F + (n % 4) * 4
        if kind == 'K':
            return [ds_read('ds_read_b128', V(buf, 4), A.vK, KV_BASE + kslot(t + 1) * 8192 + a * 4096 + b * 256, tag=('f', n))]
        va = A.vV0 if a % 2 == 0 else A.vV1
        off = KV_BASE + vslot(t) * 8192 + (a >> 1) * 256
        return [ds_read('ds_read_b64_tr_b16', V(buf, 2), va, off, tag=('f', n)),
                ds_read('ds_read_b64_tr_b16', V(buf + 2, 2), va, off + 4096, tag=('f', n))]

    def iteration(self, t):
        T = t + 1
        j = t % 16
        has_qk = T <= 63
        has_pv = t >= 0
        newhead = has_qk and T % 16 == 0
        def loc(u):
            return f'p{u + 1}' if u <= 0 else (f't{u}' if u >= 62 else f'{u % 16}')
        pos = [dict(pre=[], m=None, post=[]) for _ in range(48)]
        nfr = None
        for m in range(48):
            fr, qt = divmod(m, 3)
            if fr < 8:
                if not has_qk:
                    continue
                kt, ks = divmod(fr, 4)
                n = self.fidx[(t, 'K', kt, ks)]
                d = A.s(kt, qt)
                c = d if ks else (None if newhead else A.nm(qt))
                pos[m]['m'] = mfma(d, A.F + (n % 4) * 4, A.q(qt, ks), c)
            else:
                if not has_pv:
                    continue
                dt = fr - 8
                n = self.fidx[(t, 'V', dt, 0)]
                d = A.o(qt, dt)
                pos[m]['m'] = mfma(d, A.F + (n % 4) * 4, A.p(t % 2, qt), d if j else None)
            if qt == 0:
                pos[m]['pre'].append(wait(lg=('f', n)))
            if qt == 2:
                pos[m]['post'].extend(self.read(n + 4))
        for k, g in enumerate(self.carry):
            pos[k]['post'].extend(g)
        self.carry = []
        extra = [[] for _ in range(48)]

        def spread(ops, lo, hi):
            n = len(ops)
            for k, o in enumerate(ops):
                extra[lo + (k * (hi - lo + 1)) // n].append(o)
        par = T % 2
        if has_qk:
            if newhead:
                pre = list(self.pendL); self.pendL = []
                if has_pv:
                    pre += linv_ops()
                spread(pre + init_ops(), 12, 21)
                g0, left = sm_groups(0, par, None, None, True, [])
                lo = 22
                for k, g in enumerate(g0):
                    extra[lo + (k * (36 - lo + 1)) // 23].extend(g)
                spread(init_sb_ops(), 30, 36)
            else:
                presc = tuple((t % 2, k) for k in range(4))
                var = (0, par, True, True, presc, True)
                g0, left = sm_groups(0, par, f'X{loc(t)}', var, False, self.pendL)
                self.pendL = []
                for k, g in enumerate(g0):
                    pos[13 + k]['post'].extend(g)
            last_of_head = (T % 16 == 15)
            var = (1, par, not newhead, True, ((par, 0), (par, 1)), not last_of_head)
            g1, left1 = sm_groups(1, par, f'Y{loc(t + 1)}', var, False, left)
            for k in range(11):
                pos[37 + k]['post'].extend(g1[k])
            self.carry = g1[11:]
            self.pendL = left1
        else:
            pre = list(self.pendL); self.pendL = []
            spread(pre + linv_ops(), 12, 30)
        if j == 0 and t > 0:
            eo = epilogue_ops(self.osink(t // 16 - 1))
            half = len(eo) // 2
            spread(eo[:half], 1, 17)
            spread(eo[half:], 18, 34)
        if has_qk and T % 16 == 15 and T < 63:
            rq = []
            for ks in range(4):
                for qt in range(3):
                    rq.append(ds_read('ds_read_b128', V(A.q(qt, ks), 4), A.vH, (qt * 4 + ks) * 1024, tag=('q', T + 1)))
            spread(rq, 25, 40)
        out = []
        if newhead and t >= 0:
            out.append(wait(lg=('q', T)))
        for m in range(48):
            out.extend(pos[m]['pre'])
            if pos[m]['m'] is not None:
                out.append(pos[m]['m'])
            out.extend(pos[m]['post'])
            out.extend(extra[m])
        return out


def a_setup(e):
    t0, t1 = A.T0, A.T1
    e(valu('v_lshrrev_b32', t0, 4, V(0)))
    e(valu('v_bfe_u32', t1, V(0), 3, 1))
    e(valu('v_lshlrev_b32', t1, 1, t1))
    e(valu('v_xor_b32', t0, t0, t1))
    e(valu('v_and_b32', t1, 3, V(0)))
    e(valu('v_lshl_add_u32', t0, t1, 2, t0))
    e(valu('v_bfe_u32', t1, V(0), 2, 2))
    e(valu('v_lshl_add_u32', t0, t1, 6, t0))
    e(valu('v_lshlrev_b32', A.vK, 4, t0))
    e(valu('v_bfe_u32', t0, V(0), 1, 1))
    e(valu('v_bfe_u32', t1, V(0), 4, 1))
    e(valu('v_lshl_add_u32', t0, t1, 1, t0))
    e(valu('v_bfe_u32', t1, V(0), 2, 2))
    e(valu('v_lshl_add_u32', t0, t1, 2, t0))
    e(valu('v_lshrrev_b32', t1, 4, V(0)))
    e(valu('v_lshl_add_u32', t0, t1, 6, t0))
    e(valu('v_lshlrev_b32', t0, 4, t0))
    e(valu('v_and_b32', t1, 1, V(0)))
    e(valu('v_lshl_add_u32', A.vV0, t1, 3, t0))
    e(valu('v_xor_b32', A.vV1, 32, A.vV0))
    e(salu('s_mul_i32', 's54', S_W, 12288))
    e(salu('s_add_u32', 's54', 's54', H_BASE))
    e(valu('v_lshlrev_b32', t0, 4, V(0)))
    e(valu('v_add_u32', A.vH, 's54', t0))
    e(valu('v_mov_b32', A.vO, t0))
    e(salu('s_mov_b32', 's60', THR))


class P:
    vKd, vVd, vWd, vX, vW0, vW1, vH0, vH1 = V(2), V(3), V(4), V(5), V(6), V(7), V(8), V(9)
    T0, T1 = V(1), V(10)
    PK = 12
    F = 16
    NX = 4
    X = 32
    ACC = 80

    @staticmethod
    def acc(qt, i, t): return P.ACC + ((qt * 4 + i) * 2 + t) * 4
    @staticmethod
    def x(k, qt): return P.X + ((k % P.NX) * 3 + qt) * 4


def p_setup(e):
    t0, t1 = P.T0, P.T1
    kv_dma_addrs(e, P.vKd, P.vVd, t0, t1)
    e(salu('s_and_b32', 's54', S_W, 1))
    e(valu('v_and_b32', t0, 3, V(0)))
    e(valu('v_xor_b32', t0, 's54', t0))
    e(valu('v_lshrrev_b32', t1, 4, V(0)))
    e(valu('v_lshl_add_u32', t0, t1, 2, t0))
    e(valu('v_lshlrev_b32', t0, 4, t0))
    e(valu('v_bfe_u32', t1, V(0), 2, 2))
    e(valu('v_lshl_add_u32', t0, t1, 13, t0))
    e(salu('s_lshl_b32', 's54', S_W, 16))
    e(valu('v_add_u32', P.vWd, 's54', t0))
    e(salu('s_mul_i32', 's54', S_W, 48 * 1152))
    e(valu('v_and_b32', t0, 15, V(0)))
    e(valu('v_mul_u32_u24', t0, 1152, t0))
    e(valu('v_lshrrev_b32', t1, 4, V(0)))
    e(valu('v_lshl_add_u32', t0, t1, 4, t0))
    e(valu('v_add_u32', P.vX, 's54', t0))
    e(salu('s_mov_b32', 's64', 18432))
    e(salu('s_mov_b32', 's65', 36864))
    e(valu('v_and_b32', t0, 3, V(0)))
    e(valu('v_bfe_u32', t1, V(0), 4, 1))
    e(valu('v_xor_b32', t0, t0, t1))
    e(valu('v_bfe_u32', t1, V(0), 2, 2))
    e(valu('v_lshl_add_u32', t0, t1, 2, t0))
    e(valu('v_lshrrev_b32', t1, 4, V(0)))
    e(valu('v_lshl_add_u32', t0, t1, 7, t0))
    e(valu('v_lshlrev_b32', t0, 4, t0))
    e(valu('v_and_b32', t1, 1, V(0)))
    e(valu('v_lshl_add_u32', t0, t1, 3, t0))
    e(valu('v_add_u32', P.vW0, WQ_BASE, t0))
    e(valu('v_xor_b32', P.vW1, 8, P.vW0))
    e(salu('s_mul_i32', 's54', S_W, 12288))
    e(salu('s_add_u32', 's54', 's54', H_BASE))
    e(valu('v_lshlrev_b32', t0, 4, V(0)))
    e(valu('v_bfe_u32', t1, V(0), 4, 1))
    e(valu('v_lshl_add_u32', t0, t1, 3, t0))
    e(valu('v_add_u32', P.vH0, 's54', t0))
    e(valu('v_xor_b32', P.vH1, 8, P.vH0))
    e(salu('s_mov_b32', 's61', CSCALE))


def wq_dma(k):
    h, ks = divmod(k, 18)
    so = ks * 262144 + h * 256
    return [salu('s_add_u32', 'm0', 's56', WQ_BASE + (k % NWQ) * 8192), salu('s_mov_b32', 's66', so),
            salu('s_mov_b32', 's67', so + 32768 - 1024),
            dma(P.vWd, SRD_WQ, 's66', 0, tag=('W', k)), dma(P.vWd, SRD_WQ, 's67', 1024, tag=('W', k))]


def x_load(k):
    ks = k % 18
    return [buf_load(V(P.x(k, qt), 4), P.vX, SRD_X, (0, 's64', 's65')[qt], ks * 64, tag=('X', k)) for qt in range(3)]


def q_handoff_tile(qt, i, t, n):
    a = P.acc(qt, i, t)
    pk = P.PK + (n % 2) * 2
    ops = [valu('v_mul_f32', V(a + r), 's61', V(a + r)) for r in range(4)]
    ops.append(valu('v_cvt_pk_bf16_f32', V(pk), V(a), V(a + 1)))
    ops.append(valu('v_cvt_pk_bf16_f32', V(pk + 1), V(a + 2), V(a + 3)))
    ops.append(ds_write('ds_write_b64', P.vH0 if t == 0 else P.vH1, V(pk, 2), (qt * 4 + i) * 1024, tag='hw'))
    return ops


class PGen:
    def __init__(self):
        self.fn = 0
        self.wq_issued = 0
        self.x_issued = 0
        self.consumed = 0

    def wread(self, k, f, n):
        i, t = f >> 1, f & 1
        buf = P.F + (n % 4) * 4
        va = P.vW0 if t == 0 else P.vW1
        off = (k % NWQ) * 8192 + i * 256
        return [ds_read('ds_read_b64_tr_b16', V(buf, 2), va, off, tag=('pf', n)),
                ds_read('ds_read_b64_tr_b16', V(buf + 2, 2), va, off + 1024, tag=('pf', n))]

    def interval(self, ks_list, kv, handoff, next_ks, need_kv, maxw=3):
        out = []
        side = []
        for x in kv:
            side.append(x)
        nw = 0
        while self.wq_issued < 72 and self.wq_issued - NWQ < self.consumed and nw < maxw:
            side.append(wq_dma(self.wq_issued)); self.wq_issued += 1; nw += 1
        fr = [(k, f) for k in ks_list for f in range(8)]
        n0 = self.fn
        for a in range(min(3, len(fr))):
            out.extend(self.wread(fr[a][0], fr[a][1], n0 + a))
        if side:
            out.extend(side.pop(0))
        for a, (k, f) in enumerate(fr):
            n = n0 + a
            i, t = f >> 1, f & 1
            if a + 3 < len(fr):
                out.extend(self.wread(fr[a + 3][0], fr[a + 3][1], n + 3))
            w = wait(lg=('pf', n), vm=('X', k) if f == 0 else None)
            out.append(w)
            for qt in range(3):
                d = P.acc(qt, i, t)
                out.append(mfma(d, P.F + (n % 4) * 4, P.x(k, qt), d if k % 18 else None))
            if f == 7:
                while self.x_issued < 72 and self.x_issued - P.NX <= k:
                    out.extend(x_load(self.x_issued)); self.x_issued += 1
            elif side and f % 2 == 1:
                out.extend(side.pop(0))
        self.fn += len(fr)
        for s in side:
            out.extend(s)
        if handoff:
            n = 0
            for i in range(4):
                for t in range(2):
                    for qt in range(3):
                        out.extend(q_handoff_tile(qt, i, t, n)); n += 1
        self.consumed += len(ks_list)
        out.append(wait(vm=[('W', k) for k in next_ks] + list(need_kv), lg='all' if handoff else None))
        return out


def build_k1():
    head = []
    e = head.append
    common_prologue(e)
    e(salu('s_cmp_ge_u32', S_WAVE, 4))
    e(raw('s_cbranch_scc0 L_A', 'branch'))
    e(raw('s_branch L_P', 'branch'))

    NPRO = 9
    names = [('PRO', k) for k in range(NPRO)] + [('HND', 0)] + [('IT', t) for t in range(-1, 64)]
    cons = {n: [] for n in names}
    hand = set()
    for k in range(NPRO):
        cons[('PRO', k)] = [2 * k, 2 * k + 1]
    hand.add(('HND', 0))
    for h in range(3):
        lo = -1 if h == 0 else 16 * h - 2
        its = list(range(lo, 16 * h + 13))
        dbl = {-1, 0, 4, 8} if h == 0 else {16 * h - 1, 16 * h, 16 * h + 6}
        k = 18 * (h + 1)
        for t in its:
            c = 2 if t in dbl else 1
            cons[('IT', t)] = list(range(k, k + c)); k += c
        assert k == 18 * (h + 2), k
        hand.add(('IT', 16 * h + 13))

    pc = [label('L_P')]
    p_setup(pc.append)
    pg = PGen()
    for k in range(NWQ):
        pc.extend(wq_dma(k))
        if k < P.NX:
            pc.extend(x_load(k))
    pg.wq_issued = NWQ
    pg.x_issued = P.NX
    pc.append(wait(vm=[('W', 0), ('W', 1)]))
    pc.append(barrier())
    for idx, n in enumerate(names):
        kv = []
        need = []
        if n[0] == 'IT':
            t = n[1]
            if t >= 0 and t + 4 <= 63:
                kv.append(k_dma(P.vKd, t + 4))
            if t >= 1 and t + 3 <= 63:
                kv.append(v_dma(P.vVd, t + 3))
            if 4 <= t + 1 <= 63:
                need.append(('V', t + 1))
            if 4 <= t + 3 <= 63:
                need.append(('K', t + 3))
            if t + 1 == 62:
                need.append(('V', 63))
        nxt = cons[names[idx + 1]] if idx + 1 < len(names) else []
        pc.extend(pg.interval(cons[n], kv, n in hand, nxt, need))
        if idx + 1 < len(names):
            pc.append(barrier())
    pc.append(raw('s_endpgm', 'branch'))
    resolve_waits(pc)
    while hazards(head + pc):
        pass

    def osink(h):
        def sink(qt, i, buf):
            return [buf_store(buf, A.vO, SRD_WS, ('s68', 's69', 's70')[qt], i * 1024)]
        return sink
    ag = AGen(osink)
    apro = [label('L_A')]
    e = apro.append
    e(salu('s_setprio', 1))
    kv_dma_addrs(e, V(8), V(9), A.T0, A.T1)
    for kind, t in (('K', 0), ('K', 1), ('V', 0), ('K', 2), ('V', 1), ('K', 3), ('V', 2), ('V', 3)):
        apro.extend(k_dma(V(8), t) if kind == 'K' else v_dma(V(9), t))
    a_setup(e)
    e(salu('s_mul_i32', 's68', S_ID, 196608))
    e(salu('s_mul_i32', 's54', S_W, 49152))
    e(salu('s_add_u32', 's68', 's68', 's54'))
    e(salu('s_add_u32', 's69', 's68', 4096))
    e(salu('s_add_u32', 's70', 's68', 8192))
    e(salu('s_mov_b32', 's71', 0))
    e(barrier())
    for k in range(NPRO):
        e(barrier())
    e(wait(vm='all'))
    e(barrier())
    for ks in range(4):
        for qt in range(3):
            e(ds_read('ds_read_b128', V(A.q(qt, ks), 4), A.vH, (qt * 4 + ks) * 1024, tag=('q', 0)))
    for n in range(4):
        apro.extend(ag.read(n))
    e(wait(lg=('q', 0)))
    apro.extend(ag.iteration(-1)); e(barrier())
    apro.extend(ag.iteration(0)); e(barrier())
    bodies = []
    for h in range(4):
        b = []
        for j in range(1, 14):
            b.extend(ag.iteration(16 * h + j)); b.append(barrier())
        b.append(salu('s_cmp_eq_u32', 's71', 3))
        b.append(raw('s_cbranch_scc1 L_A_tail', 'branch'))
        if h < 3:
            b.extend(ag.iteration(16 * h + 14)); b.append(barrier())
            b.extend(ag.iteration(16 * h + 15)); b.append(barrier())
            b.extend(ag.iteration(16 * h + 16))
            b.append(salu('s_add_u32', 's68', 's68', 12288))
            b.append(salu('s_add_u32', 's69', 's69', 12288))
            b.append(salu('s_add_u32', 's70', 's70', 12288))
            b.append(salu('s_add_u32', 's71', 's71', 1))
            b.append(barrier())
            b.append(raw('s_branch L_A_loop', 'branch'))
        bodies.append(b)
    tail = [label('L_A_tail')]
    tail.extend(ag.iteration(62)); tail.append(barrier())
    tail.extend(ag.iteration(63))
    tail.extend(epilogue_ops(osink(3)))
    tail.append(raw('s_endpgm', 'branch'))
    resolve_waits(apro + bodies[0] + bodies[1] + bodies[2] + bodies[3] + tail)
    body = fold(bodies)
    npre = len(bodies[3])
    while hazards(head + apro + body + body + body[:npre] + tail):
        pass
    rare = []
    for site, lab in rare_sites:
        rare += [label(f'TR_{site}'), raw(f's_call_b64 s[62:63], {lab}', 'branch'), raw(f's_branch RET_{site}', 'branch')]
    for var, lab in rare_variants.items():
        rc = rare_code(var, lab)
        while hazards(rc):
            pass
        rare += rc
    print(stats(apro, 'A pro'), file=sys.stderr); print(stats(body, 'A body'), file=sys.stderr)
    print(stats(tail, 'A tail'), file=sys.stderr); print(stats(pc, 'P'), file=sys.stderr); print(stats(rare, 'rare'), file=sys.stderr)
    lines = render(head) + render(apro) + ['.p2align 6', 'L_A_loop:'] + render(body) + render(tail) + render(rare) + ['.p2align 6'] + render(pc)
    return lines


class G:
    vD, vT0, vT1, vS = V(2), V(3), V(4), V(5)
    T0, T1 = V(1), V(6)
    PK = 8
    ACC = 20
    F = 44
    O = 64
    NS = 8

    @staticmethod
    def o(qt, kb): return G.O + (qt * 16 + kb) * 4
    @staticmethod
    def acc(qt, nt): return G.ACC + (qt * 2 + nt) * 4


def g_setup(e):
    t0, t1 = G.T0, G.T1
    e(salu('s_lshr_b32', 's72', S_WAVE, 2))
    e(valu('v_bfe_u32', t1, V(0), 4, 1))
    e(valu('v_lshlrev_b32', t1, 1, t1))
    e(valu('v_and_b32', t0, 3, V(0)))
    e(valu('v_xor_b32', t0, t0, t1))
    e(valu('v_lshlrev_b32', t0, 4, t0))
    e(valu('v_lshrrev_b32', t1, 2, V(0)))
    e(valu('v_mul_u32_u24', t1, 1152, t1))
    e(valu('v_add_u32', t0, t0, t1))
    e(salu('s_mul_i32', 's54', S_W, 32 * 1152))
    e(salu('s_mul_i32', 's55', 's72', 576))
    e(salu('s_add_u32', 's54', 's54', 's55'))
    e(valu('v_add_u32', G.vD, 's54', t0))
    e(salu('s_lshl_b32', 's73', 's72', 16))
    e(salu('s_lshl_b32', 's54', S_W, 11))
    e(salu('s_add_u32', 's73', 's73', 's54'))
    e(valu('v_bfe_u32', t0, V(0), 1, 1))
    e(valu('v_bfe_u32', t1, V(0), 4, 1))
    e(valu('v_lshl_add_u32', t0, t1, 1, t0))
    e(valu('v_lshrrev_b32', t1, 2, V(0)))
    e(valu('v_lshl_add_u32', t0, t1, 2, t0))
    e(valu('v_lshlrev_b32', t0, 4, t0))
    e(valu('v_and_b32', t1, 1, V(0)))
    e(valu('v_lshl_add_u32', t0, t1, 3, t0))
    e(salu('s_lshl_b32', 's54', 's72', 16))
    e(valu('v_add_u32', G.vT0, 's54', t0))
    e(valu('v_xor_b32', G.vT1, 32, G.vT0))
    e(valu('v_lshlrev_b32', G.vS, 4, V(0)))
    e(salu('s_mul_i32', 's74', S_ID, 221184))
    e(salu('s_lshl_b32', 's54', S_W, 1))
    e(salu('s_add_u32', 's54', 's54', 's72'))
    e(salu('s_mul_i32', 's54', 's54', 27648))
    e(salu('s_add_u32', 's74', 's74', 's54'))
    e(salu('s_add_u32', 's74', 's74', PART_WS_OFF))


def wo_dma(u):
    p, hh = divmod(u, 4)
    so = hh * 128 * 1152 + p * 64
    return [salu('s_add_u32', 'm0', 's73', (u % G.NS) * 8192), salu('s_mov_b32', 's66', so),
            salu('s_mov_b32', 's67', so + 18432 - 1024),
            dma(G.vD, SRD_WO, 's66', 0, tag=('U', u)), dma(G.vD, SRD_WO, 's67', 1024, tag=('U', u))]


def build_k2():
    c = []
    e = c.append
    common_prologue(e)
    g_setup(e)
    PRE = G.NS - 2
    for u in range(2):
        c.extend(wo_dma(u))
    e(salu('s_mul_i32', 's68', S_ID, 196608))
    e(salu('s_mul_i32', 's54', S_W, 49152))
    e(salu('s_add_u32', 's68', 's68', 's54'))
    for h in range(4):
        for qt in range(3):
            e(salu('s_add_u32', 's69', 's68', h * 12288 + qt * 4096))
            for i in range(4):
                e(buf_load(V(G.o(qt, 4 * h + i), 4), G.vS, SRD_WS, 's69', i * 1024, tag=('O', h)))
    for u in range(2, PRE):
        c.extend(wo_dma(u))
    fr = [(u, kb, nt) for u in range(36) for kb in range(4) for nt in range(2)]

    def rd(n):
        if n >= len(fr):
            return []
        u, kb, nt = fr[n]
        buf = G.F + (n % 4) * 4
        va = G.vT0 if nt == 0 else G.vT1
        off = (u % G.NS) * 8192 + kb * 2048
        return [ds_read('ds_read_b64_tr_b16', V(buf, 2), va, off, tag=('gf', n)),
                ds_read('ds_read_b64_tr_b16', V(buf + 2, 2), va, off + 1024, tag=('gf', n))]
    e(wait(vm=[('U', 0), ('U', 1)]))
    e(barrier())
    for n in range(3):
        c.extend(rd(n))
    for n, (u, kb, nt) in enumerate(fr):
        p, hh = divmod(u, 4)
        if kb == 0 and nt == 0 and u > 0:
            if u + 1 < 36:
                e(wait(vm=('U', u + 1)))
            e(barrier())
        if kb == 0 and nt == 1 and u + PRE < 36:
            c.extend(wo_dma(u + PRE))
        c.extend(rd(n + 3))
        e(wait(lg=('gf', n), vm=('O', hh) if (p == 0 and kb == 0 and nt == 0) else None))
        for qt in range(3):
            d = G.acc(qt, nt)
            e(mfma(d, G.F + (n % 4) * 4, G.o(qt, 4 * hh + kb), None if (hh == 0 and kb == 0) else d))
        if hh == 3 and kb == 3 and nt == 1:
            for qt in range(3):
                pk = G.PK + qt * 4
                for t2 in range(2):
                    a = G.acc(qt, t2)
                    e(valu('v_cvt_pk_bf16_f32', V(pk + 2 * t2), V(a), V(a + 1)))
                    e(valu('v_cvt_pk_bf16_f32', V(pk + 2 * t2 + 1), V(a + 2), V(a + 3)))
                e(buf_store(V(pk, 4), G.vS, SRD_WS, 's74', qt * 1024))
            e(salu('s_add_u32', 's74', 's74', 3072))
    e(raw('s_endpgm', 'branch'))
    resolve_waits(c)
    while hazards(c):
        pass
    print(stats(c, 'K2'), file=sys.stderr)
    return [x.replace('L_go', 'L2_go') for x in render(c)]


def build_k3():
    c = []
    e = c.append
    e(raw('s_cmp_ge_u32 s2, 1728')); e(raw('s_cbranch_scc0 L3_go')); e(raw('s_endpgm')); e(label('L3_go'))
    e(raw('s_load_dwordx2 s[4:5], s[0:1], 80'))
    e(raw('s_load_dwordx2 s[6:7], s[0:1], 96'))
    e(valu('v_lshrrev_b32', V(1), 6, V(0)))
    e(valu('v_readfirstlane_b32', 's16', V(1)))
    e(valu('v_and_b32', V(0), 63, V(0)))
    e(salu('s_lshl_b32', 's17', 's2', 2))
    e(salu('s_add_u32', 's17', 's17', 's16'))
    e(salu('s_mul_hi_u32', 's18', 's17', (2 ** 32 + 215) // 216))
    e(salu('s_mul_i32', 's19', 's18', 216))
    e(salu('s_sub_u32', 's19', 's17', 's19'))
    e(salu('s_mul_hi_u32', 's20', 's19', (2 ** 32 + 26) // 27))
    e(salu('s_mul_i32', 's21', 's20', 27))
    e(salu('s_sub_u32', 's21', 's19', 's21'))
    e(salu('s_mul_hi_u32', 's22', 's21', (2 ** 32 + 2) // 3))
    e(salu('s_mul_i32', 's23', 's22', 3))
    e(salu('s_sub_u32', 's23', 's21', 's23'))
    e(raw('s_waitcnt lgkmcnt(0)'))
    e(salu('s_mov_b32', 's8', 's6')); e(salu('s_mov_b32', 's9', 's7'))
    e(salu('s_mov_b32', 's10', PART_WS_OFF + 256 * 221184)); e(salu('s_mov_b32', 's11', 0x20000))
    e(salu('s_mov_b32', 's12', 's4')); e(salu('s_mov_b32', 's13', 's5'))
    e(salu('s_mov_b32', 's14', 16 * 192 * 1152 * 2)); e(salu('s_mov_b32', 's15', 0x20000))
    e(salu('s_mul_i32', 's24', 's18', 8 * 221184))
    e(salu('s_lshl_b32', 's25', 's19', 10))
    e(salu('s_add_u32', 's24', 's24', 's25'))
    e(salu('s_add_u32', 's24', 's24', PART_WS_OFF))
    e(valu('v_lshlrev_b32', V(1), 4, V(0)))
    for hg in range(8):
        e(buf_load(V(8 + 4 * hg, 4), V(1), 's[8:11]', 's24', 0, tag=('p', hg)))
        e(salu('s_add_u32', 's24', 's24', 221184))
    e(salu('s_and_b32', 's26', 's18', 15))
    e(salu('s_mul_i32', 's26', 's26', 192))
    e(salu('s_lshr_b32', 's27', 's20', 1))
    e(salu('s_mul_i32', 's27', 's27', 48))
    e(salu('s_add_u32', 's26', 's26', 's27'))
    e(salu('s_lshl_b32', 's27', 's23', 4))
    e(salu('s_add_u32', 's26', 's26', 's27'))
    e(salu('s_mul_i32', 's26', 's26', 2304))
    e(salu('s_lshr_b32', 's27', 's18', 4))
    e(salu('s_mul_i32', 's27', 's27', 1152))
    e(salu('s_add_u32', 's26', 's26', 's27'))
    e(salu('s_and_b32', 's27', 's20', 1))
    e(salu('s_mul_i32', 's27', 's27', 576))
    e(salu('s_add_u32', 's26', 's26', 's27'))
    e(salu('s_lshl_b32', 's27', 's22', 6))
    e(salu('s_add_u32', 's26', 's26', 's27'))
    e(valu('v_and_b32', V(2), 15, V(0)))
    e(valu('v_mul_u32_u24', V(2), 2304, V(2)))
    e(valu('v_lshrrev_b32', V(3), 4, V(0)))
    e(valu('v_lshl_add_u32', V(2), V(3), 3, V(2)))
    ACC = 40
    for hg in range(8):
        e(wait(vm=('p', hg)))
        for r in range(4):
            src = V(8 + 4 * hg + r)
            if hg == 0:
                e(valu('v_lshlrev_b32', V(ACC + 2 * r), 16, src))
                e(valu('v_and_b32', V(ACC + 2 * r + 1), 0xffff0000, src))
            else:
                e(valu('v_lshlrev_b32', V(4), 16, src))
                e(valu('v_and_b32', V(5), 0xffff0000, src))
                e(valu('v_add_f32', V(ACC + 2 * r), V(ACC + 2 * r), V(4)))
                e(valu('v_add_f32', V(ACC + 2 * r + 1), V(ACC + 2 * r + 1), V(5)))
    for r in range(4):
        e(valu('v_cvt_pk_bf16_f32', V(8 + r), V(ACC + 2 * r), V(ACC + 2 * r + 1)))
    e(buf_store(V(8, 2), V(2), 's[12:15]', 's26', 0))
    e(buf_store(V(10, 2), V(2), 's[12:15]', 's26', 32))
    e(raw('s_endpgm', 'branch'))
    resolve_waits(c)
    while hazards(c):
        pass
    return render(c)


def kd(name, vgpr, sgpr=102):
    return ['.p2align 6', f'.amdhsa_kernel {name}', f'  .amdhsa_next_free_vgpr {vgpr}', f'  .amdhsa_next_free_sgpr {sgpr}',
            f'  .amdhsa_accum_offset {(vgpr + 3) // 4 * 4}', '  .amdhsa_group_segment_fixed_size 0', '  .amdhsa_kernarg_size 104',
            '  .amdhsa_user_sgpr_count 2', '  .amdhsa_user_sgpr_kernarg_segment_ptr 1', '  .amdhsa_system_sgpr_workgroup_id_x 1',
            '.end_amdhsa_kernel']


def kern(name, lines):
    return [f'.globl {name}', '.p2align 8', f'.type {name},@function', f'{name}:'] + lines


if __name__ == '__main__':
    which = sys.argv[2] if len(sys.argv) > 2 else '123'
    out = []
    if '1' in which: out.append(f'; @launch kernel=k1_kernel grid=(256,1,1) block=(512,1,1) lds={LDS_BYTES}')
    if '2' in which: out.append(f'; @launch kernel=k2_kernel grid=(256,1,1) block=(512,1,1) lds=131072')
    if '3' in which: out.append(f'; @launch kernel=k3_kernel grid=(1728,1,1) block=(256,1,1) lds=0')
    out += ['.amdgcn_target "amdgcn-amd-amdhsa--gfx950"', '.text']
    out += kern('k1_kernel', build_k1())
    out += kern('k2_kernel', build_k2())
    out += kern('k3_kernel', build_k3())
    out += ['.section .rodata,"a"'] + kd('k1_kernel', 256) + kd('k2_kernel', 256) + kd('k3_kernel', 48, 32)
    open(sys.argv[1], 'w').write('\n'.join(out) + '\n')
```

```python
import sys, math
sys.path.insert(0, 'gen')
from asmlib import *

NAME = 'concat_heads__mha_block_cached__mha_block_cached__near_ridge'
CSCALE = math.log2(math.e) / math.sqrt(128.0)
THR = 1024.0

KV_BASE = 0
WQ_BASE = 65536
NWQ = 4
WSLOT = {}
XB_BASE = WQ_BASE + NWQ * 8192
H_BASE = XB_BASE + 16384
LDS_BYTES = 163840

SRD_K, SRD_V, SRD_WQ, SRD_X, SRD_WS, SRD_WO = 's[8:11]', 's[12:15]', 's[16:19]', 's[20:23]', 's[24:27]', 's[28:31]'
S_W = 's50'
S_WAVE = 's39'
S_ID = 's51'

PART_WS_OFF = 0


STAMPS = False
OPT = {}
STAMP_OFF = 120 * 1024 * 1024
def stamp(k):
    if not STAMPS: return []
    assert k < 12
    return [raw(f's_memtime s[{76 + 2 * k}:{77 + 2 * k}]')]
def stamp_init():
    if not STAMPS: return []
    return [salu('s_mov_b32', f's{r}', 0) for r in range(76, 100)] + [raw('s_memrealtime s[100:101]')]
def stamp_out(t0=V(8, 4), a=V(1)):
    if not STAMPS: return []
    c = [raw('s_memrealtime s[52:53]'), raw('s_waitcnt vmcnt(0) lgkmcnt(0)'), salu('s_lshl_b32', 's54', 's2', 3), salu('s_add_u32', 's54', 's54', S_WAVE),
         salu('s_lshl_b32', 's54', 's54', 7), salu('s_add_u32', 's54', 's54', STAMP_OFF), salu('s_mov_b32', 's26', STAMP_OFF + 1024 * 1024),
         valu('v_mov_b32', a, 0), raw('s_mov_b64 exec, 1')]
    regs = list(range(76, 102)) + [52, 53]
    for k in range(7):
        for r in range(4):
            c.append(valu('v_mov_b32', V(t0.n + r), f's{regs[4 * k + r]}'))
        c.append(buf_store(t0, a, SRD_WS, 's54', 16 * k))
        c.append(nop(3))
    return c


PHYS = {7: 0, 1: 1, 2: 2, 4: 3, 3: 4, 5: 5, 6: 6, 0: 7}
def kslot(t): return PHYS[(2 * t - 1) % 8]
def vslot(t): return PHYS[(2 * t + 2) % 8]
def wslot0(k): return 8 + k % 6
XS = [4, 5, 6, 16, 17, 18, 19, 14, 15]
XBASE = 14 * 8192
def xslot(M, qt): return XS[(M % 3) * 3 + qt]
S_SET = 's3'


def common_prologue(e, nwg=256):
    e(raw(f's_cmp_ge_u32 s2, {nwg}'))
    e(raw('s_cbranch_scc0 L_go'))
    e(raw('s_endpgm'))
    e(label('L_go'))
    e(raw('s_load_dwordx2 s[4:5], s[0:1], 80'))
    e(raw('s_load_dwordx2 s[6:7], s[0:1], 96'))
    e(raw('s_load_dwordx2 s[72:73], s[0:1], 88'))
    e(salu('s_and_b32', 's32', 's2', 7))
    e(salu('s_lshr_b32', 's33', 's2', 3))
    e(salu('s_lshl_b32', 's34', 's32', 2))
    e(salu('s_lshr_b32', 's35', 's33', 3))
    e(salu('s_add_u32', 's34', 's34', 's35'))
    e(salu('s_and_b32', 's35', 's33', 7))
    e(salu('s_lshr_b32', 's36', 's34', 4))
    e(salu('s_and_b32', 's37', 's34', 15))
    e(salu('s_lshl_b32', S_ID, 's34', 3))
    e(salu('s_add_u32', S_ID, S_ID, 's35'))
    e(salu('s_mul_i32', 's38', 's36', 40))
    e(salu('s_add_u32', 's52', 's0', 's38'))
    e(salu('s_addc_u32', 's53', 's1', 0))
    e(raw('s_load_dwordx4 s[40:43], s[52:53], 0'))
    e(raw('s_load_dwordx4 s[44:47], s[52:53], 16'))
    e(raw('s_load_dwordx2 s[48:49], s[52:53], 32'))
    e(valu('v_lshrrev_b32', V(1), 6, V(0)))
    e(valu('v_readfirstlane_b32', S_WAVE, V(1)))
    e(valu('v_and_b32', V(0), 63, V(0)))
    e(salu('s_and_b32', S_W, S_WAVE, 3))
    e(salu('s_lshr_b32', S_SET, S_WAVE, 2))
    e(salu('s_lshl_b32', 's58', S_SET, 9))
    e(salu('s_add_u32', 's58', 's58', 65536))
    e(salu('s_lshl_b32', 's62', S_W, 11))
    e(salu('s_lshl_b32', 's63', S_SET, 10))
    e(salu('s_add_u32', 's63', 's63', 's62'))
    e(salu('s_add_u32', 's62', 's62', 's58'))
    q_dma_addrs(e)
    e(raw('s_waitcnt lgkmcnt(0)'))
    e(salu('s_lshl_b32', 's54', 's35', 10))
    e(salu('s_add_u32', 's16', 's46', 's54')); e(salu('s_addc_u32', 's17', 's47', 0))
    e(salu('s_sub_u32', 's18', 576 * 8192, 's54')); e(salu('s_mov_b32', 's19', 0x20000))
    e(salu('s_mul_i32', 's54', 's37', 221184))
    e(salu('s_add_u32', 's20', 's40', 's54')); e(salu('s_addc_u32', 's21', 's41', 0))
    e(salu('s_mov_b32', 's22', 221184)); e(salu('s_mov_b32', 's23', 0x20000))
    for x in wq0_dma(0) + x0_dma(0) + wq0_dma(1) + wq0_dma(2) + x0_dma(1) + wq0_dma(3) + wq0_dma(4) + x0_dma(2) + wq0_dma(5): e(x)
    e(salu('s_lshl_b32', 's54', 's37', 3))
    e(salu('s_add_u32', 's54', 's54', 's35'))
    e(salu('s_lshl_b32', 's54', 's54', 19))
    e(salu('s_add_u32', 's8', 's42', 's54')); e(salu('s_addc_u32', 's9', 's43', 0))
    e(salu('s_mov_b32', 's10', 524288)); e(salu('s_mov_b32', 's11', 0x20000))
    e(salu('s_add_u32', 's12', 's44', 's54')); e(salu('s_addc_u32', 's13', 's45', 0))
    e(salu('s_mov_b32', 's14', 524288)); e(salu('s_mov_b32', 's15', 0x20000))
    e(salu('s_mov_b32', 's24', 's6')); e(salu('s_mov_b32', 's25', 's7'))
    e(salu('s_mov_b32', 's26', PART_WS_OFF + 256 * 221184)); e(salu('s_mov_b32', 's27', 0x20000))
    e(salu('s_mul_i32', 's54', 's35', 589824))
    e(salu('s_add_u32', 's28', 's48', 's54')); e(salu('s_addc_u32', 's29', 's49', 0))
    e(salu('s_mov_b32', 's30', 589824)); e(salu('s_mov_b32', 's31', 0x20000))
    for x in stamp_init() + stamp(0): e(x)


def wq0_dma(k):
    return [salu('s_add_u32', 'm0', 's63', wslot0(k) * 8192), salu('s_mov_b32', 's66', k * 262144), dma(A.vWd, SRD_WQ, 's66', 0, tag=('W0', k))]


def x0_dma(M):
    o = []
    for qt in range(3):
        o += [salu('s_add_u32', 'm0', 's63', xslot(M, qt) * 8192), salu('s_mov_b32', 's66', M * 128 + qt * 18432),
              dma(A.vXd, SRD_X, 's66', 0, tag=('X0', M))]
    return o


def kv0_dma(kind, t):
    if kind == 'K':
        assert kslot(t + 1) == kslot(t) + 1
        return [salu('s_add_u32', 'm0', 's68', kslot(t) * 8192), salu('s_add_u32', 's66', 's70', t * 8192),
                dma(A.vKd, SRD_K, 's66', 0, tag=('K0', t), pol='nt'), dma(A.vKd, SRD_K, 's66', 1024, tag=('K0', t), pol='nt')]
    assert vslot(t + 1) == vslot(t) + 1
    return [salu('s_add_u32', 'm0', 's69', vslot(t) * 8192), salu('s_add_u32', 's66', 's70', t * 8192),
            dma(A.vVd, SRD_V, 's66', 0, tag=('V0', t), pol='nt'), dma(A.vVd, SRD_V, 's66', 2048, tag=('V0', t), pol='nt')]


def q_dma_addrs(e):
    t0, t1 = A.T0, A.T1
    e(salu('s_and_b32', 's54', S_W, 1))
    e(valu('v_and_b32', t0, 3, V(0)))
    e(valu('v_xor_b32', t0, 's54', t0))
    e(valu('v_lshrrev_b32', t1, 4, V(0)))
    e(valu('v_lshl_add_u32', t0, t1, 2, t0))
    e(valu('v_lshlrev_b32', t0, 4, t0))
    e(valu('v_bfe_u32', t1, V(0), 2, 2))
    e(valu('v_lshl_add_u32', t0, t1, 13, t0))
    e(salu('s_lshl_b32', 's54', S_W, 16))
    e(salu('s_lshl_b32', 's55', S_SET, 15))
    e(salu('s_add_u32', 's54', 's54', 's55'))
    e(valu('v_add_u32', A.vWd, 's54', t0))
    e(salu('s_lshl_b32', 's54', S_SET, 2))
    e(valu('v_lshrrev_b32', t1, 4, V(0)))
    e(valu('v_add_u32', t1, 's54', t1))
    e(valu('v_and_b32', t0, 7, V(0)))
    e(valu('v_xor_b32', t0, t0, t1))
    e(valu('v_lshrrev_b32', t1, 3, V(0)))
    e(valu('v_mul_u32_u24', t1, 1152, t1))
    e(valu('v_lshl_add_u32', t0, t0, 4, t1))
    e(salu('s_mul_i32', 's54', S_W, 48 * 1152))
    e(salu('s_mul_i32', 's55', S_SET, 8 * 1152))
    e(salu('s_add_u32', 's54', 's54', 's55'))
    e(valu('v_add_u32', A.vXd, 's54', t0))


def q_rd_addrs(e):
    t0, t1 = A.T0, A.T1
    e(valu('v_and_b32', t0, 3, V(0)))
    e(valu('v_bfe_u32', t1, V(0), 4, 1))
    e(valu('v_xor_b32', t0, t0, t1))
    e(valu('v_bfe_u32', t1, V(0), 2, 2))
    e(valu('v_lshl_add_u32', t0, t1, 2, t0))
    e(valu('v_lshrrev_b32', t1, 4, V(0)))
    e(valu('v_lshl_add_u32', t0, t1, 7, t0))
    e(valu('v_lshlrev_b32', t0, 4, t0))
    e(valu('v_and_b32', t1, 1, V(0)))
    e(valu('v_lshl_add_u32', t0, t1, 3, t0))
    e(valu('v_add_u32', A.vW0, 's58', t0))
    e(valu('v_xor_b32', A.vW1, 8, A.vW0))
    e(valu('v_lshrrev_b32', t0, 4, V(0)))
    e(valu('v_bfe_u32', t1, V(0), 1, 3))
    e(valu('v_xor_b32', t0, t0, t1))
    e(valu('v_lshlrev_b32', t0, 4, t0))
    e(valu('v_and_b32', t1, 15, V(0)))
    e(valu('v_lshl_add_u32', t0, t1, 7, t0))
    e(salu('s_lshl_b32', 's54', S_W, 11))
    e(salu('s_add_u32', 's54', 's54', XBASE))
    e(valu('v_add_u32', A.vXr0, 's54', t0))
    e(valu('v_xor_b32', A.vXr1, 64, A.vXr0))
    e(valu('v_subrev_u32', A.vXr2, XBASE, A.vXr0))
    e(valu('v_subrev_u32', A.vXr3, XBASE, A.vXr1))


def q0_wread(n):
    if n >= 72: return []
    k, f = divmod(n, 4)
    i, t = f >> 1, f & 1
    buf = A.F + (n % 4) * 4
    va = A.vW0 if t == 0 else A.vW1
    off = (wslot0(k) - 8) * 8192 + i * 256
    return [ds_read('ds_read_b64_tr_b16', V(buf, 2), va, off, tag=('pf0', n)), ds_read('ds_read_b64_tr_b16', V(buf + 2, 2), va, off + 1024, tag=('pf0', n))]


def q0_xread(k):
    o = []
    for qt in range(3):
        a = xslot(k // 2, qt) * 8192
        va, off = ((A.vXr1 if k % 2 else A.vXr0), a - XBASE) if a >= XBASE else ((A.vXr3 if k % 2 else A.vXr2), a)
        o.append(ds_read('ds_read_b128', V(A.xf(k, qt), 4), va, off, tag=('xf0', k)))
    return o


def q_conv(i):
    ops = []
    for qt in range(3):
        tm = A.P[0] + qt * 4
        for t in range(2):
            a = A.o(qt, 2 * i + t)
            for r in range(4): ops.append(valu('v_mul_f32', V(a + r), 's59', V(a + r)))
            ops.append(valu('v_cvt_pk_bf16_f32', V(tm + 2 * t), V(a), V(a + 1)))
            ops.append(valu('v_cvt_pk_bf16_f32', V(tm + 2 * t + 1), V(a + 2), V(a + 3)))
        q = A.q(qt, i)
        for k in range(2):
            ops.append(valu('v_cndmask_b32', V(q + k), V(tm + k), V(tm + 2 + k), 's[64:65]'))
            ops.append(valu('v_cndmask_b32', V(q + 2 + k), V(tm + 2 + k), V(tm + k), 's[64:65]'))
    return ops


def q0_phase():
    c = []; e = c.append
    q_rd_addrs(e)
    kv_dma_addrs(e, A.vKd, A.vVd, A.T0, A.T1)
    e(salu('s_lshl_b32', 's70', S_SET, 13))
    e(salu('s_add_u32', 's68', 's56', 's70'))
    e(salu('s_add_u32', 's69', 's57', 's70'))
    e(salu('s_mov_b32', 's59', CSCALE))
    e(salu('s_mov_b32', 's64', 0xffff0000)); e(salu('s_mov_b32', 's65', 0xffff0000))
    e(wait(vm=[('W0', 0), ('X0', 0)]))
    e(barrier())
    c += stamp(1)
    c += q0_wread(0) + q0_wread(1) + q0_wread(2) + q0_xread(0)
    gaps = [[] for _ in range(72 * 3 + 1)]

    def chain(ops, lo, hi):
        for a, o in enumerate(ops): gaps[min(lo + (a * (hi - lo + 1)) // len(ops), 216)].append(o)
    wn = 6
    kvq = {OPT.get('kv0', 8): kv0_dma('K', 0), OPT.get('kv1', 12): kv0_dma('V', 0), OPT.get('kv2', 14): kv0_dma('K', 2), OPT.get('kv3', 16): kv0_dma('V', 2)}
    for k in range(18):
        g0 = (4 * k + 1) * 3
        ops = []
        if k < 17:
            for j, x in enumerate(q0_xread(k + 1)): gaps[g0 + 2 * j].append(x)
        while wn < 18 and wn - 6 <= k - 1:
            ops += wq0_dma(wn); wn += 1
        if k % 2 == 1 and (k - 1) // 2 + 3 <= 8: ops += x0_dma((k - 1) // 2 + 3)
        ops += kvq.get(k, [])
        if ops: chain(ops, g0, g0 + 10)
    for n in range(72):
        k, f = divmod(n, 4)
        if f == 1 and k < 17:
            c.append(wait(vm=[('W0', k + 1), ('X0', (k + 1) // 2)]))
            c.append(barrier())
        c.append(wait(lg=[('pf0', n)] + ([('xf0', k)] if f == 0 else [])))
        rd = q0_wread(n + 3)
        for qt in range(3):
            d = A.o(qt, f)
            c.append(mfma(d, A.F + (n % 4) * 4, A.xf(k, qt), d if k else None))
            if qt < len(rd): c.append(rd[qt])
            c += gaps[n * 3 + qt]
    c += stamp(2)
    c += q_conv(0) + q_conv(1)
    return c


QT_BASE = 8 * 8192


def kv_dma_addrs(e, vK, vV, t0, t1):
    e(salu('s_and_b32', 's54', S_W, 1))
    e(salu('s_lshl_b32', 's55', 's54', 1))
    e(valu('v_and_b32', t0, 3, V(0)))
    e(valu('v_xor_b32', t0, 's55', t0))
    e(valu('v_lshrrev_b32', t1, 4, V(0)))
    e(valu('v_lshl_add_u32', t0, t1, 2, t0))
    e(valu('v_lshlrev_b32', t0, 4, t0))
    e(valu('v_bfe_u32', t1, V(0), 2, 2))
    e(valu('v_lshl_add_u32', t0, t1, 8, t0))
    e(salu('s_lshl_b32', 's56', S_W, 11))
    e(salu('s_lshr_b32', 's57', S_W, 1))
    e(salu('s_lshl_b32', 's57', 's57', 2))
    e(salu('s_add_u32', 's57', 's57', 's54'))
    e(salu('s_lshl_b32', 's57', 's57', 10))
    e(valu('v_add_u32', vK, 's56', t0))
    e(valu('v_add_u32', vV, 's57', t0))


def k_dma(vK, t):
    if OPT.get('nokv') and t >= 4: return [Ins('s_nop 0', 'dma', tag=('K', t))]
    return [salu('s_add_u32', 'm0', 's56', KV_BASE + kslot(t) * 8192), salu('s_mov_b32', 's58', t * 8192),
            dma(vK, SRD_K, 's58', 0, tag=('K', t), pol='nt'), dma(vK, SRD_K, 's58', 1024, tag=('K', t), pol='nt')]


def v_dma(vV, t):
    if OPT.get('nokv') and t >= 4: return [Ins('s_nop 0', 'dma', tag=('V', t))]
    return [salu('s_add_u32', 'm0', 's57', KV_BASE + vslot(t) * 8192), salu('s_mov_b32', 's59', t * 8192),
            dma(vV, SRD_V, 's59', 0, tag=('V', t), pol='nt'), dma(vV, SRD_V, 's59', 2048, tag=('V', t), pol='nt')]


class A:
    vK, vV0, vV1, vH, vO = V(2), V(3), V(4), V(5), V(6)
    T0, T1 = V(1), V(7)
    E = 8
    TA, TB = 16, 17
    TS = 18
    L = 21
    LI = 24
    MX = 27
    NM = 28
    F = 40
    S = (56, 68)
    P = (80, 92)
    Q = 104
    O = 152
    X = 248
    vWd, vXd, vW0, vW1, vXr0, vXr1, vKd, vVd = V(8), V(9), V(10), V(11), V(12), V(13), V(14), V(15)
    vXr2, vXr3 = V(16), V(17)
    XF = 56
    @staticmethod
    def xf(k, qt): return A.XF + ((k % 2) * 3 + qt) * 4

    @staticmethod
    def q(qt, ks): return A.Q + (qt * 4 + ks) * 4
    @staticmethod
    def o(qt, dt): return A.O + (qt * 8 + dt) * 4
    @staticmethod
    def s(kt, qt): return A.S[kt] + qt * 4
    @staticmethod
    def p(par, qt): return A.P[par] + qt * 4
    @staticmethod
    def nm(qt): return A.NM + qt * 4


rare_variants = {}
rare_sites = []


def sm_groups(kt, par, site, variant, first, pending):
    g = []
    pend = list(pending)

    def E(q, i): return V(A.E + (q % 2) * 4 + i)
    def ex(q, i): return valu('v_exp_f32', E(q, i), V(A.s(kt, q) + i))
    def ad1(q): return valu('v_add_f32', V(A.TA), E(q, 0), E(q, 1))
    def cv1(q): return valu('v_cvt_pk_bf16_f32', V(A.p(par, q) + 2 * kt), E(q, 0), E(q, 1))
    def ad2(q): return valu('v_add_f32', V(A.TB), E(q, 2), E(q, 3))
    def cv2(q): return valu('v_cvt_pk_bf16_f32', V(A.p(par, q) + 2 * kt + 1), E(q, 2), E(q, 3))
    def ts(q): return valu('v_add_f32', V(A.TS + q), V(A.TA), V(A.TB))
    g.append([ex(0, 0)])
    g.append(pend[:2]); rest = pend[2:]
    g.append([ex(0, 1)])
    g.append([ex(0, 2)])
    g.append([ad1(0), cv1(0)])
    g.append([ex(0, 3)])
    g.append([ex(1, 0)])
    g.append([ad2(0), cv2(0)])
    g.append([ex(1, 1)])
    g.append(rest + [ts(0)])
    g.append([ex(1, 2)])
    g.append([ad1(1), cv1(1)])
    g.append([ex(1, 3)])
    g.append([ex(2, 0)])
    g.append([ad2(1), cv2(1)])
    g.append([ex(2, 1)])
    g.append([ts(1), ex(2, 2)])
    g.append([ad1(2), cv1(2)])
    g.append([ex(2, 3)])
    g.append([])
    g.append([ad2(2), cv2(2)])
    if variant is not None:
        g.append([ts(2), valu('v_max3_f32', V(A.MX), V(A.TS), V(A.TS + 1), V(A.TS + 2)), valu('v_cmp_lt_f32', 'vcc', 's60', V(A.MX))])
        br = Ins(f's_cbranch_vccnz TR_{site}', 'branch', srd=['vcc'])
        g.append([br, label(f'RET_{site}')])
        if variant not in rare_variants:
            rare_variants[variant] = f'RARE_{len(rare_variants)}'
        if (site, rare_variants[variant]) not in rare_sites:
            rare_sites.append((site, rare_variants[variant]))
    else:
        g.append([ts(2)])
        g.append([])
    if first:
        left = [valu('v_mov_b32', V(A.L + q), V(A.TS + q)) for q in range(3)]
    else:
        left = [valu('v_add_f32', V(A.L + q), V(A.L + q), V(A.TS + q)) for q in range(3)]
    g = [x for x in g]
    assert len(g) == 23
    return g, left


def xlane(op, r, tmp):
    return [valu('v_mov_b32', tmp, r), valu('v_permlane32_swap_b32', r, tmp), valu(op, r, r, tmp),
            valu('v_mov_b32', tmp, r), valu('v_permlane16_swap_b32', r, tmp), valu(op, r, r, tmp)]


def init_ops():
    ops = []
    for q in range(3):
        m = V(A.nm(q)); t = V(A.nm(q) + 1); s = A.s(0, q)
        ops.append(valu('v_max3_f32', m, V(s), V(s + 1), V(s + 2)))
        ops.append(valu('v_max_f32', m, m, V(s + 3)))
    xl = [xlane('v_max_f32', V(A.nm(q)), V(A.nm(q) + 1)) for q in range(3)]
    for k in range(6):
        for q in range(3):
            ops.append(xl[q][k])
    for q in range(3):
        ops.append(valu('v_ceil_f32', V(A.nm(q)), V(A.nm(q))))
    for q in range(3):
        ops.append(valu('v_sub_f32', V(A.nm(q)), 0, V(A.nm(q))))
    for q in range(3):
        s = A.s(0, q)
        for i in range(4):
            ops.append(valu('v_add_f32', V(s + i), V(A.nm(q)), V(s + i)))
    for q in range(3):
        for i in range(1, 4):
            ops.append(valu('v_mov_b32', V(A.nm(q) + i), V(A.nm(q))))
    return ops


def init_sb_ops():
    ops = []
    for q in range(3):
        s = A.s(1, q)
        for i in range(4):
            ops.append(valu('v_add_f32', V(s + i), V(A.nm(q)), V(s + i)))
    return ops


def linv_ops():
    ops = []
    for q in range(3):
        ops.append(valu('v_mov_b32', V(A.LI + q), V(A.L + q)))
    xl = [xlane('v_add_f32', V(A.LI + q), V(A.X + q)) for q in range(3)]
    for k in range(6):
        for q in range(3):
            ops.append(xl[q][k])
    for q in range(3):
        ops.append(valu('v_rcp_f32', V(A.LI + q), V(A.LI + q)))
    return ops


def epilogue_ops(sink, dst=None):
    ops = []
    n = 0
    for i in range(4):
        for qt in range(3):
            buf = A.X + (n % 2) * 4 if dst is None else dst(qt, i)
            n += 1
            for half in range(2):
                o = A.o(qt, 2 * i + half)
                for r in range(4):
                    ops.append(valu('v_mul_f32', V(o + r), V(A.LI + qt), V(o + r)))
                ops.append(valu('v_cvt_pk_bf16_f32', V(buf + 2 * half), V(o), V(o + 1)))
                ops.append(valu('v_cvt_pk_bf16_f32', V(buf + 2 * half + 1), V(o + 2), V(o + 3)))
            ops.extend(sink(qt, i, V(buf, 4)))
    return ops


def rare_code(variant, lab):
    kt, par, do_o, do_l, presc, adj = variant
    c = [label(lab), nop(16)]
    n = V(A.TA); f = V(A.TB); t = V(A.MX)
    for q in range(3):
        s = A.s(kt, q)
        c.append(valu('v_max3_f32', n, V(s), V(s + 1), V(s + 2)))
        c.append(valu('v_max_f32', n, n, V(s + 3)))
        c.extend(xlane('v_max_f32', n, t))
        c.append(valu('v_ceil_f32', n, n))
        c.append(valu('v_max_f32', n, 0, n))
        c.append(valu('v_sub_f32', f, 0, n))
        c.append(valu('v_exp_f32', f, f))
        for i in range(4):
            c.append(valu('v_sub_f32', V(s + i), V(s + i), n))
            if adj:
                so = A.s(1 - kt, q)
                c.append(valu('v_sub_f32', V(so + i), V(so + i), n))
            c.append(valu('v_sub_f32', V(A.nm(q) + i), V(A.nm(q) + i), n))
        if do_l:
            c.append(valu('v_mul_f32', V(A.L + q), f, V(A.L + q)))
        if do_o:
            for r in range(32):
                c.append(valu('v_mul_f32', V(A.o(q, 0) + r), f, V(A.o(q, 0) + r)))
        for (pp, off) in presc:
            r = V(A.p(pp, q) + off)
            lo, hi = V(A.E), V(A.E + 1)
            c.append(valu('v_lshlrev_b32', lo, 16, r))
            c.append(valu('v_and_b32', hi, 0xffff0000, r))
            c.append(valu('v_mul_f32', lo, f, lo))
            c.append(valu('v_mul_f32', hi, f, hi))
            c.append(valu('v_cvt_pk_bf16_f32', r, lo, hi))
        for i in range(4):
            c.append(valu('v_exp_f32', V(A.E + i), V(s + i)))
        c.append(valu('v_cvt_pk_bf16_f32', V(A.p(par, q) + 2 * kt), V(A.E), V(A.E + 1)))
        c.append(valu('v_cvt_pk_bf16_f32', V(A.p(par, q) + 2 * kt + 1), V(A.E + 2), V(A.E + 3)))
        c.append(valu('v_add_f32', V(A.E), V(A.E), V(A.E + 1)))
        c.append(valu('v_add_f32', V(A.E + 2), V(A.E + 2), V(A.E + 3)))
        c.append(valu('v_add_f32', V(A.TS + q), V(A.E), V(A.E + 2)))
    c.append(nop(4))
    c.append(raw('s_setpc_b64 s[62:63]', 'branch'))
    return c


class AGen:
    def __init__(self, osink):
        self.carry = []
        self.pendL = []
        self.osink = osink
        self.frags = []
        for t in range(-1, 64):
            if t + 1 <= 63:
                for kt in range(2):
                    for ks in range(4):
                        self.frags.append((t, 'K', kt, ks))
            if t >= 0:
                for dt in range(8):
                    self.frags.append((t, 'V', dt, 0))
        self.fidx = {f: n for n, f in enumerate(self.frags)}

    def read(self, n):
        if n >= len(self.frags):
            return []
        t, kind, a, b = self.frags[n]
        buf = A.F + (n % 4) * 4
        if kind == 'K':
            return [ds_read('ds_read_b128', V(buf, 4), A.vK, KV_BASE + kslot(t + 1) * 8192 + a * 4096 + b * 256, tag=('f', n))]
        va = A.vV0 if a % 2 == 0 else A.vV1
        off = KV_BASE + vslot(t) * 8192 + (a >> 1) * 256
        return [ds_read('ds_read_b64_tr_b16', V(buf, 2), va, off, tag=('f', n)),
                ds_read('ds_read_b64_tr_b16', V(buf + 2, 2), va, off + 4096, tag=('f', n))]

    def iteration(self, t):
        T = t + 1
        j = t % 16
        has_qk = T <= 63
        has_pv = t >= 0
        newhead = has_qk and T % 16 == 0
        def loc(u):
            return f'p{u + 1}' if u <= 0 else (f't{u}' if u >= 62 else f'{u % 16}')
        pos = [dict(pre=[], m=None, post=[]) for _ in range(48)]
        nfr = None
        for m in range(48):
            fr, qt = divmod(m, 3)
            if fr < 8:
                if not has_qk:
                    continue
                kt, ks = divmod(fr, 4)
                n = self.fidx[(t, 'K', kt, ks)]
                d = A.s(kt, qt)
                c = d if ks else (None if newhead else A.nm(qt))
                pos[m]['m'] = mfma(d, A.F + (n % 4) * 4, A.q(qt, ks), c)
            else:
                if not has_pv:
                    continue
                dt = fr - 8
                n = self.fidx[(t, 'V', dt, 0)]
                d = A.o(qt, dt)
                pos[m]['m'] = mfma(d, A.F + (n % 4) * 4, A.p(t % 2, qt), d if j else None)
            if qt == 0:
                if OPT.get('wait2') and n % 2 == 0 and n + 1 < len(self.frags):
                    pos[m]['pre'].append(wait(lg=('f', n + 1)))
                else:
                    pos[m]['pre'].append(wait(lg=('f', n)))
            if qt == 2:
                pos[m]['rd'] = self.read(n + 4)
        for k, g in enumerate(self.carry):
            pos[k]['post'].extend(g)
        self.carry = []
        extra = [[] for _ in range(48)]

        def spread(ops, lo, hi):
            n = len(ops)
            for k, o in enumerate(ops):
                extra[lo + (k * (hi - lo + 1)) // n].append(o)
        par = T % 2
        if has_qk:
            if newhead:
                pre = list(self.pendL); self.pendL = []
                if has_pv:
                    pre += linv_ops()
                spread(pre + init_ops(), 12, 21)
                g0, left = sm_groups(0, par, None, None, True, [])
                lo = 22
                for k, g in enumerate(g0):
                    extra[lo + (k * (36 - lo + 1)) // 23].extend(g)
                spread(init_sb_ops(), 30, 36)
            else:
                presc = tuple((t % 2, k) for k in range(4))
                var = (0, par, True, True, presc, True)
                g0, left = sm_groups(0, par, f'X{loc(t)}', var, False, self.pendL)
                self.pendL = []
                for k, g in enumerate(g0):
                    pos[13 + k]['post'].extend(g)
            last_of_head = (T % 16 == 15)
            var = (1, par, not newhead, True, ((par, 0), (par, 1)), not last_of_head)
            g1, left1 = sm_groups(1, par, f'Y{loc(t + 1)}', var, False, left)
            for k in range(11):
                pos[37 + k]['post'].extend(g1[k])
            self.carry = g1[11:]
            self.pendL = left1
        else:
            pre = list(self.pendL); self.pendL = []
            spread(pre + linv_ops(), 12, 30)
        if j == 0 and t > 0:
            eo = epilogue_ops(self.osink(t // 16 - 1))
            half = len(eo) // 2
            spread(eo[:half], 1, 17)
            spread(eo[half:], 18, 34)
        if has_qk and T % 16 == 15:
            rq = []
            for ks in range(4):
                for qt in range(3):
                    rq.append(ds_read('ds_read_b128', V(A.q(qt, ks), 4), A.vH, (qt * 4 + ks) * 1024, tag=('q', T + 1)))
            spread(rq, 25, 40)
        out = []
        if newhead and t >= 0:
            out.append(wait(lg=('q', T)))
        for m in range(48):
            out.extend(pos[m]['pre'])
            if pos[m]['m'] is not None:
                out.append(pos[m]['m'])
            if OPT.get('rdfirst', 1): out.extend(pos[m].get('rd', []))
            out.extend(pos[m]['post'])
            out.extend(extra[m])
            if not OPT.get('rdfirst', 1): out.extend(pos[m].get('rd', []))
        if j == 0 and t > 0:
            out.append(wait(lg='ow'))
        return out


def a_setup(e):
    t0, t1 = A.T0, A.T1
    e(valu('v_lshrrev_b32', t0, 4, V(0)))
    e(valu('v_bfe_u32', t1, V(0), 3, 1))
    e(valu('v_lshlrev_b32', t1, 1, t1))
    e(valu('v_xor_b32', t0, t0, t1))
    e(valu('v_and_b32', t1, 3, V(0)))
    e(valu('v_lshl_add_u32', t0, t1, 2, t0))
    e(valu('v_bfe_u32', t1, V(0), 2, 2))
    e(valu('v_lshl_add_u32', t0, t1, 6, t0))
    e(valu('v_lshlrev_b32', A.vK, 4, t0))
    e(valu('v_bfe_u32', t0, V(0), 1, 1))
    e(valu('v_bfe_u32', t1, V(0), 4, 1))
    e(valu('v_lshl_add_u32', t0, t1, 1, t0))
    e(valu('v_bfe_u32', t1, V(0), 2, 2))
    e(valu('v_lshl_add_u32', t0, t1, 2, t0))
    e(valu('v_lshrrev_b32', t1, 4, V(0)))
    e(valu('v_lshl_add_u32', t0, t1, 6, t0))
    e(valu('v_lshlrev_b32', t0, 4, t0))
    e(valu('v_and_b32', t1, 1, V(0)))
    e(valu('v_lshl_add_u32', A.vV0, t1, 3, t0))
    e(valu('v_xor_b32', A.vV1, 32, A.vV0))
    e(salu('s_mul_i32', 's54', S_W, 12288))
    e(salu('s_add_u32', 's54', 's54', H_BASE))
    e(valu('v_lshlrev_b32', t0, 4, V(0)))
    e(valu('v_add_u32', A.vH, 's54', t0))
    e(valu('v_mov_b32', A.vO, t0))
    e(salu('s_mov_b32', 's60', THR))


class P:
    vKd, vVd, vWd, vX, vW0, vW1, vH0, vH1, vBw, vBr = V(2), V(3), V(4), V(5), V(6), V(7), V(8), V(9), V(10), V(11)
    T0, T1 = V(1), V(12)
    PK = 12
    F = 16
    ACC = 32
    XF = 128
    X = 152
    vX1 = V(200)
    vBr1 = V(201)
    vBw2 = V(202)

    @staticmethod
    def acc(qt, i, t): return P.ACC + ((qt * 4 + i) * 2 + t) * 4
    @staticmethod
    def x(M, qt, j): return P.X + ((M % 2) * 6 + qt * 2 + j) * 4
    @staticmethod
    def xf(k, qt): return P.XF + ((k % 2) * 3 + qt) * 4


def p_setup(e):
    t0, t1 = P.T0, P.T1
    kv_dma_addrs(e, P.vKd, P.vVd, t0, t1)
    e(salu('s_and_b32', 's54', S_W, 1))
    e(valu('v_and_b32', t0, 3, V(0)))
    e(valu('v_xor_b32', t0, 's54', t0))
    e(valu('v_lshrrev_b32', t1, 4, V(0)))
    e(valu('v_lshl_add_u32', t0, t1, 2, t0))
    e(valu('v_lshlrev_b32', t0, 4, t0))
    e(valu('v_bfe_u32', t1, V(0), 2, 2))
    e(valu('v_lshl_add_u32', t0, t1, 13, t0))
    e(salu('s_lshl_b32', 's54', S_W, 16))
    e(valu('v_add_u32', P.vWd, 's54', t0))
    e(salu('s_and_b32', 's54', 's34', 3))
    e(salu('s_lshl_b32', 's54', 's54', 1))
    e(salu('s_add_u32', 's54', 's54', 's35'))
    if not OPT.get('rot'): e(salu('s_mov_b32', 's54', 0))
    e(salu('s_lshl_b32', 's54', 's54', 7))
    for m in range(9):
        e(salu('s_sub_u32', 's55', 's54', 1152))
        e(salu('s_cmp_ge_u32', 's54', 1152))
        e(salu('s_cselect_b32', f's{40 + m}', 's55', 's54'))
        e(salu('s_add_u32', 's54', f's{40 + m}', 128))
    e(salu('s_mul_i32', 's54', S_W, 48 * 1152))
    e(valu('v_and_b32', t0, 7, V(0)))
    e(valu('v_lshrrev_b32', t1, 3, V(0)))
    e(valu('v_mul_u32_u24', t1, 1152, t1))
    e(valu('v_lshl_add_u32', t0, t0, 4, t1))
    e(valu('v_add_u32', P.vX, 's54', t0))
    e(valu('v_xor_b32', t0, 32, P.vX))
    e(valu('v_add_u32', P.vX1, 8 * 1152, t0))


def p_setup2(e):
    t0, t1 = P.T0, P.T1
    e(salu('s_lshl_b32', 's54', S_W, 12))
    e(salu('s_add_u32', 's54', 's54', XB_BASE))
    e(valu('v_and_b32', t0, 3, V(0)))
    e(valu('v_lshrrev_b32', t1, 3, V(0)))
    e(valu('v_lshl_add_u32', t0, t1, 2, t0))
    e(valu('v_lshlrev_b32', t0, 4, t0))
    e(valu('v_bfe_u32', t1, V(0), 2, 1))
    e(valu('v_xor_b32', t1, 1, t1))
    e(valu('v_mul_u32_u24', t1, 1024 + 64, t1))
    e(valu('v_xor_b32', t0, t0, t1))
    e(valu('v_add_u32', P.vBw, 's54', t0))
    e(valu('v_and_b32', t1, 1024, t1))
    e(valu('v_add_u32', P.vBw2, P.vBw, t1))
    e(valu('v_bfe_u32', t0, V(0), 3, 1))
    e(valu('v_lshlrev_b32', t0, 1, t0))
    e(valu('v_lshrrev_b32', t1, 4, V(0)))
    e(valu('v_xor_b32', t0, t0, t1))
    e(valu('v_and_b32', t1, 15, V(0)))
    e(valu('v_lshl_add_u32', t0, t1, 2, t0))
    e(valu('v_lshlrev_b32', t0, 4, t0))
    e(valu('v_add_u32', P.vBr, 's54', t0))
    e(valu('v_xor_b32', P.vBr1, 64, P.vBr))
    e(valu('v_and_b32', t0, 3, V(0)))
    e(valu('v_bfe_u32', t1, V(0), 4, 1))
    e(valu('v_xor_b32', t0, t0, t1))
    e(valu('v_bfe_u32', t1, V(0), 2, 2))
    e(valu('v_lshl_add_u32', t0, t1, 2, t0))
    e(valu('v_lshrrev_b32', t1, 4, V(0)))
    e(valu('v_lshl_add_u32', t0, t1, 7, t0))
    e(valu('v_lshlrev_b32', t0, 4, t0))
    e(valu('v_and_b32', t1, 1, V(0)))
    e(valu('v_lshl_add_u32', t0, t1, 3, t0))
    e(valu('v_add_u32', P.vW0, WQ_BASE, t0))
    e(valu('v_xor_b32', P.vW1, 8, P.vW0))
    e(salu('s_mul_i32', 's54', S_W, 12288))
    e(salu('s_add_u32', 's54', 's54', H_BASE))
    e(valu('v_lshlrev_b32', t0, 4, V(0)))
    e(valu('v_bfe_u32', t1, V(0), 4, 1))
    e(valu('v_lshl_add_u32', t0, t1, 3, t0))
    e(valu('v_add_u32', P.vH0, 's54', t0))
    e(valu('v_xor_b32', P.vH1, 8, P.vH0))
    e(salu('s_mov_b32', 's61', CSCALE))


def wq_dma(k):
    h, j = divmod(k, 18)
    so = (j & 1) * 262144 + h * 256
    pol = OPT.get('wqpol', '')
    if OPT.get('rot') == 2 and h == 0:
        a66 = [salu('s_mov_b32', 's66', j * 262144)]
    else:
        a66 = [salu('s_lshl_b32', 's66', f's{40 + j // 2}', 12), salu('s_add_u32', 's66', 's66', so)]
    return [salu('s_add_u32', 'm0', 's56', WQ_BASE + WSLOT[k] * 8192)] + a66 + [dma(P.vWd, SRD_WQ, 's66', 0, tag=('W', k), pol=pol),
            salu('s_add_u32', 's67', 's66', 32768 - 1024), dma(P.vWd, SRD_WQ, 's67', 1024, tag=('W', k), pol=pol)]


def x_load(M, idx):
    qt, j = divmod(idx, 2)
    so = f's{40 + M % 9}'
    pre = []
    if M >= 11:
        pre.append(wait(lg=('xw', M - 2, idx)))
    if OPT.get('rot') == 2 and M < 9:
        pre.append(salu('s_mov_b32', 's64', M * 128 + qt * 18432))
        so = 's64'
    elif qt:
        pre.append(salu('s_add_u32', 's64', so, qt * 18432))
        so = 's64'
    return pre + [buf_load(V(P.x(M, qt, j), 4), P.vX1 if j else P.vX, SRD_X, so, 0, tag=('X', M, idx), pol=OPT.get('xpol', ''))]


def x_write(M, idx):
    qt, j = divmod(idx, 2)
    va, off = ((P.vBw, 0), (P.vBw, 2048), (P.vBw2, 1024))[qt]
    return [wait(vm=('X', M, idx)), ds_write('ds_write_b128', va, V(P.x(M, qt, j), 4), off + j * 512, tag=('xw', M, idx))]


def x_read_even(M, qt):
    return [ds_read('ds_read_b128', V(P.xf(0, qt), 4), P.vBr1, (1024, 3072, 3072)[qt], tag=('xf', 2 * M))]


def x_read_odd(M):
    return [ds_read('ds_read_b128', V(P.xf(1, qt), 4), P.vBr, (0, 2048, 1024)[qt], tag=('xf', 2 * M + 1)) for qt in range(3)]


def q_handoff_tile(qt, i, t, n):
    a = P.acc(qt, i, t)
    pk = P.PK + (n % 2) * 2
    ops = [valu('v_mul_f32', V(a + r), 's61', V(a + r)) for r in range(4)]
    ops.append(valu('v_cvt_pk_bf16_f32', V(pk), V(a), V(a + 1)))
    ops.append(valu('v_cvt_pk_bf16_f32', V(pk + 1), V(a + 2), V(a + 3)))
    ops.append(ds_write('ds_write_b64', P.vH0 if t == 0 else P.vH1, V(pk, 2), (qt * 4 + i) * 1024, tag='hw'))
    return ops


class G2:
    def __init__(self, name, cset, order, o, acc, F, PK, vT0, vT1, vS, slot_off, sstore):
        self.name, self.cset, self.order, self.o = name, cset, order, o
        self.ACC, self.F, self.PK, self.vT0, self.vT1, self.vS = acc, F, PK, vT0, vT1, vS
        self.slot_off = slot_off
        self.sstore = sstore
        self.fr = [(u, kb, nt) for u in range(36) for kb in range(4) for nt in range(2)]

    def acc(self, qt, nt): return self.ACC + (qt * 2 + nt) * 4

    def dma(self, u, vD):
        p, hi = divmod(u, 4)
        so = self.order[hi] * 128 * 1152 + self.cset * 576
        pol = OPT.get('wopol', '')
        return [salu('s_add_u32', 'm0', 's56', self.slot_off(u)[0]), salu('s_add_u32', 's66', f's{40 + p}', so),
                dma(vD, SRD_WO, 's66', 0, tag=('U', self.name, u), pol=pol),
                salu('s_add_u32', 's67', 's66', 18432 - 1024), dma(vD, SRD_WO, 's67', 1024, tag=('U', self.name, u), pol=pol)]

    def rd(self, n):
        if n >= len(self.fr):
            return []
        u, kb, nt = self.fr[n]
        buf = self.F + (n % 4) * 4
        va = self.vT0 if nt == 0 else self.vT1
        off = self.slot_off(u)[1] + kb * 2048
        return [ds_read('ds_read_b64_tr_b16', V(buf, 2), va, off, tag=('gf', n)),
                ds_read('ds_read_b64_tr_b16', V(buf + 2, 2), va, off + 1024, tag=('gf', n))]

    def start(self):
        return self.rd(0) + self.rd(1) + self.rd(2)

    def unit(self, u, atoms=(), otag=None):
        out = []
        q = list(atoms)
        if getattr(self, 'pend', None):
            q.insert(len(q) // 2, self.pend.pop(0))
        p, hi = divmod(u, 4)
        h = self.order[hi]
        for kb in range(4):
            for nt in range(2):
                n = u * 8 + kb * 2 + nt
                tags = [('gf', n)]
                if otag and nt == 0:
                    tags.append(otag(kb))
                out.append(wait(lg=tags))
                for qt in range(3):
                    d = self.acc(qt, nt)
                    out.append(mfma(d, self.F + (n % 4) * 4, self.o(h, qt, kb), None if (hi == 0 and kb == 0) else d))
                    if qt == 0:
                        out.extend(self.rd(n + 3))
                    elif q:
                        out.extend(q.pop(0))
        for x in q:
            out.extend(x)
        if hi == 3:
            sts = []
            for qt in range(3):
                pk = self.PKS[qt]
                for t2 in range(2):
                    a = self.acc(qt, t2)
                    out.append(valu('v_cvt_pk_bf16_f32', V(pk + 2 * t2), V(a), V(a + 1)))
                    out.append(valu('v_cvt_pk_bf16_f32', V(pk + 2 * t2 + 1), V(a + 2), V(a + 3)))
                st = [] if OPT.get('nopst') else [buf_store(V(pk, 4), self.vS, SRD_WS, self.sstore, qt * 1024, tag=('st', self.name, p), pol=OPT.get('ppol', 'sc1').replace('+', ' '))]
                if qt == 2:
                    st += [salu('s_add_u32', self.sstore, self.sstore, 3072), salu('s_sub_u32', 's55', self.sstore, 27648),
                           salu('s_cmp_ge_u32', self.sstore, 's75'), salu('s_cselect_b32', self.sstore, 's55', self.sstore)]
                sts.append(st)
            if p == 8 or OPT.get('stburst'):
                for st in sts:
                    out.extend(st)
            else:
                self.pend = sts
        return out


def g2_setup(e, cset, vT0, vT1, vS, base, t0, t1, sstore):
    e(valu('v_bfe_u32', t0, V(0), 1, 1))
    e(valu('v_bfe_u32', t1, V(0), 4, 1))
    e(valu('v_lshl_add_u32', t0, t1, 1, t0))
    e(valu('v_lshrrev_b32', t1, 2, V(0)))
    e(valu('v_lshl_add_u32', t0, t1, 2, t0))
    e(valu('v_lshlrev_b32', t0, 4, t0))
    e(valu('v_and_b32', t1, 1, V(0)))
    e(valu('v_lshl_add_u32', t0, t1, 3, t0))
    e(valu('v_add_u32', vT0, base, t0))
    e(valu('v_xor_b32', vT1, 32, vT0))
    e(valu('v_lshlrev_b32', vS, 4, V(0)))
    e(salu('s_mul_i32', sstore, S_ID, 221184))
    e(salu('s_mul_i32', 's54', S_W, 2 * 27648))
    e(salu('s_add_u32', sstore, sstore, 's54'))
    e(salu('s_add_u32', sstore, sstore, PART_WS_OFF + cset * 27648))
    e(salu('s_add_u32', 's75', sstore, 27648))
    e(salu('s_and_b32', 's54', 's34', 3 if OPT.get('prot', 1) else 0))
    e(salu('s_mul_i32', 's55', 's54', 2 * 3072))
    e(salu('s_add_u32', sstore, sstore, 's55'))
    if cset == 1:
        e(salu('s_lshl_b32', 's54', 's54', 7))
        for m in range(9):
            e(salu('s_sub_u32', 's55', 's54', 576))
            e(salu('s_cmp_ge_u32', 's54', 576))
            e(salu('s_cselect_b32', f's{40 + m}', 's55', 's54'))
            e(salu('s_add_u32', 's54', f's{40 + m}', 64))


def wo_vd(e, vD, t0, t1):
    e(valu('v_bfe_u32', t1, V(0), 4, 1))
    e(valu('v_lshlrev_b32', t1, 1, t1))
    e(valu('v_and_b32', t0, 3, V(0)))
    e(valu('v_xor_b32', t0, t0, t1))
    e(valu('v_lshlrev_b32', t0, 4, t0))
    e(valu('v_lshrrev_b32', t1, 2, V(0)))
    e(valu('v_mul_u32_u24', t1, 1152, t1))
    e(valu('v_add_u32', t0, t0, t1))
    e(salu('s_mul_i32', 's54', S_W, 32 * 1152))
    e(valu('v_add_u32', vD, 's54', t0))


A_RING = [PHYS[x] for x in (7, 1, 2, 3, 4, 5, 6, 0)]
P_PARK = {0: 208, 1: 160, 2: 112, 3: 64}
A_PARK = {3: 56, 2: A.Q, 0: 152, 1: 200}


def h_read(base, vaddr, tag):
    return [ds_read('ds_read_b128', V(base + (qt * 4 + i) * 4, 4), vaddr, (qt * 4 + i) * 1024, tag=(tag, i)) for i in range(4) for qt in range(3)]


def h_write(base, vaddr, tag):
    return [ds_write('ds_write_b128', vaddr, V(base + (qt * 4 + i) * 4, 4), (qt * 4 + i) * 1024, tag=tag) for i in range(4) for qt in range(3)]


def split_atoms(ops):
    at, cur = [], []
    for o in ops:
        cur.append(o)
        if o.kind in ('dma', 'vm'):
            at.append(cur); cur = []
    assert not cur
    return at


def p_wread(n):
    k, f = divmod(n, 8)
    i, t = f >> 1, f & 1
    buf = P.F + (n % 4) * 4
    va = P.vW0 if t == 0 else P.vW1
    off = WSLOT[k] * 8192 + i * 256
    return [ds_read('ds_read_b64_tr_b16', V(buf, 2), va, off, tag=('pf', n)),
            ds_read('ds_read_b64_tr_b16', V(buf + 2, 2), va, off + 1024, tag=('pf', n))]


def reduce_frag(ld, acc, vS, vO, s_src, s_dst, t0, t1, tagp):
    loads = []
    for hg in range(8):
        loads.append(salu('s_add_u32', 's64', s_src, hg * 221184))
        loads.append(buf_load(V(ld + 4 * hg, 4), vS, SRD_WS, 's64', 0, tag=(tagp, hg), pol='sc1'))
    comp = []
    for hg in range(8):
        comp.append(wait(vm=(tagp, hg)))
        for r in range(4):
            src = V(ld + 4 * hg + r)
            if hg == 0:
                comp.append(valu('v_lshlrev_b32', V(acc + 2 * r), 16, src))
                comp.append(valu('v_and_b32', V(acc + 2 * r + 1), 0xffff0000, src))
            else:
                comp.append(valu('v_lshlrev_b32', t0, 16, src))
                comp.append(valu('v_and_b32', t1, 0xffff0000, src))
                comp.append(valu('v_add_f32', V(acc + 2 * r), V(acc + 2 * r), t0))
                comp.append(valu('v_add_f32', V(acc + 2 * r + 1), V(acc + 2 * r + 1), t1))
    for r in range(4):
        comp.append(valu('v_cvt_pk_bf16_f32', V(ld + r), V(acc + 2 * r), V(acc + 2 * r + 1)))
    comp.append(buf_store(V(ld, 2), vO, SRD_OUT, s_dst, 0))
    comp.append(buf_store(V(ld + 2, 2), vO, SRD_OUT, s_dst, 32))
    return loads, comp


SRD_OUT, SRD_DBG = 's[8:11]', 's[12:15]'


def red_setup(e, vO, t0):
    e(salu('s_mov_b32', 's8', 's4')); e(salu('s_mov_b32', 's9', 's5'))
    e(salu('s_mov_b32', 's10', 16 * 192 * 1152 * 2)); e(salu('s_mov_b32', 's11', 0x20000))
    e(salu('s_mov_b32', 's12', 's72')); e(salu('s_mov_b32', 's13', 's73'))
    e(salu('s_mov_b32', 's14', 256)); e(salu('s_mov_b32', 's15', 0x20000))
    e(salu('s_and_b32', 's54', 's35', 3))
    e(salu('s_lshr_b32', 's55', 's35', 2))
    e(salu('s_mul_i32', 's68', 's34', 8 * 221184))
    e(salu('s_mul_i32', 's64', 's54', 2 * 27648))
    e(salu('s_add_u32', 's68', 's68', 's64'))
    e(salu('s_mul_i32', 's64', 's55', 27648))
    e(salu('s_add_u32', 's68', 's68', 's64'))
    if PART_WS_OFF: e(salu('s_add_u32', 's68', 's68', PART_WS_OFF))
    e(salu('s_mul_i32', 's69', 's37', 192 * 2304))
    e(salu('s_mul_i32', 's64', 's54', 48 * 2304))
    e(salu('s_add_u32', 's69', 's69', 's64'))
    e(salu('s_mul_i32', 's64', 's36', 1152))
    e(salu('s_add_u32', 's69', 's69', 's64'))
    e(salu('s_mul_i32', 's64', 's55', 576))
    e(salu('s_add_u32', 's69', 's69', 's64'))
    e(salu('s_lshl_b32', 's70', 's34', 2))
    e(valu('v_and_b32', vO, 15, V(0)))
    e(valu('v_mul_u32_u24', vO, 2304, vO))
    e(valu('v_lshrrev_b32', t0, 4, V(0)))
    e(valu('v_lshl_add_u32', vO, t0, 3, vO))


def signal(lab, t0, t1):
    return [salu('s_cmp_eq_u32', S_WAVE, 4), raw(f's_cbranch_scc0 {lab}', 'branch'),
            salu('s_lshl_b32', 's64', 's35', 2), salu('s_lshl_b32', 's64', 1, 's64'),
            valu('v_mov_b32', t0, 's64'), valu('v_mov_b32', t1, 0), raw('s_mov_b64 exec, 1'),
            Ins(f'buffer_atomic_add {t0}, {t1}, {SRD_DBG}, s70 offen sc1', 'salu', rd=[t0.n, t1.n]),
            raw('s_mov_b64 exec, -1'), label(lab)]


def poll(lab, level, t0, t1):
    c = [valu('v_mov_b32', t1, 0), salu('s_mov_b32', 's65', 0), label(lab),
         raw(f'buffer_load_dword {t0}, {t1}, {SRD_DBG}, s70 offen sc1'), raw('s_waitcnt vmcnt(0)'),
         valu('v_readfirstlane_b32', 's64', t0)]
    if level == 1:
        c += [nop(2), salu('s_lshr_b32', 's66', 's64', 1), salu('s_or_b32', 's64', 's64', 's66'), salu('s_and_b32', 's64', 's64', 0x11111111),
              salu('s_cmp_eq_u32', 's64', 0x11111111)]
    else:
        c += [nop(2), salu('s_cmp_eq_u32', 's64', 0x22222222)]
    c += [raw(f's_cbranch_scc1 {lab}_ok', 'branch'), salu('s_add_u32', 's65', 's65', 1), raw('s_sleep 2'),
          salu('s_cmp_lt_u32', 's65', 1 << 22), raw(f's_cbranch_scc1 {lab}', 'branch'), label(f'{lab}_ok')]
    return c


def frag_offsets(sidx):
    return [salu('s_lshl_b32', 's66', sidx, 10), salu('s_add_u32', 's66', 's66', 's68'),
            salu('s_mul_i32', 's64', sidx, 43), salu('s_lshr_b32', 's64', 's64', 7),
            salu('s_mul_i32', 's65', 's64', 3), salu('s_sub_u32', 's65', sidx, 's65'),
            salu('s_mul_i32', 's65', 's65', 16 * 2304), salu('s_lshl_b32', 's64', 's64', 6),
            salu('s_add_u32', 's67', 's69', 's65'), salu('s_add_u32', 's67', 's67', 's64')]


def build_k1():
    INK = OPT.get('inred', 1)
    head = []
    e = head.append
    common_prologue(e)
    head += q0_phase()
    e(salu('s_cmp_ge_u32', S_WAVE, 4))
    e(raw('s_cbranch_scc0 L_A', 'branch'))
    e(raw('s_branch L_P', 'branch'))

    names = [('IT', t) for t in range(-1, 64)]
    quota = {n: 0 for n in names}
    T0 = 0
    QE, QN, QC = OPT.get('qe', 9), OPT.get('qn', 9), OPT.get('qc', 9)
    def fill(ts, total, fixed):
        rest = [t for t in ts if t not in fixed]
        rem = total - sum(fixed.values())
        for i, t in enumerate(rest):
            quota[('IT', t)] = (rem * (i + 1)) // len(rest) - (rem * i) // len(rest)
        for t, v in fixed.items():
            quota[('IT', t)] = v
    fill(range(0, 14), 150, {0: 8})
    fill(range(14, 30), 144, {15: QN, 16: QE, 28: QC, 29: QC})
    fill(range(30, 46), 138, {31: QN, 32: QE, 44: QC, 45: 0})
    start = {}
    c = 144
    for n in names:
        start[n] = c; c += quota[n]
    assert c == 576
    iv_of = {}
    for idx, n in enumerate(names):
        for fr in range(start[n], start[n] + quota[n]):
            iv_of[fr] = idx
    hdead = {1: ('IT', 13), 2: ('IT', 29), 3: ('IT', 45)}

    NG = 576 * 3
    gaps = [[] for _ in range(NG + 1)]

    ZF = OPT.get('zone', 62)
    pref = [False] * (NG + 64)
    for n in names:
        if n[0] == 'IT':
            for g in range(start[n] * 3, start[n] * 3 + (quota[n] * 3 * ZF) // 100):
                pref[g] = True
        else:
            for g in range(start[n] * 3, (start[n] + quota[n]) * 3):
                pref[g] = True

    def chain(atoms, lo, hi, zone=True):
        n = len(atoms)
        Z = [g for g in range(lo, hi + 1) if pref[g]] if zone else []
        if len(Z) * 2 < n or not Z:
            Z = list(range(lo, hi + 1))
        for a, at in enumerate(atoms):
            g = Z[(a * (len(Z) - 1)) // max(n - 1, 1)]
            gaps[min(g, NG)].append(at)
    for k in range(18, 72):
        M = k // 2
        g0 = k * 24
        at = []
        if k % 2 == 0:
            at.append(x_read_odd(M))
            lw = [x_write(M + 1, i) for i in range(3)] if M + 1 < 36 else []
            ll = [x_load(M + 2, i) for i in range(3, 6)] if M + 2 < 36 else []
            while lw or ll:
                if ll: at.append(ll.pop(0))
                if lw: at.append(lw.pop(0))
        elif M + 1 < 36:
            ll = [x_load(M + 3, i) for i in range(3)] if M + 3 < 36 else [[], [], []]
            at += [x_write(M + 1, 3), x_read_even(M + 1, 0) + x_read_even(M + 1, 1), ll[0], x_write(M + 1, 4), ll[1], x_write(M + 1, 5),
                   x_read_even(M + 1, 2), ll[2]]
        chain(at, g0 + 1, g0 + 21)
        if k % 18 == 17:
            cv = []
            nn = 0
            for f in range(8):
                for qt in range(3):
                    o = q_handoff_tile(qt, f >> 1, f & 1, nn); nn += 1
                    cv += [o[:4], o[4:]]
            chain(cv, g0 + 6, g0 + 39, zone=False)
        if k in (52, 70):
            hr = [valu('v_and_b32', P.T0, ~15, P.vH0)] + h_read(P_PARK[0 if k == 52 else 1], P.T0, ('po', k))
            chain([hr[:4], hr[4:7], hr[7:10], hr[10:]], g0 + 8, g0 + 20)

    pslot = {}
    free = list(range(6))
    for u in range(36):
        if u == 13: free += [6, 7]
        pslot[u] = None
    seq = list(range(6))
    gA = G2('A', 0, [3, 2, 0, 1], lambda h, qt, i: A_PARK[h] + (qt * 4 + i) * 4, acc=8, F=32, PK=0, vT0=V(2), vT1=V(3), vS=V(4),
            slot_off=lambda u: (A_RING[u % 8] * 8192, A_RING[u % 8] * 8192), sstore='s74')
    gP = G2('P', 1, [0, 1, 2, 3], lambda h, qt, i: P_PARK[h] + (qt * 4 + i) * 4, acc=32, F=16, PK=0, vT0=V(6), vT1=V(7), vS=V(5),
            slot_off=lambda u: (WQ_BASE + pslot[u] * 8192, pslot[u] * 8192), sstore='s74')
    gA.PKS = [48, 52, 248]
    gP.PKS = [56, 60, 12]
    p_issue = {}
    fl = list(range(6))
    nxt = 0
    for u in range(5):
        pslot[u] = fl.pop(0); nxt += 1
    for sv in range(36):
        if sv >= 1:
            fl.append(pslot[sv - 1])
        if sv == 7:
            fl += [6, 7]
        lst = []
        while fl and nxt < 36 and len(lst) < 2:
            pslot[nxt] = fl.pop(0); lst.append(nxt); nxt += 1
        p_issue[sv] = lst

    w_issue = {}
    fl = [3]
    wn = 18
    for idx in range(len(names)):
        if idx == 1: fl += [0, 1, 2]
        for k in range(18, wn):
            if iv_of[k * 8 + 7] == idx - 1:
                fl.append(WSLOT[k])
        lst = []
        while wn < 72 and fl:
            WSLOT[wn] = fl.pop(0); lst.append(wn); wn += 1
        w_issue[idx] = lst

    pc = [label('L_P')]
    if OPT.get('prioP'): pc.append(salu('s_setprio', OPT['prioP']))
    pc.append(salu('s_mul_i32', 's54', S_W, 6144))
    pc.append(salu('s_add_u32', 's54', 's54', QT_BASE))
    pc.append(valu('v_lshlrev_b32', P.T0, 4, V(0)))
    pc.append(valu('v_add_u32', P.T0, 's54', P.T0))
    for i in range(2):
        for qt in range(3):
            pc.append(ds_write('ds_write_b128', P.T0, V(A.q(qt, i), 4), (qt * 2 + i) * 1024, tag='qt'))
    pc.append(wait(vm=[('K0', 0)], lg='qt'))
    pc.append(barrier())
    p_setup(pc.append)
    for i in range(6): pc.extend(x_load(9, i))
    for i in range(6): pc.extend(x_load(10, i))
    p_setup2(pc.append)
    vHl = V(8)
    published = set()
    pc.append(salu('s_mul_i32', 's75', 's37', 36864))
    pc.append(salu('s_mul_i32', 's55', S_W, 9216))
    pc.append(salu('s_add_u32', 's75', 's75', 's55'))
    pc.append(salu('s_sub_u32', 's75', 's75', 9 * 128))
    pc.append(valu('v_lshlrev_b32', V(203), 7, V(0)))
    pc.append(valu('v_mov_b32', V(204), 0x7fffff00))
    pc.append(valu('v_cmp_gt_u32', 'vcc', 9, V(0)))
    pc.append(valu('v_cndmask_b32', V(203), V(204), V(203), 'vcc'))
    vD = V(4)
    rd_next = 144
    for idx, n in enumerate(names):
        side = []
        need = []
        post = []
        lg = None
        t = n[1] if n[0] == 'IT' else None
        f0, q = start[n], quota[n]
        for k in w_issue[idx]:
            side += split_atoms(wq_dma(k))
        newpub = set()
        if idx + 1 < len(names):
            n2 = names[idx + 1]
            newpub = {fr // 8 for fr in range(start[n2], start[n2] + quota[n2])}
            need += [('W', k) for k in sorted(newpub)]
        if n in hdead.values():
            lg = 'hw'
        if n[0] == 'IT':
            if 0 <= t and t + 4 <= 63:
                side += split_atoms(k_dma(P.vKd, t + 4))
            if 1 <= t and t + 3 <= 63:
                side += split_atoms(v_dma(P.vVd, t + 3))
            if 4 <= t + 1 <= 63:
                need.append(('V', t + 1))
            if 4 <= t + 3 <= 63:
                need.append(('K', t + 3))
            if OPT.get('wot', 'p') == 'p' and t in range(3, 35, 4):
                side.append([salu('s_add_u32', 's75', 's75', 9 * 128), buf_load(V(204), V(203), SRD_WO, 's75', 0)])
            if t == -1:
                need += [('V0', 0), ('K0', 2), ('V0', 2)]
            if t == T0 - 1:
                for i in range(4): post.extend(x_write(9, i))
                post.extend(x_read_even(9, 0) + x_read_even(9, 1) + x_write(9, 4) + x_write(9, 5) + x_read_even(9, 2))
                for i in range(3): post.extend(x_load(11, i))
            if t == 45:
                for at in gaps[NG]: post.extend(at)
            if t + 1 == 62:
                need.append(('V', 63))
            if t == 47:
                wo_vd(post.append, vD, P.T0, V(12))
                g2_setup(post.append, 1, gP.vT0, gP.vT1, gP.vS, WQ_BASE, P.T0, V(12), 's74')
                post.append(valu('v_and_b32', vHl, ~15, P.vH0))
            if t == 50:
                post += h_read(P_PARK[2], vHl, ('po', t)); lg = 'all'
            if 54 <= t <= 58:
                post += gP.dma(t - 54, vD)
            if t == 59:
                need += [('U', 'P', 0), ('U', 'P', 1)]
            if t == 60:
                post += gA.dma(0, vD)
            if t in (61, 62, 63):
                v = t - 61
                if t == 61:
                    post += gP.start()
                at = []
                for u in p_issue[v]:
                    at += split_atoms(gP.dma(u, vD))
                at += split_atoms(gA.dma(2 * v + 1, vD)) + split_atoms(gA.dma(2 * v + 2, vD))
                post += gP.unit(v, at)
                need.append(('U', 'P', v + 2))
                if t == 63:
                    need += [('U', 'A', 0), ('U', 'A', 1)]
        boost = OPT.get('boost') and n[0] == 'IT' and t in (15, 16, 31, 32)
        if boost: pc.append(salu('s_setprio', 2))
        if q:
            while rd_next < min(f0 + 3, 576) and rd_next // 8 in published:
                pc.extend(p_wread(rd_next)); rd_next += 1
            if side:
                pc.extend(side.pop(0))
            ng = max(1, (q * 3 * ZF) // 100)
            tgt = {}
            for a, at in enumerate(side):
                tgt.setdefault((a * ng) // len(side), []).append(at)
            for fr in range(f0, f0 + q):
                k, f = divmod(fr, 8)
                i, tt = f >> 1, f & 1
                pc.append(wait(lg=[('pf', fr)] + ([('xf', k)] if f == 0 else [])))
                for qt in range(3):
                    d = P.acc(qt, i, tt)
                    pc.append(mfma(d, P.F + (fr % 4) * 4, P.xf(k, qt), d if k % 18 else None))
                    if qt == 0 and rd_next == fr + 3 and rd_next < 576 and rd_next // 8 in published:
                        pc.extend(p_wread(rd_next)); rd_next += 1
                    for at in gaps[fr * 3 + qt]:
                        pc.extend(at)
                    for at in tgt.get((fr - f0) * 3 + qt, []):
                        pc.extend(at)
        else:
            for at in side:
                pc.extend(at)
        pc.extend(post)
        if boost: pc.append(salu('s_setprio', 0))
        pc.append(wait(vm=need, lg=lg))
        pc.append(barrier())
        published |= newpub
        if OPT.get('novm') and n == ('IT', 0): novm0 = len(pc)
        if OPT.get('novm') and n == ('IT', 52):
            for x in pc[novm0:]:
                if x.kind in ('dma', 'vm'):
                    kk = 'kv' if x.tag and x.tag[0] in 'KV' else ('w' if x.tag and x.tag[0] == 'W' else 'x')
                    if OPT['novm'] == 'all' or kk in OPT['novm'].split('+'):
                        x.text = 's_nop 0'
        st = {('IT', -1): 3, ('IT', 0): 4, ('IT', 16): 5, ('IT', 32): 6, ('IT', 48): 7, ('IT', 63): 8}
        if OPT.get('stpro'):
            st = {('PRO', k): i + 1 for i, k in enumerate([0, 1, 3, 5, 7, 9, 11, 13, 15, 17])}; st[('HND', 0)] = 11
        if OPT.get('stit') is not None:
            st = {('IT', OPT['stit'] + i): i + 1 for i in range(11)}
        if 'stg' in OPT: st = {}
        if n in st:
            pc.extend(stamp(st[n]))
    nost = OPT.get('stpro') or 'stit' in OPT or 'stg' in OPT
    for g in range(33):
        v = g + 3
        at = []
        need = []
        for u in p_issue[v]:
            at += split_atoms(gP.dma(u, vD))
        if g + 7 < 36:
            at += split_atoms(gA.dma(g + 7, vD))
        if v + 2 < 36:
            need.append(('U', 'P', v + 2))
        need.append(('U', 'A', g + 2 if g < 32 else 35))
        lg = None
        otag = None
        if g == 0:
            pc += h_read(P_PARK[3], vHl, 'po3')
            otag = lambda kb: ('po3', kb)
            hw = h_write(P_PARK[0], vHl, 'hw0'); at = [[x] for x in hw] + at; lg = 'hw0'
        if g == 2:
            hw = h_write(P_PARK[1], vHl, 'hw1'); at = [[x] for x in hw] + at; lg = 'hw1'
        if g == 5 and INK:
            rs = []; red_setup(rs.append, V(9), V(1)); at = [rs[i:i + 4] for i in range(0, len(rs), 4)] + at
        if g == 30 and INK:
            need.append(('st', 'P', 6))
        if g == 31 and INK:
            pc += signal('L_sig1', V(1), V(2))
        pc += gP.unit(v, at, otag)
        pc.append(wait(vm=need, lg=lg))
        pc.append(barrier())
        if 'stg' in OPT and 0 <= g - OPT['stg'] < 11: pc.extend(stamp(g - OPT['stg'] + 1))
    if not nost: pc.extend(stamp(9))
    if INK:
        pc += poll('L_poll1', 1, V(1), V(2))
        NF = 6
        lc = []
        for r in range(NF):
            pre = [salu('s_add_u32', 's71', S_W, 4 * r), salu('s_min_u32', 's71', 's71', 20)] + frag_offsets('s71') + \
                  [salu('s_mov_b32', f's{40 + r}', 's67')]
            ld, cp = reduce_frag(64 + 32 * r, 16, gP.vS, V(9), 's66', f's{40 + r}', V(1), V(2), ('r1', r))
            lc.append((pre + ld, cp))
        for r in range(NF):
            pc += lc[r][0]
        for r in range(NF):
            pc += lc[r][1]
        pc.append(wait(vm=('st', 'P', 8)))
        pc.append(barrier())
        if not nost: pc.extend(stamp(10))
        pc += signal('L_sig2', V(1), V(2))
        pc += [salu('s_cmp_ge_u32', S_W, 2), raw('s_cbranch_scc1 L_P_end', 'branch')]
        pc += poll('L_poll2p', 2, V(1), V(2))
        pc += [salu('s_add_u32', 's71', S_W, 25)] + frag_offsets('s71')
        ld, cp = reduce_frag(64, 16, gP.vS, V(9), 's66', 's67', V(1), V(2), 'r2')
        pc += ld + cp
        pc.append(label('L_P_end'))
    if not nost: pc.extend(stamp(11))
    pc.extend(stamp_out())
    pc.append(raw('s_endpgm', 'branch'))
    resolve_waits(head + pc)
    while hazards(head + pc):
        pass

    def osink(h):
        def sink(qt, i, buf):
            return [ds_write('ds_write_b128', A.vH, buf, (qt * 4 + i) * 1024, tag='ow')]
        return sink
    ag = AGen(osink)
    apro = [label('L_A')]
    e = apro.append
    if OPT.get('prioA', 1): e(salu('s_setprio', OPT.get('prioA', 1)))

    a_setup(e)
    e(salu('s_mov_b32', 's71', 0))
    e(salu('s_mul_i32', 's54', S_W, 6144))
    e(salu('s_add_u32', 's54', 's54', QT_BASE))
    e(valu('v_add_u32', A.T0, 's54', A.vO))
    e(wait(vm=[('K0', 0)]))
    e(barrier())
    for n in range(4):
        apro.extend(ag.read(n))
    for i in range(2):
        for qt in range(3):
            e(ds_read('ds_read_b128', V(A.q(qt, 2 + i), 4), A.T0, (qt * 2 + i) * 1024, tag='qt'))
    e(wait(lg='qt'))
    apro.extend(ag.iteration(-1)); e(wait(vm='all')); e(barrier()); apro.extend(stamp(3))
    apro.extend(ag.iteration(0)); e(barrier()); apro.extend(stamp(4))
    bodies = []
    for h in range(4):
        b = []
        for j in range(1, 14):
            b.extend(ag.iteration(16 * h + j))
            if j == 5: b.extend(stamp(6))
            b.append(barrier())
            if j == 4: b.extend(stamp(5))
            if j == 5: b.extend(stamp(7))
        b.append(salu('s_cmp_eq_u32', 's71', 3))
        b.append(raw('s_cbranch_scc1 L_A_tail', 'branch'))
        if h < 3:
            b.extend(ag.iteration(16 * h + 14)); b.append(barrier())
            b.extend(ag.iteration(16 * h + 15)); b.append(barrier())
            b.extend(ag.iteration(16 * h + 16))
            b.append(salu('s_add_u32', 's71', 's71', 1))
            b.append(barrier())
            b.append(raw('s_branch L_A_loop', 'branch'))
        bodies.append(b)
    tail = [label('L_A_tail')]
    tail.extend(ag.iteration(62)); tail.append(barrier())
    tail.extend(ag.iteration(63))
    tail.extend(epilogue_ops(osink(3), dst=lambda qt, i: A_PARK[3] + (qt * 4 + i) * 4))
    g2_setup(tail.append, 0, gA.vT0, gA.vT1, gA.vS, 0, A.T0, A.T1, 's74')
    tail.append(wait(lg='all'))
    tail.append(barrier())
    tail.extend(stamp(8))
    if OPT.get('prio2') is not None: tail.append(salu('s_setprio', OPT['prio2']))
    tail += gA.start()
    for g in range(36):
        at = []
        otag = None
        lg = None
        vmn = None
        if g == 1:
            at = [[x] for x in h_read(A_PARK[0], A.vH, 'ao0')]; lg = ('ao0', 3)
        if g == 3:
            tail += h_read(A_PARK[1], A.vH, 'ao1')
            otag = lambda kb: ('ao1', kb)
        if g == 5 and INK:
            rs = []; red_setup(rs.append, V(6), V(1)); at = [rs[i:i + 4] for i in range(0, len(rs), 4)]
        if g == 30 and INK:
            vmn = ('st', 'A', 6)
        tail += gA.unit(g, at, otag)
        if g <= 32:
            tail.append(wait(lg=lg, vm=vmn))
            tail.append(barrier())
    tail.extend(stamp(9))
    if INK:
        tail.append(wait(vm='all'))
        tail.append(barrier())
        tail.extend(stamp(10))
        tail += poll('L_poll2a', 2, V(1), V(7))
        tail += [salu('s_add_u32', 's71', S_W, 21)] + frag_offsets('s71')
        ld, cp = reduce_frag(64, 16, gA.vS, V(6), 's66', 's67', V(1), V(7), 'r2')
        tail += ld + cp
    tail.extend(stamp(11))
    tail.extend(stamp_out())
    tail.append(raw('s_endpgm', 'branch'))
    resolve_waits(head + apro + bodies[0] + bodies[1] + bodies[2] + bodies[3] + tail)
    body = fold(bodies)
    npre = len(bodies[3])
    while hazards(head + apro + body + body + body[:npre] + tail):
        pass
    rare = []
    for site, lab in rare_sites:
        rare += [label(f'TR_{site}'), raw(f's_call_b64 s[62:63], {lab}', 'branch'), raw(f's_branch RET_{site}', 'branch')]
    for var, lab in rare_variants.items():
        rc = rare_code(var, lab)
        while hazards(rc):
            pass
        rare += rc
    nb = lambda q: sum(1 for i in q if i.kind == 'barrier')
    na = nb(apro) + 3 * nb(body) + nb(body[:npre]) + nb(tail)
    assert na == nb(pc), (na, nb(pc))
    print(stats(apro, 'A pro'), file=sys.stderr); print(stats(body, 'A body'), file=sys.stderr)
    print(stats(tail, 'A tail'), file=sys.stderr); print(stats(pc, 'P'), file=sys.stderr); print(stats(rare, 'rare'), file=sys.stderr)
    lines = render(head) + render(apro) + ['.p2align 6', 'L_A_loop:'] + render(body) + render(rare) + render(tail) + ['.p2align 6'] + render(pc)
    return lines

def build_k3():
    c = []
    e = c.append
    e(raw('s_cmp_ge_u32 s2, 1728')); e(raw('s_cbranch_scc0 L3_go')); e(raw('s_endpgm')); e(label('L3_go'))
    e(raw('s_load_dwordx2 s[4:5], s[0:1], 80'))
    e(raw('s_load_dwordx2 s[6:7], s[0:1], 96'))
    e(valu('v_lshrrev_b32', V(1), 6, V(0)))
    e(valu('v_readfirstlane_b32', 's16', V(1)))
    e(valu('v_and_b32', V(0), 63, V(0)))
    if OPT.get('k3x', 1):
        e(salu('s_and_b32', 's17', 's2', 7))
        e(salu('s_mul_i32', 's17', 's17', 216))
        e(salu('s_lshr_b32', 's18', 's2', 3))
        e(salu('s_add_u32', 's17', 's17', 's18'))
        e(salu('s_lshl_b32', 's17', 's17', 2))
    else:
        e(salu('s_lshl_b32', 's17', 's2', 2))
    e(salu('s_add_u32', 's17', 's17', 's16'))
    e(salu('s_mul_hi_u32', 's18', 's17', (2 ** 32 + 215) // 216))
    e(salu('s_mul_i32', 's19', 's18', 216))
    e(salu('s_sub_u32', 's19', 's17', 's19'))
    e(salu('s_mul_hi_u32', 's20', 's19', (2 ** 32 + 26) // 27))
    e(salu('s_mul_i32', 's21', 's20', 27))
    e(salu('s_sub_u32', 's21', 's19', 's21'))
    e(salu('s_mul_hi_u32', 's22', 's21', (2 ** 32 + 2) // 3))
    e(salu('s_mul_i32', 's23', 's22', 3))
    e(salu('s_sub_u32', 's23', 's21', 's23'))
    e(raw('s_waitcnt lgkmcnt(0)'))
    e(salu('s_mov_b32', 's8', 's6')); e(salu('s_mov_b32', 's9', 's7'))
    e(salu('s_mov_b32', 's10', PART_WS_OFF + 256 * 221184)); e(salu('s_mov_b32', 's11', 0x20000))
    e(salu('s_mov_b32', 's12', 's4')); e(salu('s_mov_b32', 's13', 's5'))
    e(salu('s_mov_b32', 's14', 16 * 192 * 1152 * 2)); e(salu('s_mov_b32', 's15', 0x20000))
    e(salu('s_mul_i32', 's24', 's18', 8 * 221184))
    e(salu('s_lshl_b32', 's25', 's19', 10))
    e(salu('s_add_u32', 's24', 's24', 's25'))
    e(salu('s_add_u32', 's24', 's24', PART_WS_OFF))
    e(valu('v_lshlrev_b32', V(1), 4, V(0)))
    for hg in range(8):
        e(buf_load(V(8 + 4 * hg, 4), V(1), 's[8:11]', 's24', 0, tag=('p', hg), pol=OPT.get('rpol', '').replace('+', ' ')))
        e(salu('s_add_u32', 's24', 's24', 221184))
    e(salu('s_and_b32', 's26', 's18', 15))
    e(salu('s_mul_i32', 's26', 's26', 192))
    e(salu('s_lshr_b32', 's27', 's20', 1))
    e(salu('s_mul_i32', 's27', 's27', 48))
    e(salu('s_add_u32', 's26', 's26', 's27'))
    e(salu('s_lshl_b32', 's27', 's23', 4))
    e(salu('s_add_u32', 's26', 's26', 's27'))
    e(salu('s_mul_i32', 's26', 's26', 2304))
    e(salu('s_lshr_b32', 's27', 's18', 4))
    e(salu('s_mul_i32', 's27', 's27', 1152))
    e(salu('s_add_u32', 's26', 's26', 's27'))
    e(salu('s_and_b32', 's27', 's20', 1))
    e(salu('s_mul_i32', 's27', 's27', 576))
    e(salu('s_add_u32', 's26', 's26', 's27'))
    e(salu('s_lshl_b32', 's27', 's22', 6))
    e(salu('s_add_u32', 's26', 's26', 's27'))
    e(valu('v_and_b32', V(2), 15, V(0)))
    e(valu('v_mul_u32_u24', V(2), 2304, V(2)))
    e(valu('v_lshrrev_b32', V(3), 4, V(0)))
    e(valu('v_lshl_add_u32', V(2), V(3), 3, V(2)))
    ACC = 40
    for hg in range(8):
        e(wait(vm=('p', hg)))
        for r in range(4):
            src = V(8 + 4 * hg + r)
            if hg == 0:
                e(valu('v_lshlrev_b32', V(ACC + 2 * r), 16, src))
                e(valu('v_and_b32', V(ACC + 2 * r + 1), 0xffff0000, src))
            else:
                e(valu('v_lshlrev_b32', V(4), 16, src))
                e(valu('v_and_b32', V(5), 0xffff0000, src))
                e(valu('v_add_f32', V(ACC + 2 * r), V(ACC + 2 * r), V(4)))
                e(valu('v_add_f32', V(ACC + 2 * r + 1), V(ACC + 2 * r + 1), V(5)))
    for r in range(4):
        e(valu('v_cvt_pk_bf16_f32', V(8 + r), V(ACC + 2 * r), V(ACC + 2 * r + 1)))
    e(buf_store(V(8, 2), V(2), 's[12:15]', 's26', 0))
    e(buf_store(V(10, 2), V(2), 's[12:15]', 's26', 32))
    e(raw('s_endpgm', 'branch'))
    resolve_waits(c)
    while hazards(c):
        pass
    return render(c)


def kd(name, vgpr, sgpr=102):
    return ['.p2align 6', f'.amdhsa_kernel {name}', f'  .amdhsa_next_free_vgpr {vgpr}', f'  .amdhsa_next_free_sgpr {sgpr}',
            f'  .amdhsa_accum_offset {(vgpr + 3) // 4 * 4}', '  .amdhsa_group_segment_fixed_size 0', '  .amdhsa_kernarg_size 104',
            '  .amdhsa_user_sgpr_count 2', '  .amdhsa_user_sgpr_kernarg_segment_ptr 1', '  .amdhsa_system_sgpr_workgroup_id_x 1',
            '.end_amdhsa_kernel']


def kern(name, lines):
    return [f'.globl {name}', '.p2align 8', f'.type {name},@function', f'{name}:'] + lines


if __name__ == '__main__':
    which = sys.argv[2] if len(sys.argv) > 2 else '123'
    STAMPS = 's' in which
    for kv in sys.argv[3:]:
        k, v = kv.split('='); OPT[k] = int(v) if v.lstrip('-').isdigit() else v
    out = []
    single = '3' not in which
    k1 = NAME + '_kernel' if single else 'k1_kernel'
    if single:
        out.append(f'; @launch grid=(256,1,1) block=(512,1,1) lds={LDS_BYTES}')
    else:
        OPT['inred'] = 0
        out.append(f'; @launch kernel=k1_kernel grid=(256,1,1) block=(512,1,1) lds={LDS_BYTES}')
        out.append(f'; @launch kernel=k3_kernel grid=(1728,1,1) block=(256,1,1) lds=0')
    out += ['.amdgcn_target "amdgcn-amd-amdhsa--gfx950"', '.text']
    out += kern(k1, build_k1())
    if not single: out += kern('k3_kernel', build_k3())
    out += ['.section .rodata,"a"'] + kd(k1, 256) + ([] if single else kd('k3_kernel', 48, 32))
    open(sys.argv[1], 'w').write('\n'.join(out) + '\n')
```

```python
class V:
    __slots__ = ('n', 'c')

    def __init__(self, n, c=1):
        assert 0 <= n and n + c <= 256, (n, c)
        if c > 1:
            assert n % 2 == 0, ('unaligned tuple', n, c)
        self.n = n
        self.c = c

    def __str__(self):
        return f'v{self.n}' if self.c == 1 else f'v[{self.n}:{self.n + self.c - 1}]'

    def regs(self):
        return range(self.n, self.n + self.c)


class Neg:
    def __init__(self, v):
        self.v = v

    def __str__(self):
        return f'-{self.v}'

    def regs(self):
        return self.v.regs()


TRANS = ('v_exp_f32', 'v_rcp_f32', 'v_log_f32', 'v_rsq_f32', 'v_sqrt_f32')


class Ins:
    __slots__ = ('text', 'kind', 'rd', 'wr', 'srd', 'swr', 'tag', 'wvm', 'wlg', 'nvm', 'nlg', 'nop', 'c', 'cost',
                 'stdata', 'cmt')

    def __init__(self, text, kind, rd=(), wr=(), srd=(), swr=(), tag=None):
        self.text = text
        self.kind = kind
        self.rd = tuple(rd)
        self.wr = tuple(wr)
        self.srd = tuple(srd)
        self.swr = tuple(swr)
        self.tag = tag
        self.wvm = None
        self.wlg = None
        self.nvm = None
        self.nlg = None
        self.nop = 0
        self.c = None
        self.cost = 4
        self.stdata = ()
        self.cmt = None


def _vr(ops):
    r = []
    for o in ops:
        if isinstance(o, (V, Neg)):
            r.extend(o.regs())
    return r


def _sr(ops):
    r = []
    for o in ops:
        if isinstance(o, str):
            if o == 'vcc' or o == 'm0' or o == 'exec':
                r.append(o)
            elif o.startswith('s[') and o.endswith(']'):
                a, b = o[2:-1].split(':')
                r.extend(f's{i}' for i in range(int(a), int(b) + 1))
            elif o.startswith('s') and o[1:].isdigit():
                r.append(o)
    return r


def fmt(o):
    if isinstance(o, float):
        import struct
        inl = {0.5: '0.5', -0.5: '-0.5', 1.0: '1.0', -1.0: '-1.0', 2.0: '2.0', -2.0: '-2.0', 4.0: '4.0', -4.0: '-4.0', 0.0: '0'}
        if o in inl:
            return inl[o]
        return hex(struct.unpack('<I', struct.pack('<f', o))[0])
    if isinstance(o, int):
        return str(o) if -16 <= o <= 64 else hex(o & 0xffffffff)
    return str(o)


def mfma(d, a, b, c):
    D, A, B = V(d, 4), V(a, 4), V(b, 4)
    cs = '0' if c is None else str(V(c, 4))
    i = Ins(f'v_mfma_f32_16x16x32_bf16 {D}, {A}, {B}, {cs}', 'mfma', rd=list(A.regs()) + list(B.regs()), wr=D.regs())
    i.c = c
    i.cost = 8
    return i


def valu(op, dst, *src, mods=''):
    ops = [dst] + list(src)
    text = f'{op} ' + ', '.join(fmt(o) for o in ops) + (' ' + mods if mods else '')
    kind = 'trans' if op in TRANS else 'valu'
    rd = _vr(src)
    if op.startswith('v_fmac') or op.startswith('v_permlane'):
        rd = rd + _vr([dst])
    wr = _vr([dst])
    if op.startswith('v_permlane'):
        wr = wr + _vr(src)
        kind = 'perm'
    if op.startswith('v_readfirstlane') or op.startswith('v_readlane'):
        kind = 'rfl'
    i = Ins(text, kind, rd=rd, wr=wr, srd=_sr(src), swr=_sr([dst]))
    i.cost = 8 if kind == 'trans' else 4
    return i


def salu(op, *ops):
    text = f'{op} ' + ', '.join(fmt(o) for o in ops)
    if op.startswith('s_cmp') or op.startswith('s_setprio') or op.startswith('s_bitcmp'):
        return Ins(text, 'salu', srd=_sr(ops))
    return Ins(text, 'salu', srd=_sr(ops[1:]), swr=_sr(ops[:1]))


def raw(text, kind='salu'):
    return Ins(text, kind)


def label(name):
    return Ins(f'{name}:', 'label')


def nop(n):
    i = Ins(f's_nop {n - 1}', 'nop')
    i.c = n
    return i


def barrier():
    return Ins('s_barrier', 'barrier')


def ds_read(op, dst, addr, off=0, tag=None):
    assert 0 <= off < 65536, off
    return Ins(f'{op} {dst}, {addr}' + (f' offset:{off}' if off else ''), 'ds', rd=addr.regs(), wr=dst.regs(), tag=tag)


def ds_write(op, addr, data, off=0, tag=None):
    assert 0 <= off < 65536, off
    return Ins(f'{op} {addr}, {data}' + (f' offset:{off}' if off else ''), 'ds', rd=list(addr.regs()) + list(data.regs()), tag=tag)


def buf_load(dst, voff, srd, soff, off=0, tag=None, pol='', op=None):
    assert 0 <= off < 4096, off
    op = op or {1: 'buffer_load_dword', 2: 'buffer_load_dwordx2', 4: 'buffer_load_dwordx4'}[dst.c]
    t = f'{op} {dst}, {voff}, {srd}, {fmt(soff)} offen' + (f' offset:{off}' if off else '') + (f' {pol}' if pol else '')
    return Ins(t, 'vm', rd=voff.regs(), wr=dst.regs(), srd=_sr([srd, soff]), tag=tag)


def buf_store(data, voff, srd, soff, off=0, tag=None, pol=''):
    assert 0 <= off < 4096, off
    op = {1: 'buffer_store_dword', 2: 'buffer_store_dwordx2', 4: 'buffer_store_dwordx4'}[data.c]
    t = f'{op} {data}, {voff}, {srd}, {fmt(soff)} offen' + (f' offset:{off}' if off else '') + (f' {pol}' if pol else '')
    i = Ins(t, 'vm', rd=list(voff.regs()) + list(data.regs()), srd=_sr([srd, soff]), tag=tag)
    if data.c >= 3:
        i.stdata = tuple(data.regs())
    return i


def dma(voff, srd, soff, off=0, tag=None, pol=''):
    assert 0 <= off < 4096, off
    t = f'buffer_load_dwordx4 {voff}, {srd}, {fmt(soff)} offen' + (f' offset:{off}' if off else '') + (f' {pol}' if pol else '') + ' lds'
    return Ins(t, 'dma', rd=voff.regs(), srd=_sr([srd, soff]) + ['m0'], tag=tag)


def wait(vm=None, lg=None):
    i = Ins('s_waitcnt', 'wait')
    i.wvm = vm
    i.wlg = lg
    return i


def _aslist(x):
    if x is None:
        return []
    if isinstance(x, (list, set)):
        return list(x)
    return [x]


def resolve_waits(seq):
    vm_idx = {}
    lg_idx = {}
    nvm = nlg = 0
    vm_done = lg_done = 0
    for i in seq:
        if i.kind in ('vm', 'dma'):
            nvm += 1
            if i.tag is not None:
                vm_idx[i.tag] = nvm
        elif i.kind == 'ds':
            nlg += 1
            if i.tag is not None:
                lg_idx[i.tag] = nlg
        elif i.kind == 'wait':
            need = 0
            for t in _aslist(i.wvm):
                if t == 'all':
                    need = max(need, nvm)
                else:
                    assert t in vm_idx, ('vm tag never issued', t)
                    need = max(need, vm_idx[t])
            if need > vm_done:
                n = min(nvm - need, 63)
                i.nvm = n if i.nvm is None else min(i.nvm, n)
                vm_done = nvm - n
            need = 0
            for t in _aslist(i.wlg):
                if t == 'all':
                    need = max(need, nlg)
                else:
                    assert t in lg_idx, ('lg tag never issued', t)
                    need = max(need, lg_idx[t])
            if need > lg_done:
                n = min(nlg - need, 15)
                i.nlg = n if i.nlg is None else min(i.nlg, n)
                lg_done = nlg - n


def fold(instances):
    base = instances[0]
    for inst in instances[1:]:
        assert len(inst) <= len(base)
        for a, b in zip(base, inst):
            assert a.text == b.text and a.kind == b.kind, ('fold mismatch', a.text, b.text)
            if a.kind == 'wait':
                if b.nvm is not None:
                    a.nvm = b.nvm if a.nvm is None else min(a.nvm, b.nvm)
                if b.nlg is not None:
                    a.nlg = b.nlg if a.nlg is None else min(a.nlg, b.nlg)
    return base


def live(i):
    return not (i.kind == 'wait' and i.nvm is None and i.nlg is None)


def hazards(path):
    changed = False
    pos = 0
    vw = {}
    mw = {}
    cr = {}
    sd = {}
    sw = {}
    m0w = -100
    for i in path:
        if i.kind == 'label' or not live(i):
            continue
        need = 0

        def req(p, n):
            nonlocal need
            have = pos - p - 1
            if n - have > need:
                need = n - have
        k = i.kind
        if k == 'mfma':
            for r in i.rd:
                if r in vw:
                    req(vw[r][0], 2)
                if r in mw:
                    req(mw[r][0], 8)
            if i.c is not None:
                for r in range(i.c, i.c + 4):
                    if r in vw:
                        req(vw[r][0], 2)
                    if r in mw and mw[r][1] != i.c:
                        req(mw[r][0], 6)
            d0 = i.wr[0]
            if i.c != d0:
                for r in i.wr:
                    if r in mw:
                        req(mw[r][0], 6)
        elif k in ('valu', 'trans', 'perm', 'rfl'):
            for r in i.rd:
                if r in mw:
                    req(mw[r][0], 8)
                if r in vw:
                    if vw[r][1] == 'trans':
                        req(vw[r][0], 1)
                    if k == 'perm':
                        req(vw[r][0], 2)
                    if k == 'rfl':
                        req(vw[r][0], 1)
            for r in i.wr:
                if r in mw:
                    req(mw[r][0], 8)
                if r in cr:
                    req(cr[r], 3)
                if r in sd:
                    req(sd[r], 2)
            for s in i.srd:
                if s in sw:
                    req(sw[s], 2)
        elif k in ('ds', 'vm', 'dma'):
            for r in list(i.rd) + list(i.wr):
                if r in mw:
                    req(mw[r][0], 8)
            for r in i.rd:
                if r in vw and vw[r][1] == 'trans':
                    req(vw[r][0], 1)
            for r in i.wr:
                if r in sd:
                    req(sd[r], 2)
            for s in i.srd:
                if s in sw:
                    req(sw[s], 5)
            if k == 'dma':
                req(m0w, 1)
        elif k in ('salu', 'branch'):
            for s in i.srd:
                if s in sw:
                    req(sw[s], 1)
        if need > i.nop:
            i.nop = need
            changed = True
        pos += i.nop
        if k == 'mfma':
            for r in i.wr:
                mw[r] = (pos, i.wr[0])
                vw.pop(r, None)
            if i.c is not None:
                for r in range(i.c, i.c + 4):
                    cr[r] = pos
        elif k in ('valu', 'trans', 'perm', 'rfl'):
            for r in i.wr:
                vw[r] = (pos, k)
                mw.pop(r, None)
            for s in i.swr:
                sw[s] = pos
        elif k in ('ds', 'vm'):
            for r in i.wr:
                vw.pop(r, None)
                mw.pop(r, None)
            for r in i.stdata:
                sd[r] = pos
        elif k == 'salu':
            for s in i.swr:
                sw.pop(s, None)
                if s == 'm0':
                    m0w = pos
        pos += i.c if k == 'nop' else 1
    return changed


def render(seq):
    out = []
    for i in seq:
        if not live(i):
            continue
        n = i.nop
        while n > 0:
            k = min(n, 16)
            out.append(f's_nop {k - 1}')
            n -= k
        if i.kind == 'wait':
            t = 's_waitcnt'
            if i.nvm is not None:
                t += f' vmcnt({i.nvm})'
            if i.nlg is not None:
                t += f' lgkmcnt({i.nlg})'
            out.append(t)
        else:
            out.append(i.text)
    return out


def stats(seq, name=''):
    from collections import Counter
    c = Counter(i.kind for i in seq if live(i))
    nops = sum(i.nop for i in seq if live(i))
    return f'{name}: ' + ' '.join(f'{k}={v}' for k, v in sorted(c.items())) + f' padded_states={nops}'


_E32 = ('v_exp_f32', 'v_add_f32', 'v_mul_f32', 'v_sub_f32', 'v_mov_b32', 'v_max_f32', 'v_rcp_f32', 'v_ceil_f32', 'v_lshlrev_b32', 'v_and_b32',
        'v_xor_b32', 'v_add_u32', 'v_lshrrev_b32', 'v_cmp_lt_f32', 'v_min_u32', 'v_subrev_u32', 'v_mul_u32_u24', 'v_cmp_gt_u32', 'v_cmp_le_u32')
_S4 = ('s_waitcnt', 's_barrier', 's_nop', 's_cbranch', 's_branch', 's_setprio', 's_endpgm', 's_sleep', 's_call_b64', 's_setpc_b64', 's_getpc_b64')


def _has_lit(line):
    import re
    ops = line.split(None, 1)[1] if ' ' in line else ''
    for tok in re.split(r'[,\s]+', ops):
        if tok.startswith('0x') or tok.startswith('L_'):
            return True
        if re.fullmatch(r'-?\d+', tok) and not (-16 <= int(tok) <= 64):
            return True
    return False


def isize(line):
    op = line.split()[0]
    if line.endswith(':') or op.startswith('.'):
        return 0
    if op.endswith('_e64'):
        return 8
    if op.startswith(_S4):
        return 4
    if op.startswith('s_load') or op.startswith('s_mem'):
        return 8
    if op.startswith('s_'):
        return 8 if _has_lit(line) else 4
    if op in _E32 or op.startswith('v_permlane') or op.startswith('v_readfirstlane'):
        return 8 if _has_lit(line) else 4
    if op == 'v_cndmask_b32':
        return 4 if line.rstrip().endswith('vcc') else 8
    return 8


def align8(lines, want=('v_mfma',)):
    out = list(lines)
    off = 0
    cand = None
    fixed = bad = 0
    for i, l in enumerate(out):
        if l.startswith('.p2align'):
            off = 0; cand = None
            continue
        op = l.split()[0]
        if op.startswith(want):
            if off % 8:
                if cand is not None:
                    c = out[cand]; o = c.split()[0]
                    out[cand] = o + '_e64' + c[len(o):]
                    off += 4; fixed += 1
                else:
                    bad += 1
            cand = None
        elif op in _E32 and not _has_lit(l):
            cand = i if cand is None else cand
        off += isize(l)
    return out, fixed, bad
```

```python
import sys, math
sys.path.insert(0, 'gen')
from asmlib import *

NAME = 'concat_heads__mha_block_cached__mha_block_cached__near_ridge'
CSCALE = math.log2(math.e) / math.sqrt(128.0)
THR = 1024.0

KV_BASE = 0
WQ_BASE = 65536
NWQ = 4
WSLOT = {}
XB_BASE = WQ_BASE + NWQ * 8192
H_BASE = XB_BASE + 16384
LDS_BYTES = 163840

SRD_K, SRD_V, SRD_WQ, SRD_X, SRD_WS, SRD_WO = 's[8:11]', 's[12:15]', 's[16:19]', 's[20:23]', 's[24:27]', 's[28:31]'
S_W = 's50'
S_WAVE = 's39'
S_ID = 's51'

PART_WS_OFF = 0


STAMPS = False
OPT = {}
STAMP_OFF = 120 * 1024 * 1024
def stamp(k):
    if not STAMPS: return []
    assert k < 12
    return [raw(f's_memtime s[{76 + 2 * k}:{77 + 2 * k}]')]
def stamp_init():
    if not STAMPS: return []
    return [salu('s_mov_b32', f's{r}', 0) for r in range(76, 100)] + [raw('s_memrealtime s[100:101]')]
def stamp_out(t0=V(8, 4), a=V(1)):
    if not STAMPS: return []
    c = [raw('s_memrealtime s[52:53]'), raw('s_waitcnt vmcnt(0) lgkmcnt(0)'), salu('s_lshl_b32', 's54', 's2', 3), salu('s_add_u32', 's54', 's54', S_WAVE),
         salu('s_lshl_b32', 's54', 's54', 7), salu('s_add_u32', 's54', 's54', STAMP_OFF), salu('s_mov_b32', 's26', STAMP_OFF + 1024 * 1024),
         valu('v_mov_b32', a, 0), raw('s_mov_b64 exec, 1')]
    regs = list(range(76, 102)) + [52, 53]
    for k in range(7):
        for r in range(4):
            c.append(valu('v_mov_b32', V(t0.n + r), f's{regs[4 * k + r]}'))
        c.append(buf_store(t0, a, SRD_WS, 's54', 16 * k))
        c.append(nop(3))
    return c


PHYS = {7: 0, 1: 1, 2: 2, 4: 3, 3: 4, 5: 5, 6: 6, 0: 7}
def kslot(t): return t % 4
def vslot(t): return 4 + t % 4
def wslot0(k): return 8 + k % 6
XS = [4, 5, 6, 16, 17, 18, 19, 14, 15]
XBASE = 14 * 8192
def xslot(M, qt): return XS[(M % 3) * 3 + qt]
S_SET = 's3'


def common_prologue(e, nwg=256):
    e(raw(f's_cmp_ge_u32 s2, {nwg}'))
    e(raw('s_cbranch_scc0 L_go'))
    e(raw('s_endpgm'))
    e(label('L_go'))
    e(raw('s_load_dwordx2 s[4:5], s[0:1], 80'))
    e(raw('s_load_dwordx2 s[6:7], s[0:1], 96'))
    e(raw('s_load_dwordx2 s[72:73], s[0:1], 88'))
    e(salu('s_and_b32', 's32', 's2', 7))
    e(salu('s_lshr_b32', 's33', 's2', 3))
    e(salu('s_lshl_b32', 's34', 's32', 2))
    e(salu('s_lshr_b32', 's35', 's33', 3))
    e(salu('s_add_u32', 's34', 's34', 's35'))
    e(salu('s_and_b32', 's35', 's33', 7))
    e(salu('s_lshr_b32', 's36', 's34', 4))
    e(salu('s_and_b32', 's37', 's34', 15))
    e(salu('s_lshl_b32', S_ID, 's34', 3))
    e(salu('s_add_u32', S_ID, S_ID, 's35'))
    e(salu('s_mul_i32', 's38', 's36', 40))
    e(salu('s_add_u32', 's52', 's0', 's38'))
    e(salu('s_addc_u32', 's53', 's1', 0))
    e(raw('s_load_dwordx4 s[40:43], s[52:53], 0'))
    e(raw('s_load_dwordx4 s[44:47], s[52:53], 16'))
    e(raw('s_load_dwordx2 s[48:49], s[52:53], 32'))
    e(valu('v_lshrrev_b32', V(1), 6, V(0)))
    e(valu('v_readfirstlane_b32', S_WAVE, V(1)))
    e(valu('v_and_b32', V(0), 63, V(0)))
    e(salu('s_and_b32', S_W, S_WAVE, 3))
    e(salu('s_lshr_b32', S_SET, S_WAVE, 2))
    e(salu('s_lshl_b32', 's58', S_SET, 9))
    e(salu('s_add_u32', 's58', 's58', 65536))
    e(salu('s_lshl_b32', 's62', S_W, 11))
    e(salu('s_lshl_b32', 's63', S_SET, 10))
    e(salu('s_add_u32', 's63', 's63', 's62'))
    e(salu('s_add_u32', 's62', 's62', 's58'))
    q_dma_addrs(e)
    e(raw('s_waitcnt lgkmcnt(0)'))
    e(salu('s_lshl_b32', 's54', 's35', 10))
    e(salu('s_add_u32', 's16', 's46', 's54')); e(salu('s_addc_u32', 's17', 's47', 0))
    e(salu('s_sub_u32', 's18', 576 * 8192, 's54')); e(salu('s_mov_b32', 's19', 0x20000))
    e(salu('s_mul_i32', 's54', 's37', 221184))
    e(salu('s_add_u32', 's20', 's40', 's54')); e(salu('s_addc_u32', 's21', 's41', 0))
    e(salu('s_mov_b32', 's22', 221184)); e(salu('s_mov_b32', 's23', 0x20000))
    for x in wq0_dma(0) + x0_dma(0) + wq0_dma(1) + wq0_dma(2) + x0_dma(1) + wq0_dma(3) + wq0_dma(4) + x0_dma(2) + wq0_dma(5): e(x)
    e(salu('s_lshl_b32', 's54', 's37', 3))
    e(salu('s_add_u32', 's54', 's54', 's35'))
    e(salu('s_lshl_b32', 's54', 's54', 19))
    e(salu('s_add_u32', 's8', 's42', 's54')); e(salu('s_addc_u32', 's9', 's43', 0))
    e(salu('s_mov_b32', 's10', 524288)); e(salu('s_mov_b32', 's11', 0x20000))
    e(salu('s_add_u32', 's12', 's44', 's54')); e(salu('s_addc_u32', 's13', 's45', 0))
    e(salu('s_mov_b32', 's14', 524288)); e(salu('s_mov_b32', 's15', 0x20000))
    e(salu('s_mov_b32', 's24', 's6')); e(salu('s_mov_b32', 's25', 's7'))
    e(salu('s_mov_b32', 's26', PART_WS_OFF + 256 * 221184)); e(salu('s_mov_b32', 's27', 0x20000))
    e(salu('s_mul_i32', 's54', 's35', 589824))
    e(salu('s_add_u32', 's28', 's48', 's54')); e(salu('s_addc_u32', 's29', 's49', 0))
    e(salu('s_mov_b32', 's30', 589824)); e(salu('s_mov_b32', 's31', 0x20000))
    if OPT.get('cpf', 1):
        e(raw('s_getpc_b64 s[52:53]'))
        e(label('L_cpf'))
        e(salu('s_lshr_b32', 's54', 's2', 3))
        e(salu('s_lshl_b32', 's54', 's54', 3))
        e(salu('s_add_u32', 's54', 's54', S_WAVE))
        e(salu('s_lshl_b32', 's54', 's54', 9))
        e(valu('v_and_b32', V(20), 3, V(0)))
        e(valu('v_lshlrev_b32', V(20), 7, V(20)))
        e(valu('v_add_u32', V(20), 's54', V(20)))
        e(valu('v_min_u32', V(20), 'L_k1_end-L_cpf-8', V(20)))
        e(Ins('global_load_dword v21, v20, s[52:53]', 'vm', rd=[20], wr=[21]))
    for x in stamp_init() + stamp(0): e(x)


CODE_BYTES = 90000


def wq0_dma(k):
    return [salu('s_add_u32', 'm0', 's63', wslot0(k) * 8192), salu('s_mov_b32', 's66', k * 262144), dma(A.vWd, SRD_WQ, 's66', 0, tag=('W0', k))]


def x0_dma(M):
    o = []
    for qt in range(3):
        o += [salu('s_add_u32', 'm0', 's63', xslot(M, qt) * 8192), salu('s_mov_b32', 's66', M * 128 + qt * 18432),
              dma(A.vXd, SRD_X, 's66', 0, tag=('X0', M))]
    return o


def kv0_dma(kind, t):
    if kind == 'K':
        assert kslot(t + 1) == kslot(t) + 1
        return [salu('s_add_u32', 'm0', 's68', kslot(t) * 8192), salu('s_add_u32', 's66', 's70', t * 8192),
                dma(A.vKd, SRD_K, 's66', 0, tag=('K0', t), pol='nt'), dma(A.vKd, SRD_K, 's66', 1024, tag=('K0', t), pol='nt')]
    assert vslot(t + 1) == vslot(t) + 1
    return [salu('s_add_u32', 'm0', 's69', vslot(t) * 8192), salu('s_add_u32', 's66', 's70', t * 8192),
            dma(A.vVd, SRD_V, 's66', 0, tag=('V0', t), pol='nt'), dma(A.vVd, SRD_V, 's66', 2048, tag=('V0', t), pol='nt')]


def q_dma_addrs(e):
    t0, t1 = A.T0, A.T1
    e(salu('s_and_b32', 's54', S_W, 1))
    e(valu('v_and_b32', t0, 3, V(0)))
    e(valu('v_xor_b32', t0, 's54', t0))
    e(valu('v_lshrrev_b32', t1, 4, V(0)))
    e(valu('v_lshl_add_u32', t0, t1, 2, t0))
    e(valu('v_lshlrev_b32', t0, 4, t0))
    e(valu('v_bfe_u32', t1, V(0), 2, 2))
    e(valu('v_lshl_add_u32', t0, t1, 13, t0))
    e(salu('s_lshl_b32', 's54', S_W, 16))
    e(salu('s_lshl_b32', 's55', S_SET, 15))
    e(salu('s_add_u32', 's54', 's54', 's55'))
    e(valu('v_add_u32', A.vWd, 's54', t0))
    e(salu('s_lshl_b32', 's54', S_SET, 2))
    e(valu('v_lshrrev_b32', t1, 4, V(0)))
    e(valu('v_add_u32', t1, 's54', t1))
    e(valu('v_and_b32', t0, 7, V(0)))
    e(valu('v_xor_b32', t0, t0, t1))
    e(valu('v_lshrrev_b32', t1, 3, V(0)))
    e(valu('v_mul_u32_u24', t1, 1152, t1))
    e(valu('v_lshl_add_u32', t0, t0, 4, t1))
    e(salu('s_mul_i32', 's54', S_W, 48 * 1152))
    e(salu('s_mul_i32', 's55', S_SET, 8 * 1152))
    e(salu('s_add_u32', 's54', 's54', 's55'))
    e(valu('v_add_u32', A.vXd, 's54', t0))


def q_rd_addrs(e):
    t0, t1 = A.T0, A.T1
    e(valu('v_and_b32', t0, 3, V(0)))
    e(valu('v_bfe_u32', t1, V(0), 4, 1))
    e(valu('v_xor_b32', t0, t0, t1))
    e(valu('v_bfe_u32', t1, V(0), 2, 2))
    e(valu('v_lshl_add_u32', t0, t1, 2, t0))
    e(valu('v_lshrrev_b32', t1, 4, V(0)))
    e(valu('v_lshl_add_u32', t0, t1, 7, t0))
    e(valu('v_lshlrev_b32', t0, 4, t0))
    e(valu('v_and_b32', t1, 1, V(0)))
    e(valu('v_lshl_add_u32', t0, t1, 3, t0))
    e(valu('v_add_u32', A.vW0, 's58', t0))
    e(valu('v_xor_b32', A.vW1, 8, A.vW0))
    e(valu('v_lshrrev_b32', t0, 4, V(0)))
    e(valu('v_bfe_u32', t1, V(0), 1, 3))
    e(valu('v_xor_b32', t0, t0, t1))
    e(valu('v_lshlrev_b32', t0, 4, t0))
    e(valu('v_and_b32', t1, 15, V(0)))
    e(valu('v_lshl_add_u32', t0, t1, 7, t0))
    e(salu('s_lshl_b32', 's54', S_W, 11))
    e(salu('s_add_u32', 's54', 's54', XBASE))
    e(valu('v_add_u32', A.vXr0, 's54', t0))
    e(valu('v_xor_b32', A.vXr1, 64, A.vXr0))
    e(valu('v_subrev_u32', A.vXr2, XBASE, A.vXr0))
    e(valu('v_subrev_u32', A.vXr3, XBASE, A.vXr1))


def q0_wread(n):
    if n >= 72: return []
    k, f = divmod(n, 4)
    i, t = f >> 1, f & 1
    buf = A.F + (n % 4) * 4
    va = A.vW0 if t == 0 else A.vW1
    off = (wslot0(k) - 8) * 8192 + i * 256
    return [ds_read('ds_read_b64_tr_b16', V(buf, 2), va, off, tag=('pf0', n)), ds_read('ds_read_b64_tr_b16', V(buf + 2, 2), va, off + 1024, tag=('pf0', n))]


def q0_xread(k):
    o = []
    for qt in range(3):
        a = xslot(k // 2, qt) * 8192
        va, off = ((A.vXr1 if k % 2 else A.vXr0), a - XBASE) if a >= XBASE else ((A.vXr3 if k % 2 else A.vXr2), a)
        o.append(ds_read('ds_read_b128', V(A.xf(k, qt), 4), va, off, tag=('xf0', k)))
    return o


def q_conv(i):
    ops = []
    for qt in range(3):
        tm = A.P[0] + qt * 4
        for t in range(2):
            a = A.o(qt, 2 * i + t)
            for r in range(4): ops.append(valu('v_mul_f32', V(a + r), 's59', V(a + r)))
            ops.append(valu('v_cvt_pk_bf16_f32', V(tm + 2 * t), V(a), V(a + 1)))
            ops.append(valu('v_cvt_pk_bf16_f32', V(tm + 2 * t + 1), V(a + 2), V(a + 3)))
        q = A.q(qt, i)
        for k in range(2):
            ops.append(valu('v_cndmask_b32', V(q + k), V(tm + k), V(tm + 2 + k), 's[64:65]'))
            ops.append(valu('v_cndmask_b32', V(q + 2 + k), V(tm + 2 + k), V(tm + k), 's[64:65]'))
    return ops


def q0_phase():
    c = []; e = c.append
    q_rd_addrs(e)
    kv_dma_addrs(e, A.vKd, A.vVd, A.T0, A.T1)
    e(salu('s_lshl_b32', 's70', S_SET, 13))
    e(salu('s_add_u32', 's68', 's56', 's70'))
    e(salu('s_add_u32', 's69', 's57', 's70'))
    e(salu('s_mov_b32', 's59', CSCALE))
    e(salu('s_mov_b32', 's64', 0xffff0000)); e(salu('s_mov_b32', 's65', 0xffff0000))
    e(wait(vm=[('W0', 0), ('X0', 0)]))
    e(barrier())
    c += stamp(1)
    c += q0_wread(0) + q0_wread(1) + q0_wread(2) + q0_xread(0)
    gaps = [[] for _ in range(72 * 3 + 1)]

    def chain(ops, lo, hi):
        for a, o in enumerate(ops): gaps[min(lo + (a * (hi - lo + 1)) // len(ops), 216)].append(o)
    wn = 6
    kvq = {OPT.get('kv0', 8): kv0_dma('K', 0), OPT.get('kv1', 14): kv0_dma('V', 0), OPT.get('kv2', 12): kv0_dma('K', 2), OPT.get('kv3', 16): kv0_dma('V', 2)}
    for k in range(18):
        g0 = (4 * k + 1) * 3
        ops = []
        if k < 17:
            for j, x in enumerate(q0_xread(k + 1)): gaps[g0 + 2 * j].append(x)
        while wn < 18 and wn - 6 <= k - 1:
            ops += wq0_dma(wn); wn += 1
        if k % 2 == 1 and (k - 1) // 2 + 3 <= 8: ops += x0_dma((k - 1) // 2 + 3)
        ops += kvq.get(k, [])
        if ops: chain(ops, g0, g0 + 10)
    for n in range(72):
        k, f = divmod(n, 4)
        if f == 1 and k < 17:
            c.append(wait(vm=[('W0', k + 1), ('X0', (k + 1) // 2)]))
            c.append(barrier())
        c.append(wait(lg=[('pf0', n)] + ([('xf0', k)] if f == 0 else [])))
        rd = q0_wread(n + 3)
        for qt in range(3):
            d = A.o(qt, f)
            c.append(mfma(d, A.F + (n % 4) * 4, A.xf(k, qt), d if k else None))
            if qt < len(rd): c.append(rd[qt])
            c += gaps[n * 3 + qt]
    c += stamp(2)
    c += q_conv(0) + q_conv(1)
    return c


QT_BASE = 8 * 8192


def kv_dma_addrs(e, vK, vV, t0, t1):
    e(salu('s_and_b32', 's54', S_W, 1))
    e(salu('s_lshl_b32', 's55', 's54', 1))
    e(valu('v_and_b32', t0, 3, V(0)))
    e(valu('v_xor_b32', t0, 's55', t0))
    e(valu('v_lshrrev_b32', t1, 4, V(0)))
    e(valu('v_lshl_add_u32', t0, t1, 2, t0))
    e(valu('v_lshlrev_b32', t0, 4, t0))
    e(valu('v_bfe_u32', t1, V(0), 2, 2))
    e(valu('v_lshl_add_u32', t0, t1, 8, t0))
    e(salu('s_lshl_b32', 's56', S_W, 11))
    e(salu('s_lshr_b32', 's57', S_W, 1))
    e(salu('s_lshl_b32', 's57', 's57', 2))
    e(salu('s_add_u32', 's57', 's57', 's54'))
    e(salu('s_lshl_b32', 's57', 's57', 10))
    e(valu('v_add_u32', vK, 's56', t0))
    e(valu('v_add_u32', vV, 's57', t0))


def k_dma(vK, t):
    if OPT.get('nokv') and t >= 4: return [Ins('s_nop 0', 'dma', tag=('K', t))]
    return [salu('s_add_u32', 'm0', 's56', KV_BASE + kslot(t) * 8192), salu('s_mov_b32', 's58', t * 8192),
            dma(vK, SRD_K, 's58', 0, tag=('K', t), pol='nt'), dma(vK, SRD_K, 's58', 1024, tag=('K', t), pol='nt')]


def v_dma(vV, t):
    if OPT.get('nokv') and t >= 4: return [Ins('s_nop 0', 'dma', tag=('V', t))]
    return [salu('s_add_u32', 'm0', 's57', KV_BASE + vslot(t) * 8192), salu('s_mov_b32', 's59', t * 8192),
            dma(vV, SRD_V, 's59', 0, tag=('V', t), pol='nt'), dma(vV, SRD_V, 's59', 2048, tag=('V', t), pol='nt')]


class A:
    vK, vV0, vV1, vH, vO = V(2), V(3), V(4), V(5), V(6)
    T0, T1 = V(1), V(7)
    E = 8
    TA, TB = 16, 17
    TS = 18
    L = 21
    LI = 24
    MX = 27
    NM = 28
    F = 40
    S = (56, 68)
    P = (80, 92)
    Q = 104
    O = 152
    X = 248
    vWd, vXd, vW0, vW1, vXr0, vXr1, vKd, vVd = V(8), V(9), V(10), V(11), V(12), V(13), V(14), V(15)
    vXr2, vXr3 = V(16), V(17)
    XF = 56
    @staticmethod
    def xf(k, qt): return A.XF + ((k % 2) * 3 + qt) * 4

    @staticmethod
    def q(qt, ks): return A.Q + (qt * 4 + ks) * 4
    @staticmethod
    def o(qt, dt): return A.O + (qt * 8 + dt) * 4
    @staticmethod
    def s(kt, qt): return A.S[kt] + qt * 4
    @staticmethod
    def p(par, qt): return A.P[par] + qt * 4
    @staticmethod
    def nm(qt): return A.NM + qt * 4


rare_variants = {}
rare_sites = []


def sm_groups(kt, par, site, variant, first, pending):
    g = []
    pend = list(pending)

    def E(q, i): return V(A.E + (q % 2) * 4 + i)
    def ex(q, i): return valu('v_exp_f32', E(q, i), V(A.s(kt, q) + i))
    def ad1(q): return valu('v_add_f32', V(A.TA), E(q, 0), E(q, 1))
    def cv1(q): return valu('v_cvt_pk_bf16_f32', V(A.p(par, q) + 2 * kt), E(q, 0), E(q, 1))
    def ad2(q): return valu('v_add_f32', V(A.TB), E(q, 2), E(q, 3))
    def cv2(q): return valu('v_cvt_pk_bf16_f32', V(A.p(par, q) + 2 * kt + 1), E(q, 2), E(q, 3))
    def ts(q): return valu('v_add_f32', V(A.TS + q), V(A.TA), V(A.TB))
    pend = pend + [None] * 3
    g = [[ex(0, 0)], [ex(0, 1)], [ex(0, 2)], [pend[0], pend[1]], [ex(0, 3)], [ad1(0), cv1(0)], [ex(1, 0)], [ad2(0), cv2(0)],
         [ex(1, 1)], [pend[2], ts(0)], [ex(1, 2)], [ad1(1)], [ex(1, 3)], [cv1(1)], [ex(2, 0)], [ad2(1), cv2(1)],
         [ex(2, 1)], [ts(1)], [ex(2, 2)], [ad1(2), cv1(2)], [ex(2, 3)], [ad2(2), ts(2)]]
    g = [[x for x in y if x is not None] for y in g]
    if variant is not None:
        g.append([valu('v_max3_f32', V(A.MX), V(A.TS), V(A.TS + 1), V(A.TS + 2)), valu('v_cmp_lt_f32', 'vcc', 's60', V(A.MX))])
        g.append([cv2(2), Ins(f's_cbranch_vccnz TR_{site}', 'branch', srd=['vcc']), label(f'RET_{site}')])
        if variant not in rare_variants:
            rare_variants[variant] = f'RARE_{len(rare_variants)}'
        if (site, rare_variants[variant]) not in rare_sites:
            rare_sites.append((site, rare_variants[variant]))
    else:
        g.append([cv2(2)])
        g.append([])
    if first:
        left = [valu('v_mov_b32', V(A.L + q), V(A.TS + q)) for q in range(3)]
    else:
        left = [valu('v_add_f32', V(A.L + q), V(A.L + q), V(A.TS + q)) for q in range(3)]
    g = [x for x in g]
    assert len(g) == 24
    return g, left


def xlane(op, r, tmp):
    return [valu('v_mov_b32', tmp, r), valu('v_permlane32_swap_b32', r, tmp), valu(op, r, r, tmp),
            valu('v_mov_b32', tmp, r), valu('v_permlane16_swap_b32', r, tmp), valu(op, r, r, tmp)]


def init_ops():
    ops = []
    for q in range(3):
        m = V(A.nm(q)); t = V(A.nm(q) + 1); s = A.s(0, q)
        ops.append(valu('v_max3_f32', m, V(s), V(s + 1), V(s + 2)))
        ops.append(valu('v_max_f32', m, m, V(s + 3)))
    xl = [xlane('v_max_f32', V(A.nm(q)), V(A.nm(q) + 1)) for q in range(3)]
    for k in range(6):
        for q in range(3):
            ops.append(xl[q][k])
    for q in range(3):
        ops.append(valu('v_ceil_f32', V(A.nm(q)), V(A.nm(q))))
    for q in range(3):
        ops.append(valu('v_sub_f32', V(A.nm(q)), 0, V(A.nm(q))))
    for q in range(3):
        s = A.s(0, q)
        for i in range(4):
            ops.append(valu('v_add_f32', V(s + i), V(A.nm(q)), V(s + i)))
    for q in range(3):
        for i in range(1, 4):
            ops.append(valu('v_mov_b32', V(A.nm(q) + i), V(A.nm(q))))
    return ops


def init_sb_ops():
    ops = []
    for q in range(3):
        s = A.s(1, q)
        for i in range(4):
            ops.append(valu('v_add_f32', V(s + i), V(A.nm(q)), V(s + i)))
    return ops


def linv_ops():
    ops = []
    for q in range(3):
        ops.append(valu('v_mov_b32', V(A.LI + q), V(A.L + q)))
    xl = [xlane('v_add_f32', V(A.LI + q), V(A.X + q)) for q in range(3)]
    for k in range(6):
        for q in range(3):
            ops.append(xl[q][k])
    for q in range(3):
        ops.append(valu('v_rcp_f32', V(A.LI + q), V(A.LI + q)))
    return ops


def epilogue_ops(sink, dst=None):
    ops = []
    n = 0
    for i in range(4):
        for qt in range(3):
            buf = A.X + (n % 2) * 4 if dst is None else dst(qt, i)
            n += 1
            for half in range(2):
                o = A.o(qt, 2 * i + half)
                for r in range(4):
                    ops.append(valu('v_mul_f32', V(o + r), V(A.LI + qt), V(o + r)))
                ops.append(valu('v_cvt_pk_bf16_f32', V(buf + 2 * half), V(o), V(o + 1)))
                ops.append(valu('v_cvt_pk_bf16_f32', V(buf + 2 * half + 1), V(o + 2), V(o + 3)))
            ops.extend(sink(qt, i, V(buf, 4)))
    return ops


def rare_code(variant, lab):
    kt, par, do_o, do_l, presc, adj = variant
    c = [label(lab), nop(16)]
    n = V(A.TA); f = V(A.TB); t = V(A.MX)
    for q in range(3):
        s = A.s(kt, q)
        c.append(valu('v_max3_f32', n, V(s), V(s + 1), V(s + 2)))
        c.append(valu('v_max_f32', n, n, V(s + 3)))
        c.extend(xlane('v_max_f32', n, t))
        c.append(valu('v_ceil_f32', n, n))
        c.append(valu('v_max_f32', n, 0, n))
        c.append(valu('v_sub_f32', f, 0, n))
        c.append(valu('v_exp_f32', f, f))
        for i in range(4):
            c.append(valu('v_sub_f32', V(s + i), V(s + i), n))
            if adj:
                so = A.s(1 - kt, q)
                c.append(valu('v_sub_f32', V(so + i), V(so + i), n))
            c.append(valu('v_sub_f32', V(A.nm(q) + i), V(A.nm(q) + i), n))
        if do_l:
            c.append(valu('v_mul_f32', V(A.L + q), f, V(A.L + q)))
        if do_o:
            for r in range(32):
                c.append(valu('v_mul_f32', V(A.o(q, 0) + r), f, V(A.o(q, 0) + r)))
        for (pp, off) in presc:
            r = V(A.p(pp, q) + off)
            lo, hi = V(A.E), V(A.E + 1)
            c.append(valu('v_lshlrev_b32', lo, 16, r))
            c.append(valu('v_and_b32', hi, 0xffff0000, r))
            c.append(valu('v_mul_f32', lo, f, lo))
            c.append(valu('v_mul_f32', hi, f, hi))
            c.append(valu('v_cvt_pk_bf16_f32', r, lo, hi))
        for i in range(4):
            c.append(valu('v_exp_f32', V(A.E + i), V(s + i)))
        c.append(valu('v_cvt_pk_bf16_f32', V(A.p(par, q) + 2 * kt), V(A.E), V(A.E + 1)))
        c.append(valu('v_cvt_pk_bf16_f32', V(A.p(par, q) + 2 * kt + 1), V(A.E + 2), V(A.E + 3)))
        c.append(valu('v_add_f32', V(A.E), V(A.E), V(A.E + 1)))
        c.append(valu('v_add_f32', V(A.E + 2), V(A.E + 2), V(A.E + 3)))
        c.append(valu('v_add_f32', V(A.TS + q), V(A.E), V(A.E + 2)))
    c.append(valu('v_exp_f32', V(A.E), V(A.s(1 - kt, 0))))
    c.append(nop(4))
    c.append(raw('s_setpc_b64 s[62:63]', 'branch'))
    return c


class AGen:
    def __init__(self, osink):
        self.pendL = []
        self.osink = osink

    @staticmethod
    def frag(nu):
        t, j = nu // 16 - 1, nu % 16
        if j % 2 == 0:
            return ('K', t + 1, j // 8, (j // 2) % 4) if t + 1 <= 63 else None
        tile, dt = (t - 1, 4 + (j - 1) // 2) if j < 8 else (t, (j - 9) // 2)
        return ('V', tile, dt, 0) if 0 <= tile <= 63 else None

    def read(self, nu):
        f = self.frag(nu)
        if f is None:
            return []
        kind, tile, a, b = f
        buf = A.F + (nu % 4) * 4
        if kind == 'K':
            return [ds_read('ds_read_b128', V(buf, 4), A.vK, KV_BASE + kslot(tile) * 8192 + a * 4096 + b * 256, tag=('f', nu))]
        va = A.vV0 if a % 2 == 0 else A.vV1
        off = KV_BASE + vslot(tile) * 8192 + (a >> 1) * 256
        return [ds_read('ds_read_b64_tr_b16', V(buf, 2), va, off, tag=('f', nu)),
                ds_read('ds_read_b64_tr_b16', V(buf + 2, 2), va, off + 4096, tag=('f', nu))]

    def iteration(self, t, more=None, bar=None):
        T = t + 1
        j16 = t % 16
        nu0 = 16 * (t + 1)
        has_qk = T <= 63
        newhead = has_qk and T % 16 == 0
        def loc(u):
            return f'p{u + 1}' if u <= 0 else (f't{u}' if u >= 62 else f'{u % 16}')
        pos = [dict(pre=[], m=None, w=[], rd=[], post=[]) for _ in range(48)]
        for m in range(48):
            j, qt = divmod(m, 3)
            f = self.frag(nu0 + j)
            if f is None:
                continue
            kind, tile, a, b = f
            fb = A.F + ((nu0 + j) % 4) * 4
            tags = [('f', nu0 + j)]
            if kind == 'K':
                d = A.s(a, qt)
                pos[m]['m'] = mfma(d, fb, A.q(qt, b), d if b else (None if newhead else A.nm(qt)))
                if newhead and t >= 0 and a == 0: tags.append(('q', T, b))
            else:
                d = A.o(qt, a)
                pos[m]['m'] = mfma(d, fb, A.p(tile % 2, qt), d if tile % 16 else None)
            if qt == 0:
                if m > 0 and pos[m - 1]['m'] is not None: pos[m - 1]['w'].append(wait(lg=tags))
                else: pos[m]['pre'].append(wait(lg=tags))
        for i in range(8):
            v = self.read(nu0 + 2 * i + 3)
            if v: pos[6 * i + 1]['rd'].append(v[1])
            pos[6 * i + 3]['rd'] += self.read(nu0 + 2 * i + 4)
            v = self.read(nu0 + 2 * i + 5)
            if v: pos[6 * i + 5]['rd'].append(v[0])
        if bar: pos[OPT.get('barpos', 6)]['w'] = list(bar) + pos[OPT.get('barpos', 6)]['w']
        extra = [[] for _ in range(48)]

        def spread(ops, lo, hi):
            n = len(ops)
            for k, o in enumerate(ops):
                extra[lo + (k * (hi - lo + 1)) // n].append(o)
        SH = 2

        def place(g, base):
            for k, ops in enumerate(g):
                gp = base + k - SH
                if k == 23 and ops and ops[-1].kind == 'label':
                    pos[base + 23]['br'] = ops[-2:]
                    ops = ops[:-2]
                if gp >= 0: pos[gp]['post'].extend(ops)
        if 0 <= t <= 63:
            par = t % 2
            var = (1, par, t % 16 != 0, True, ((par, 0), (par, 1)), t % 16 != 15)
            g1, self.pendL = sm_groups(1, par, f'Y{loc(t)}', var, False, self.pendL)
            place(g1, 0)
        early = [[valu('v_exp_f32', V(A.E + i), V(A.s(1, 0) + i))] for i in range(SH)] if has_qk else []
        par = T % 2
        if newhead:
            pre = list(self.pendL)
            if t >= 0: pre += linv_ops()
            spread(pre + init_ops(), 24, 35)
            g0, self.pendL = sm_groups(0, par, None, None, True, [])
            for k, g in enumerate(g0): extra[36 + k // 2].extend(g)
            extra[47].extend(init_sb_ops())
            for x in early: extra[47].extend(x)
        elif has_qk:
            var = (0, par, True, True, tuple((t % 2, k) for k in range(4)), True)
            g0, self.pendL = sm_groups(0, par, f'X{loc(t)}', var, False, self.pendL)
            place(g0, 24)
            for k, x in enumerate(early): pos[48 - SH + k]['post'].extend(x)
        elif t == 63:
            spread(self.pendL + linv_ops(), 24, 40); self.pendL = []
        if j16 == 0 and 0 < t < 64:
            eo = epilogue_ops(self.osink(t // 16 - 1))
            half = len(eo) // 2
            spread(eo[:half], 0, 25)
            spread(eo[half:], 27, 45)
        if more: spread(more, 3, 23)
        if has_qk and T % 16 == 15:
            for ks in range(4):
                for qt in range(3):
                    pos[27 + 6 * ks + qt]['rd'].append(ds_read('ds_read_b128', V(A.q(qt, ks), 4), A.vH, (qt * 4 + ks) * 1024, tag=('q', T + 1, ks)))
        out = []
        for m in range(48):
            out.extend(pos[m]['pre'])
            if pos[m]['m'] is not None:
                out.append(pos[m]['m'])
            out += pos[m]['w'] + pos[m]['rd']
            if 'br' in pos[m]:
                out += extra[m] + pos[m]['br'] + pos[m]['post']
            else:
                out += pos[m]['post'] + extra[m]
        return out


def a_setup(e):
    t0, t1 = A.T0, A.T1
    e(valu('v_lshrrev_b32', t0, 4, V(0)))
    e(valu('v_bfe_u32', t1, V(0), 3, 1))
    e(valu('v_lshlrev_b32', t1, 1, t1))
    e(valu('v_xor_b32', t0, t0, t1))
    e(valu('v_and_b32', t1, 3, V(0)))
    e(valu('v_lshl_add_u32', t0, t1, 2, t0))
    e(valu('v_bfe_u32', t1, V(0), 2, 2))
    e(valu('v_lshl_add_u32', t0, t1, 6, t0))
    e(valu('v_lshlrev_b32', A.vK, 4, t0))
    e(valu('v_bfe_u32', t0, V(0), 1, 1))
    e(valu('v_bfe_u32', t1, V(0), 4, 1))
    e(valu('v_lshl_add_u32', t0, t1, 1, t0))
    e(valu('v_bfe_u32', t1, V(0), 2, 2))
    e(valu('v_lshl_add_u32', t0, t1, 2, t0))
    e(valu('v_lshrrev_b32', t1, 4, V(0)))
    e(valu('v_lshl_add_u32', t0, t1, 6, t0))
    e(valu('v_lshlrev_b32', t0, 4, t0))
    e(valu('v_and_b32', t1, 1, V(0)))
    e(valu('v_lshl_add_u32', A.vV0, t1, 3, t0))
    e(valu('v_xor_b32', A.vV1, 32, A.vV0))
    e(salu('s_mul_i32', 's54', S_W, 12288))
    e(salu('s_add_u32', 's54', 's54', H_BASE))
    e(valu('v_lshlrev_b32', t0, 4, V(0)))
    e(valu('v_add_u32', A.vH, 's54', t0))
    e(valu('v_mov_b32', A.vO, t0))
    e(salu('s_mov_b32', 's60', THR))


class P:
    vKd, vVd, vWd, vX, vW0, vW1, vH0, vH1, vBw, vBr = V(2), V(3), V(4), V(5), V(6), V(7), V(8), V(9), V(10), V(11)
    T0, T1 = V(1), V(12)
    PK = 12
    F = 16
    ACC = 32
    XF = 128
    X = 152
    vX1 = V(200)
    vBr1 = V(201)
    vBw2 = V(202)

    @staticmethod
    def acc(qt, i, t): return P.ACC + ((qt * 4 + i) * 2 + t) * 4
    @staticmethod
    def x(M, qt, j): return P.X + ((M % 2) * 6 + qt * 2 + j) * 4
    @staticmethod
    def xf(k, qt): return P.XF + ((k % 2) * 3 + qt) * 4


def p_setup(e):
    t0, t1 = P.T0, P.T1
    kv_dma_addrs(e, P.vKd, P.vVd, t0, t1)
    e(salu('s_and_b32', 's54', S_W, 1))
    e(valu('v_and_b32', t0, 3, V(0)))
    e(valu('v_xor_b32', t0, 's54', t0))
    e(valu('v_lshrrev_b32', t1, 4, V(0)))
    e(valu('v_lshl_add_u32', t0, t1, 2, t0))
    e(valu('v_lshlrev_b32', t0, 4, t0))
    e(valu('v_bfe_u32', t1, V(0), 2, 2))
    e(valu('v_lshl_add_u32', t0, t1, 13, t0))
    e(salu('s_lshl_b32', 's54', S_W, 16))
    e(valu('v_add_u32', P.vWd, 's54', t0))
    e(salu('s_and_b32', 's54', 's34', 3))
    e(salu('s_lshl_b32', 's54', 's54', 1))
    e(salu('s_add_u32', 's54', 's54', 's35'))
    if not OPT.get('rot'): e(salu('s_mov_b32', 's54', 0))
    e(salu('s_lshl_b32', 's54', 's54', 7))
    for m in range(9):
        e(salu('s_sub_u32', 's55', 's54', 1152))
        e(salu('s_cmp_ge_u32', 's54', 1152))
        e(salu('s_cselect_b32', f's{40 + m}', 's55', 's54'))
        e(salu('s_add_u32', 's54', f's{40 + m}', 128))
    e(salu('s_mul_i32', 's54', S_W, 48 * 1152))
    e(valu('v_and_b32', t0, 7, V(0)))
    e(valu('v_lshrrev_b32', t1, 3, V(0)))
    e(valu('v_mul_u32_u24', t1, 1152, t1))
    e(valu('v_lshl_add_u32', t0, t0, 4, t1))
    e(valu('v_add_u32', P.vX, 's54', t0))
    e(valu('v_xor_b32', t0, 32, P.vX))
    e(valu('v_add_u32', P.vX1, 8 * 1152, t0))


def p_setup2(e):
    t0, t1 = P.T0, P.T1
    e(salu('s_lshl_b32', 's54', S_W, 12))
    e(salu('s_add_u32', 's54', 's54', XB_BASE))
    e(valu('v_and_b32', t0, 3, V(0)))
    e(valu('v_lshrrev_b32', t1, 3, V(0)))
    e(valu('v_lshl_add_u32', t0, t1, 2, t0))
    e(valu('v_lshlrev_b32', t0, 4, t0))
    e(valu('v_bfe_u32', t1, V(0), 2, 1))
    e(valu('v_xor_b32', t1, 1, t1))
    e(valu('v_mul_u32_u24', t1, 1024 + 64, t1))
    e(valu('v_xor_b32', t0, t0, t1))
    e(valu('v_add_u32', P.vBw, 's54', t0))
    e(valu('v_and_b32', t1, 1024, t1))
    e(valu('v_add_u32', P.vBw2, P.vBw, t1))
    e(valu('v_bfe_u32', t0, V(0), 3, 1))
    e(valu('v_lshlrev_b32', t0, 1, t0))
    e(valu('v_lshrrev_b32', t1, 4, V(0)))
    e(valu('v_xor_b32', t0, t0, t1))
    e(valu('v_and_b32', t1, 15, V(0)))
    e(valu('v_lshl_add_u32', t0, t1, 2, t0))
    e(valu('v_lshlrev_b32', t0, 4, t0))
    e(valu('v_add_u32', P.vBr, 's54', t0))
    e(valu('v_xor_b32', P.vBr1, 64, P.vBr))
    e(valu('v_and_b32', t0, 3, V(0)))
    e(valu('v_bfe_u32', t1, V(0), 4, 1))
    e(valu('v_xor_b32', t0, t0, t1))
    e(valu('v_bfe_u32', t1, V(0), 2, 2))
    e(valu('v_lshl_add_u32', t0, t1, 2, t0))
    e(valu('v_lshrrev_b32', t1, 4, V(0)))
    e(valu('v_lshl_add_u32', t0, t1, 7, t0))
    e(valu('v_lshlrev_b32', t0, 4, t0))
    e(valu('v_and_b32', t1, 1, V(0)))
    e(valu('v_lshl_add_u32', t0, t1, 3, t0))
    e(valu('v_add_u32', P.vW0, WQ_BASE, t0))
    e(valu('v_xor_b32', P.vW1, 8, P.vW0))
    e(salu('s_mul_i32', 's54', S_W, 12288))
    e(salu('s_add_u32', 's54', 's54', H_BASE))
    e(valu('v_lshlrev_b32', t0, 4, V(0)))
    e(valu('v_bfe_u32', t1, V(0), 4, 1))
    e(valu('v_lshl_add_u32', t0, t1, 3, t0))
    e(valu('v_add_u32', P.vH0, 's54', t0))
    e(valu('v_xor_b32', P.vH1, 8, P.vH0))
    e(salu('s_mov_b32', 's61', CSCALE))


def wq_dma(k):
    h, j = divmod(k, 18)
    so = (j & 1) * 262144 + h * 256
    pol = OPT.get('wqpol', '')
    if OPT.get('rot') == 2 and h == 0:
        a66 = [salu('s_mov_b32', 's66', j * 262144)]
    else:
        a66 = [salu('s_lshl_b32', 's66', f's{40 + j // 2}', 12), salu('s_add_u32', 's66', 's66', so)]
    return [salu('s_add_u32', 'm0', 's56', WQ_BASE + WSLOT[k] * 8192)] + a66 + [dma(P.vWd, SRD_WQ, 's66', 0, tag=('W', k), pol=pol),
            salu('s_add_u32', 's67', 's66', 32768 - 1024), dma(P.vWd, SRD_WQ, 's67', 1024, tag=('W', k), pol=pol)]


def x_load(M, idx):
    qt, j = divmod(idx, 2)
    so = f's{40 + M % 9}'
    pre = []
    if M >= 11:
        pre.append(wait(lg=('xw', M - 2, idx)))
    if OPT.get('rot') == 2 and M < 9:
        pre.append(salu('s_mov_b32', 's64', M * 128 + qt * 18432))
        so = 's64'
    elif qt:
        pre.append(salu('s_add_u32', 's64', so, qt * 18432))
        so = 's64'
    return pre + [buf_load(V(P.x(M, qt, j), 4), P.vX1 if j else P.vX, SRD_X, so, 0, tag=('X', M, idx), pol=OPT.get('xpol', ''))]


def x_write(M, idx):
    qt, j = divmod(idx, 2)
    va, off = ((P.vBw, 0), (P.vBw, 2048), (P.vBw2, 1024))[qt]
    return [wait(vm=('X', M, idx)), ds_write('ds_write_b128', va, V(P.x(M, qt, j), 4), off + j * 512, tag=('xw', M, idx))]


def x_read_even(M, qt):
    return [ds_read('ds_read_b128', V(P.xf(0, qt), 4), P.vBr1, (1024, 3072, 3072)[qt], tag=('xf', 2 * M))]


def x_read_odd(M):
    return [ds_read('ds_read_b128', V(P.xf(1, qt), 4), P.vBr, (0, 2048, 1024)[qt], tag=('xf', 2 * M + 1)) for qt in range(3)]


def q_handoff_tile(qt, i, t, n):
    a = P.acc(qt, i, t)
    pk = P.PK + (n % 2) * 2
    ops = [valu('v_mul_f32', V(a + r), 's61', V(a + r)) for r in range(4)]
    ops.append(valu('v_cvt_pk_bf16_f32', V(pk), V(a), V(a + 1)))
    ops.append(valu('v_cvt_pk_bf16_f32', V(pk + 1), V(a + 2), V(a + 3)))
    ops.append(ds_write('ds_write_b64', P.vH0 if t == 0 else P.vH1, V(pk, 2), (qt * 4 + i) * 1024, tag='hw'))
    return ops


class G2:
    def __init__(self, name, cset, order, o, acc, F, PK, vT0, vT1, vS, slot_off, sstore):
        self.name, self.cset, self.order, self.o = name, cset, order, o
        self.ACC, self.F, self.PK, self.vT0, self.vT1, self.vS = acc, F, PK, vT0, vT1, vS
        self.slot_off = slot_off
        self.sstore = sstore
        self.fr = [(u, kb, nt) for u in range(36) for kb in range(4) for nt in range(2)]

    def acc(self, qt, nt): return self.ACC + (qt * 2 + nt) * 4

    def dma(self, u, vD):
        p, hi = divmod(u, 4)
        so = self.order[hi] * 128 * 1152 + self.cset * 576
        pol = OPT.get('wopol', '')
        return [salu('s_add_u32', 'm0', 's56', self.slot_off(u)[0]), salu('s_add_u32', 's66', f's{40 + p}', so),
                dma(vD, SRD_WO, 's66', 0, tag=('U', self.name, u), pol=pol),
                salu('s_add_u32', 's67', 's66', 18432 - 1024), dma(vD, SRD_WO, 's67', 1024, tag=('U', self.name, u), pol=pol)]

    def rd(self, n):
        if n >= len(self.fr):
            return []
        u, kb, nt = self.fr[n]
        buf = self.F + (n % 4) * 4
        va = self.vT0 if nt == 0 else self.vT1
        off = self.slot_off(u)[1] + kb * 2048
        return [ds_read('ds_read_b64_tr_b16', V(buf, 2), va, off, tag=('gf', n)),
                ds_read('ds_read_b64_tr_b16', V(buf + 2, 2), va, off + 1024, tag=('gf', n))]

    def start(self):
        return self.rd(0) + self.rd(1) + self.rd(2)

    def unit(self, u, atoms=(), otag=None):
        out = []
        q = list(atoms)
        if getattr(self, 'pend', None):
            q.insert(len(q) // 2, self.pend.pop(0))
        p, hi = divmod(u, 4)
        h = self.order[hi]
        for kb in range(4):
            for nt in range(2):
                n = u * 8 + kb * 2 + nt
                tags = [('gf', n)]
                if otag and nt == 0:
                    tags.append(otag(kb))
                out.append(wait(lg=tags))
                for qt in range(3):
                    d = self.acc(qt, nt)
                    out.append(mfma(d, self.F + (n % 4) * 4, self.o(h, qt, kb), None if (hi == 0 and kb == 0) else d))
                    if qt == 0:
                        out.extend(self.rd(n + 3))
                    elif q:
                        out.extend(q.pop(0))
        for x in q:
            out.extend(x)
        if hi == 3:
            sts = []
            for qt in range(3):
                pk = self.PKS[qt]
                for t2 in range(2):
                    a = self.acc(qt, t2)
                    out.append(valu('v_cvt_pk_bf16_f32', V(pk + 2 * t2), V(a), V(a + 1)))
                    out.append(valu('v_cvt_pk_bf16_f32', V(pk + 2 * t2 + 1), V(a + 2), V(a + 3)))
                st = [] if OPT.get('nopst') else [buf_store(V(pk, 4), self.vS, SRD_WS, self.sstore, qt * 1024, tag=('st', self.name, p), pol=OPT.get('ppol', 'sc1').replace('+', ' '))]
                if qt == 2:
                    st += [salu('s_add_u32', self.sstore, self.sstore, 3072), salu('s_sub_u32', 's55', self.sstore, 27648),
                           salu('s_cmp_ge_u32', self.sstore, 's75'), salu('s_cselect_b32', self.sstore, 's55', self.sstore)]
                sts.append(st)
            if p == 8 or OPT.get('stburst'):
                for st in sts:
                    out.extend(st)
            else:
                self.pend = sts
        return out


def g2_setup(e, cset, vT0, vT1, vS, base, t0, t1, sstore):
    e(valu('v_bfe_u32', t0, V(0), 1, 1))
    e(valu('v_bfe_u32', t1, V(0), 4, 1))
    e(valu('v_lshl_add_u32', t0, t1, 1, t0))
    e(valu('v_lshrrev_b32', t1, 2, V(0)))
    e(valu('v_lshl_add_u32', t0, t1, 2, t0))
    e(valu('v_lshlrev_b32', t0, 4, t0))
    e(valu('v_and_b32', t1, 1, V(0)))
    e(valu('v_lshl_add_u32', t0, t1, 3, t0))
    e(valu('v_add_u32', vT0, base, t0))
    e(valu('v_xor_b32', vT1, 32, vT0))
    e(valu('v_lshlrev_b32', vS, 4, V(0)))
    e(salu('s_mul_i32', sstore, S_ID, 221184))
    e(salu('s_mul_i32', 's54', S_W, 2 * 27648))
    e(salu('s_add_u32', sstore, sstore, 's54'))
    e(salu('s_add_u32', sstore, sstore, PART_WS_OFF + cset * 27648))
    e(salu('s_add_u32', 's75', sstore, 27648))
    e(salu('s_and_b32', 's54', 's34', 3 if OPT.get('prot', 1) else 0))
    e(salu('s_mul_i32', 's55', 's54', 2 * 3072))
    e(salu('s_add_u32', sstore, sstore, 's55'))
    if cset == 1:
        e(salu('s_lshl_b32', 's54', 's54', 7))
        for m in range(9):
            e(salu('s_sub_u32', 's55', 's54', 576))
            e(salu('s_cmp_ge_u32', 's54', 576))
            e(salu('s_cselect_b32', f's{40 + m}', 's55', 's54'))
            e(salu('s_add_u32', 's54', f's{40 + m}', 64))


def wo_vd(e, vD, t0, t1):
    e(valu('v_bfe_u32', t1, V(0), 4, 1))
    e(valu('v_lshlrev_b32', t1, 1, t1))
    e(valu('v_and_b32', t0, 3, V(0)))
    e(valu('v_xor_b32', t0, t0, t1))
    e(valu('v_lshlrev_b32', t0, 4, t0))
    e(valu('v_lshrrev_b32', t1, 2, V(0)))
    e(valu('v_mul_u32_u24', t1, 1152, t1))
    e(valu('v_add_u32', t0, t0, t1))
    e(salu('s_mul_i32', 's54', S_W, 32 * 1152))
    e(valu('v_add_u32', vD, 's54', t0))


A_RING = [0, 1, 2, 4, 3, 5, 6, 7]
P_PARK = {0: 208, 1: 160, 2: 112, 3: 64}
A_PARK = {3: 56, 2: A.Q, 0: 152, 1: 200}


def h_read(base, vaddr, tag):
    return [ds_read('ds_read_b128', V(base + (qt * 4 + i) * 4, 4), vaddr, (qt * 4 + i) * 1024, tag=(tag, i)) for i in range(4) for qt in range(3)]


def h_write(base, vaddr, tag):
    return [ds_write('ds_write_b128', vaddr, V(base + (qt * 4 + i) * 4, 4), (qt * 4 + i) * 1024, tag=tag) for i in range(4) for qt in range(3)]


def split_atoms(ops):
    at, cur = [], []
    for o in ops:
        cur.append(o)
        if o.kind in ('dma', 'vm'):
            at.append(cur); cur = []
    assert not cur
    return at


def p_wread(n):
    k, f = divmod(n, 8)
    i, t = f >> 1, f & 1
    buf = P.F + (n % 4) * 4
    va = P.vW0 if t == 0 else P.vW1
    off = WSLOT[k] * 8192 + i * 256
    return [ds_read('ds_read_b64_tr_b16', V(buf, 2), va, off, tag=('pf', n)),
            ds_read('ds_read_b64_tr_b16', V(buf + 2, 2), va, off + 1024, tag=('pf', n))]


def reduce_frag(ld, acc, vS, vO, s_src, s_dst, t0, t1, tagp):
    loads = []
    for hg in range(8):
        loads.append(salu('s_add_u32', 's64', s_src, hg * 221184))
        loads.append(buf_load(V(ld + 4 * hg, 4), vS, SRD_WS, 's64', 0, tag=(tagp, hg), pol='sc1'))
    comp = []
    for hg in range(8):
        comp.append(wait(vm=(tagp, hg)))
        for r in range(4):
            src = V(ld + 4 * hg + r)
            if hg == 0:
                comp.append(valu('v_lshlrev_b32', V(acc + 2 * r), 16, src))
                comp.append(valu('v_and_b32', V(acc + 2 * r + 1), 0xffff0000, src))
            else:
                comp.append(valu('v_lshlrev_b32', t0, 16, src))
                comp.append(valu('v_and_b32', t1, 0xffff0000, src))
                comp.append(valu('v_add_f32', V(acc + 2 * r), V(acc + 2 * r), t0))
                comp.append(valu('v_add_f32', V(acc + 2 * r + 1), V(acc + 2 * r + 1), t1))
    for r in range(4):
        comp.append(valu('v_cvt_pk_bf16_f32', V(ld + r), V(acc + 2 * r), V(acc + 2 * r + 1)))
    comp.append(buf_store(V(ld, 2), vO, SRD_OUT, s_dst, 0))
    comp.append(buf_store(V(ld + 2, 2), vO, SRD_OUT, s_dst, 32))
    return loads, comp


SRD_OUT, SRD_DBG = 's[8:11]', 's[12:15]'


def red_setup(e, vO, t0):
    e(salu('s_mov_b32', 's8', 's4')); e(salu('s_mov_b32', 's9', 's5'))
    e(salu('s_mov_b32', 's10', 16 * 192 * 1152 * 2)); e(salu('s_mov_b32', 's11', 0x20000))
    e(salu('s_mov_b32', 's12', 's72')); e(salu('s_mov_b32', 's13', 's73'))
    e(salu('s_mov_b32', 's14', 256)); e(salu('s_mov_b32', 's15', 0x20000))
    e(salu('s_and_b32', 's54', 's35', 3))
    e(salu('s_lshr_b32', 's55', 's35', 2))
    e(salu('s_mul_i32', 's68', 's34', 8 * 221184))
    e(salu('s_mul_i32', 's64', 's54', 2 * 27648))
    e(salu('s_add_u32', 's68', 's68', 's64'))
    e(salu('s_mul_i32', 's64', 's55', 27648))
    e(salu('s_add_u32', 's68', 's68', 's64'))
    if PART_WS_OFF: e(salu('s_add_u32', 's68', 's68', PART_WS_OFF))
    e(salu('s_mul_i32', 's69', 's37', 192 * 2304))
    e(salu('s_mul_i32', 's64', 's54', 48 * 2304))
    e(salu('s_add_u32', 's69', 's69', 's64'))
    e(salu('s_mul_i32', 's64', 's36', 1152))
    e(salu('s_add_u32', 's69', 's69', 's64'))
    e(salu('s_mul_i32', 's64', 's55', 576))
    e(salu('s_add_u32', 's69', 's69', 's64'))
    e(salu('s_lshl_b32', 's70', 's34', 2))
    e(valu('v_and_b32', vO, 15, V(0)))
    e(valu('v_mul_u32_u24', vO, 2304, vO))
    e(valu('v_lshrrev_b32', t0, 4, V(0)))
    e(valu('v_lshl_add_u32', vO, t0, 3, vO))


def signal(lab, t0, t1):
    return [salu('s_cmp_eq_u32', S_WAVE, 4), raw(f's_cbranch_scc0 {lab}', 'branch'),
            salu('s_lshl_b32', 's64', 's35', 2), salu('s_lshl_b32', 's64', 1, 's64'),
            valu('v_mov_b32', t0, 's64'), valu('v_mov_b32', t1, 0), raw('s_mov_b64 exec, 1'),
            Ins(f'buffer_atomic_add {t0}, {t1}, {SRD_DBG}, s70 offen sc1', 'salu', rd=[t0.n, t1.n]),
            raw('s_mov_b64 exec, -1'), label(lab)]


def poll(lab, level, t0, t1):
    c = [valu('v_mov_b32', t1, 0), salu('s_mov_b32', 's65', 0), label(lab),
         raw(f'buffer_load_dword {t0}, {t1}, {SRD_DBG}, s70 offen sc1'), raw('s_waitcnt vmcnt(0)'),
         valu('v_readfirstlane_b32', 's64', t0)]
    if level == 1:
        c += [nop(2), salu('s_lshr_b32', 's66', 's64', 1), salu('s_or_b32', 's64', 's64', 's66'), salu('s_and_b32', 's64', 's64', 0x11111111),
              salu('s_cmp_eq_u32', 's64', 0x11111111)]
    else:
        c += [nop(2), salu('s_cmp_eq_u32', 's64', 0x22222222)]
    c += [raw(f's_cbranch_scc1 {lab}_ok', 'branch'), salu('s_add_u32', 's65', 's65', 1), raw('s_sleep 2'),
          salu('s_cmp_lt_u32', 's65', 1 << 22), raw(f's_cbranch_scc1 {lab}', 'branch'), label(f'{lab}_ok')]
    return c


def frag_offsets(sidx):
    return [salu('s_lshl_b32', 's66', sidx, 10), salu('s_add_u32', 's66', 's66', 's68'),
            salu('s_mul_i32', 's64', sidx, 43), salu('s_lshr_b32', 's64', 's64', 7),
            salu('s_mul_i32', 's65', 's64', 3), salu('s_sub_u32', 's65', sidx, 's65'),
            salu('s_mul_i32', 's65', 's65', 16 * 2304), salu('s_lshl_b32', 's64', 's64', 6),
            salu('s_add_u32', 's67', 's69', 's65'), salu('s_add_u32', 's67', 's67', 's64')]


def build_k1():
    INK = OPT.get('inred', 1)
    head = []
    e = head.append
    common_prologue(e)
    head += q0_phase()
    e(salu('s_cmp_ge_u32', S_WAVE, 4))
    e(raw('s_cbranch_scc0 L_A', 'branch'))
    e(raw('s_branch L_P', 'branch'))

    names = [('IT', t) for t in range(-1, 64)]
    quota = {n: 0 for n in names}
    T0 = 0
    QE, QN, QC = OPT.get('qe', 9), OPT.get('qn', 9), OPT.get('qc', 9)
    def fill(ts, total, fixed):
        rest = [t for t in ts if t not in fixed]
        rem = total - sum(fixed.values())
        for i, t in enumerate(rest):
            quota[('IT', t)] = (rem * (i + 1)) // len(rest) - (rem * i) // len(rest)
        for t, v in fixed.items():
            quota[('IT', t)] = v
    if OPT.get('kal', 0):
        for t in range(0, 45): quota[('IT', t)] = 8
        for t in (2, 4, 6, 8, 10, 18, 23, 34, 39): quota[('IT', t)] = 16
    else:
        fill(range(0, 14), 150, {0: 8})
        fill(range(14, 30), 144, {15: QN, 16: QE, 28: QC, 29: QC})
        fill(range(30, 46), 138, {31: QN, 32: QE, 44: QC, 45: 0})
    start = {}
    c = 144
    for n in names:
        start[n] = c; c += quota[n]
    assert c == 576
    iv_of = {}
    for idx, n in enumerate(names):
        for fr in range(start[n], start[n] + quota[n]):
            iv_of[fr] = idx
    hdead = {1: ('IT', 13), 2: ('IT', 29), 3: ('IT', 45)}
    for hq in (1, 2): assert start[hdead[hq]] + quota[hdead[hq]] >= 144 * hq + 150
    front = {}

    NG = 576 * 3
    gaps = [[] for _ in range(NG + 1)]

    ZF = OPT.get('zone', 62)
    pref = [False] * (NG + 64)
    for n in names:
        if n[0] == 'IT':
            for g in range(start[n] * 3, start[n] * 3 + (quota[n] * 3 * ZF) // 100):
                pref[g] = True
        else:
            for g in range(start[n] * 3, (start[n] + quota[n]) * 3):
                pref[g] = True

    def chain(atoms, lo, hi, zone=True):
        n = len(atoms)
        Z = [g for g in range(lo, hi + 1) if pref[g]] if zone else []
        if len(Z) * 2 < n or not Z:
            Z = list(range(lo, hi + 1))
        for a, at in enumerate(atoms):
            g = Z[(a * (len(Z) - 1)) // max(n - 1, 1)]
            gaps[min(g, NG)].append(at)
    for k in range(18, 72):
        M = k // 2
        g0 = k * 24
        at = []
        if k % 2 == 0:
            at.append(x_read_odd(M))
            lw = [x_write(M + 1, i) for i in range(3)] if M + 1 < 36 else []
            ll = [x_load(M + 2, i) for i in range(3, 6)] if M + 2 < 36 else []
            while lw or ll:
                if ll: at.append(ll.pop(0))
                if lw: at.append(lw.pop(0))
        elif M + 1 < 36:
            ll = [x_load(M + 3, i) for i in range(3)] if M + 3 < 36 else [[], [], []]
            at += [x_write(M + 1, 3), x_read_even(M + 1, 0) + x_read_even(M + 1, 1), ll[0], x_write(M + 1, 4), ll[1], x_write(M + 1, 5),
                   x_read_even(M + 1, 2), ll[2]]
        if OPT.get('kal', 0) and any(start[n] == k * 8 and quota[n] for n in names):
            front[k * 8] = at
        else:
            chain(at, g0 + 1, g0 + 21)
        if k % 18 == 17:
            cv = []
            nn = 0
            for f in range(8):
                for qt in range(3):
                    o = q_handoff_tile(qt, f >> 1, f & 1, nn); nn += 1
                    cv += [o[:4], o[4:]]
            chain(cv, g0 + 6, g0 + 39, zone=False)
        if k in (52, 70):
            hr = [valu('v_and_b32', P.T0, ~15, P.vH0)] + h_read(P_PARK[0 if k == 52 else 1], P.T0, ('po', k))
            chain([hr[:4], hr[4:7], hr[7:10], hr[10:]], g0 + 8, g0 + 20)

    pslot = {}
    free = list(range(6))
    for u in range(36):
        if u == 13: free += [6, 7]
        pslot[u] = None
    seq = list(range(6))
    gA = G2('A', 0, [3, 2, 0, 1], lambda h, qt, i: A_PARK[h] + (qt * 4 + i) * 4, acc=8, F=32, PK=0, vT0=V(2), vT1=V(3), vS=V(4),
            slot_off=lambda u: (A_RING[u % 8] * 8192, A_RING[u % 8] * 8192), sstore='s74')
    gP = G2('P', 1, [0, 1, 2, 3], lambda h, qt, i: P_PARK[h] + (qt * 4 + i) * 4, acc=32, F=16, PK=0, vT0=V(6), vT1=V(7), vS=V(5),
            slot_off=lambda u: (WQ_BASE + pslot[u] * 8192, pslot[u] * 8192), sstore='s74')
    gA.PKS = [48, 52, 248]
    gP.PKS = [56, 60, 12]
    p_issue = {}
    fl = list(range(6))
    nxt = 0
    for u in range(5):
        pslot[u] = fl.pop(0); nxt += 1
    for sv in range(36):
        if sv >= 1:
            fl.append(pslot[sv - 1])
        if sv == 7:
            fl += [6, 7]
        lst = []
        while fl and nxt < 36 and len(lst) < 2:
            pslot[nxt] = fl.pop(0); lst.append(nxt); nxt += 1
        p_issue[sv] = lst

    w_issue = {}
    fl = [3]
    wn = 18
    for idx in range(len(names)):
        if idx == 1: fl += [0, 1, 2]
        for k in range(18, wn):
            if iv_of[k * 8 + 7] == idx - 1:
                fl.append(WSLOT[k])
        lst = []
        while wn < 72 and fl:
            WSLOT[wn] = fl.pop(0); lst.append(wn); wn += 1
        w_issue[idx] = lst

    pc = [label('L_P')]
    if OPT.get('prioP'): pc.append(salu('s_setprio', OPT['prioP']))
    pc.append(salu('s_mul_i32', 's54', S_W, 6144))
    pc.append(salu('s_add_u32', 's54', 's54', QT_BASE))
    pc.append(valu('v_lshlrev_b32', P.T0, 4, V(0)))
    pc.append(valu('v_add_u32', P.T0, 's54', P.T0))
    for i in range(2):
        for qt in range(3):
            pc.append(ds_write('ds_write_b128', P.T0, V(A.q(qt, i), 4), (qt * 2 + i) * 1024, tag='qt'))
    pc.append(wait(vm=[('K0', 0)], lg='qt'))
    pc.append(barrier())
    p_setup(pc.append)
    for i in range(6): pc.extend(x_load(9, i))
    for i in range(6): pc.extend(x_load(10, i))
    p_setup2(pc.append)
    vHl = V(8)
    published = set()
    pc.append(salu('s_mul_i32', 's75', 's37', 36864))
    pc.append(salu('s_mul_i32', 's55', S_W, 9216))
    pc.append(salu('s_add_u32', 's75', 's75', 's55'))
    pc.append(salu('s_sub_u32', 's75', 's75', 9 * 128))
    pc.append(valu('v_lshlrev_b32', V(203), 7, V(0)))
    pc.append(valu('v_mov_b32', V(204), 0x7fffff00))
    pc.append(valu('v_cmp_gt_u32', 'vcc', 9, V(0)))
    pc.append(valu('v_cndmask_b32', V(203), V(204), V(203), 'vcc'))
    vD = V(4)
    rd_next = 144
    for idx, n in enumerate(names):
        side = []
        need = []
        post = []
        lg = None
        t = n[1] if n[0] == 'IT' else None
        f0, q = start[n], quota[n]
        for k in w_issue[idx]:
            side += split_atoms(wq_dma(k))
        newpub = set()
        if idx + 1 < len(names):
            n2 = names[idx + 1]
            newpub = {fr // 8 for fr in range(start[n2], start[n2] + quota[n2])}
            need += [('W', k) for k in sorted(newpub)]
        if n in hdead.values():
            lg = 'hw'
        if n[0] == 'IT':
            if 0 <= t and t + 4 <= 63:
                side += split_atoms(k_dma(P.vKd, t + 4))
            if 2 <= t and t + 2 <= 63:
                side += split_atoms(v_dma(P.vVd, t + 2))
            if 4 <= t + 1 <= 63:
                need.append(('V', t + 1))
            if 4 <= t + 3 <= 63:
                need.append(('K', t + 3))
            if OPT.get('wot', 'p') == 'p' and t in range(3, 35, 4):
                side.append([salu('s_add_u32', 's75', 's75', 9 * 128), buf_load(V(204), V(203), SRD_WO, 's75', 0)])
            if t == -1:
                need += [('V0', 0), ('K0', 2), ('V0', 2)]
            if t == T0 - 1:
                for i in range(4): post.extend(x_write(9, i))
                post.extend(x_read_even(9, 0) + x_read_even(9, 1) + x_write(9, 4) + x_write(9, 5) + x_read_even(9, 2))
                for i in range(3): post.extend(x_load(11, i))
            if t == 45:
                for at in gaps[NG]: post.extend(at)
            if t == 47:
                wo_vd(post.append, vD, P.T0, V(12))
                g2_setup(post.append, 1, gP.vT0, gP.vT1, gP.vS, WQ_BASE, P.T0, V(12), 's74')
                post.append(valu('v_and_b32', vHl, ~15, P.vH0))
            if t == 50:
                post += h_read(P_PARK[2], vHl, ('po', t)); lg = 'all'
            if 54 <= t <= 58:
                post += gP.dma(t - 54, vD)
            if t == 59:
                need += [('U', 'P', 0), ('U', 'P', 1)]
            if t == 60:
                post += gA.dma(0, vD)
            if t in (61, 62, 63):
                v = t - 61
                if t == 61:
                    post += gP.start()
                at = []
                for u in p_issue[v]:
                    at += split_atoms(gP.dma(u, vD))
                for u in ([1], [2, 3], [4, 5])[v]: at += split_atoms(gA.dma(u, vD))
                post += gP.unit(v, at)
                need.append(('U', 'P', v + 2))
                if t == 63:
                    need += [('U', 'A', 0), ('U', 'A', 1)]
        boost = OPT.get('boost') and n[0] == 'IT' and t in (15, 16, 31, 32)
        if boost: pc.append(salu('s_setprio', 2))
        if q:
            while rd_next < min(f0 + 3, 576) and rd_next // 8 in published:
                pc.extend(p_wread(rd_next)); rd_next += 1
            tgt = {}
            if OPT.get('kal', 0):
                if OPT.get('fprio'): pc.append(salu('s_setprio', 2))
                for at in front.get(f0, []) + side: pc.extend(at)
                if OPT.get('fprio'): pc.append(salu('s_setprio', OPT.get('mprio', 0)))
            else:
                if side:
                    pc.extend(side.pop(0))
                ng = max(1, (q * 3 * ZF) // 100)
                for a, at in enumerate(side):
                    tgt.setdefault((a * ng) // len(side), []).append(at)
            for fr in range(f0, f0 + q):
                k, f = divmod(fr, 8)
                i, tt = f >> 1, f & 1
                pc.append(wait(lg=[('pf', fr)] + ([('xf', k)] if f == 0 else [])))
                rd = []
                if rd_next == fr + 3 and rd_next < 576 and rd_next // 8 in published:
                    rd = p_wread(rd_next); rd_next += 1
                for qt in range(3):
                    d = P.acc(qt, i, tt)
                    pc.append(mfma(d, P.F + (fr % 4) * 4, P.xf(k, qt), d if k % 18 else None))
                    if qt < len(rd): pc.append(rd[qt])
                    for at in gaps[fr * 3 + qt]:
                        pc.extend(at)
                    for at in tgt.get((fr - f0) * 3 + qt, []):
                        pc.extend(at)
                if OPT.get('pfine') == t and fr - f0 < 10: pc.extend(stamp(fr - f0 + 2))
        else:
            for at in side:
                pc.extend(at)
        pc.extend(post)
        if boost: pc.append(salu('s_setprio', 0))
        pc.append(wait(vm=need, lg=lg))
        pc.append(barrier())
        published |= newpub
        if OPT.get('novm') and n == ('IT', 0): novm0 = len(pc)
        if OPT.get('novm') and n == ('IT', 52):
            for x in pc[novm0:]:
                if x.kind in ('dma', 'vm'):
                    kk = 'kv' if x.tag and x.tag[0] in 'KV' else ('w' if x.tag and x.tag[0] == 'W' else 'x')
                    if OPT['novm'] == 'all' or kk in OPT['novm'].split('+'):
                        x.text = 's_nop 0'
        st = {('IT', -1): 3, ('IT', 0): 4, ('IT', 16): 5, ('IT', 32): 6, ('IT', 48): 7, ('IT', 63): 8}
        if OPT.get('stpro'):
            st = {('PRO', k): i + 1 for i, k in enumerate([0, 1, 3, 5, 7, 9, 11, 13, 15, 17])}; st[('HND', 0)] = 11
        if OPT.get('stit') is not None:
            st = {('IT', OPT['stit'] + i): i + 1 for i in range(11)}
        if 'stg' in OPT: st = {}
        if 'pfine' in OPT: st = {('IT', OPT['pfine'] - 1): 1}
        if n in st:
            pc.extend(stamp(st[n]))
    nost = OPT.get('stpro') or 'stit' in OPT or 'stg' in OPT or 'pfine' in OPT
    for g in range(33):
        v = g + 3
        at = []
        need = []
        for u in p_issue[v]:
            at += split_atoms(gP.dma(u, vD))
        if g == 0:
            at += split_atoms(gA.dma(6, vD))
        if g + 7 < 36:
            at += split_atoms(gA.dma(g + 7, vD))
        if v + 2 < 36:
            need.append(('U', 'P', v + 2))
        need.append(('U', 'A', g + 2 if g < 32 else 35))
        lg = None
        otag = None
        if g == 0:
            pc += h_read(P_PARK[3], vHl, 'po3')
            otag = lambda kb: ('po3', kb)
            hw = h_write(P_PARK[0], vHl, 'hw0'); at = [[x] for x in hw] + at; lg = 'hw0'
        if g == 2:
            hw = h_write(P_PARK[1], vHl, 'hw1'); at = [[x] for x in hw] + at; lg = 'hw1'
        if g == 5 and INK:
            rs = []; red_setup(rs.append, V(9), V(1)); at = [rs[i:i + 4] for i in range(0, len(rs), 4)] + at
        if g == 30 and INK:
            need.append(('st', 'P', 6))
        if g == 31 and INK:
            pc += signal('L_sig1', V(1), V(2))
        pc += gP.unit(v, at, otag)
        pc.append(wait(vm=need, lg=lg))
        pc.append(barrier())
        if 'stg' in OPT and 0 <= g - OPT['stg'] < 11: pc.extend(stamp(g - OPT['stg'] + 1))
    if not nost: pc.extend(stamp(9))
    if INK:
        pc += poll('L_poll1', 1, V(1), V(2))
        NF = 6
        lc = []
        for r in range(NF):
            pre = [salu('s_add_u32', 's71', S_W, 4 * r), salu('s_min_u32', 's71', 's71', 20)] + frag_offsets('s71') + \
                  [salu('s_mov_b32', f's{40 + r}', 's67')]
            ld, cp = reduce_frag(64 + 32 * r, 16, gP.vS, V(9), 's66', f's{40 + r}', V(1), V(2), ('r1', r))
            lc.append((pre + ld, cp))
        for r in range(NF):
            pc += lc[r][0]
        for r in range(NF):
            pc += lc[r][1]
        pc.append(wait(vm=('st', 'P', 8)))
        pc.append(barrier())
        if not nost: pc.extend(stamp(10))
        pc += signal('L_sig2', V(1), V(2))
        pc += [salu('s_cmp_ge_u32', S_W, 2), raw('s_cbranch_scc1 L_P_end', 'branch')]
        pc += poll('L_poll2p', 2, V(1), V(2))
        pc += [salu('s_add_u32', 's71', S_W, 25)] + frag_offsets('s71')
        ld, cp = reduce_frag(64, 16, gP.vS, V(9), 's66', 's67', V(1), V(2), 'r2')
        pc += ld + cp
        pc.append(label('L_P_end'))
    if not nost: pc.extend(stamp(11))
    pc.extend(stamp_out())
    pc.append(raw('s_endpgm', 'branch'))
    resolve_waits(head + pc)
    while hazards(head + pc):
        pass

    def osink(h):
        def sink(qt, i, buf):
            return [ds_write('ds_write_b128', A.vH, buf, (qt * 4 + i) * 1024, tag='ow')]
        return sink
    ag = AGen(osink)
    apro = [label('L_A')]
    e = apro.append
    if OPT.get('prioA', 1): e(salu('s_setprio', OPT.get('prioA', 1)))

    a_setup(e)
    e(salu('s_mov_b32', 's71', 0))
    e(salu('s_mul_i32', 's54', S_W, 6144))
    e(salu('s_add_u32', 's54', 's54', QT_BASE))
    e(valu('v_add_u32', A.T0, 's54', A.vO))
    e(wait(vm=[('K0', 0)]))
    e(barrier())
    for n in (0, 2):
        apro.extend(ag.read(n))
    for i in range(2):
        for qt in range(3):
            e(ds_read('ds_read_b128', V(A.q(qt, 2 + i), 4), A.T0, (qt * 2 + i) * 1024, tag='qt'))
    e(wait(lg='qt'))
    def bar(t):
        b = []
        if t == 0: b.append(wait(vm='all'))
        if t % 16 == 1: b.append(wait(lg='ow' if t > 1 else None))
        b.append(barrier())
        if t == 0: b += stamp(3)
        def cst(k):
            if not STAMPS: return []
            return [salu('s_cmp_eq_u32', 's71', OPT.get('sth', 3)), raw(f's_cbranch_scc0 L_cs{k}', 'branch')] + stamp(k) + [label(f'L_cs{k}')]
        if t % 16 == 5: b += cst(5)
        if t % 16 == 6: b = cst(6) + b + cst(7)
        return b
    apro.extend(ag.iteration(-1))
    apro.extend(ag.iteration(0, bar=bar(0))); apro.extend(stamp(4))
    bodies = []
    for h in range(4):
        b = []
        for j in range(1, 14):
            b.extend(ag.iteration(16 * h + j, bar=bar(16 * h + j)))
        b.append(salu('s_cmp_eq_u32', 's71', 3))
        b.append(raw('s_cbranch_scc1 L_A_tail', 'branch'))
        if h < 3:
            for j in (14, 15, 16):
                b.extend(ag.iteration(16 * h + j, bar=bar(16 * h + j)))
            b.append(salu('s_add_u32', 's71', 's71', 1))
            b.append(raw('s_branch L_A_loop', 'branch'))
        bodies.append(b)
    tail = [label('L_A_tail')]
    tail.extend(ag.iteration(62, bar=bar(62)))
    tail.extend(ag.iteration(63, bar=bar(63)))
    eo = epilogue_ops(osink(3), dst=lambda qt, i: A_PARK[3] + (qt * 4 + i) * 4)
    tail.extend(ag.iteration(64))
    tail.extend(eo)
    g2_setup(tail.append, 0, gA.vT0, gA.vT1, gA.vS, 0, A.T0, A.T1, 's74')
    tail.append(wait(lg='all'))
    tail.append(barrier())
    tail.extend(stamp(8))
    if OPT.get('prio2') is not None: tail.append(salu('s_setprio', OPT['prio2']))
    tail += gA.start()
    for g in range(36):
        at = []
        otag = None
        lg = None
        vmn = None
        if g == 1:
            at = [[x] for x in h_read(A_PARK[0], A.vH, 'ao0')]; lg = ('ao0', 3)
        if g == 3:
            tail += h_read(A_PARK[1], A.vH, 'ao1')
            otag = lambda kb: ('ao1', kb)
        if g == 5 and INK:
            rs = []; red_setup(rs.append, V(6), V(1)); at = [rs[i:i + 4] for i in range(0, len(rs), 4)]
        if g == 30 and INK:
            vmn = ('st', 'A', 6)
        tail += gA.unit(g, at, otag)
        if g <= 32:
            tail.append(wait(lg=lg, vm=vmn))
            tail.append(barrier())
    tail.extend(stamp(9))
    if INK:
        tail.append(wait(vm='all'))
        tail.append(barrier())
        tail.extend(stamp(10))
        tail += poll('L_poll2a', 2, V(1), V(7))
        tail += [salu('s_add_u32', 's71', S_W, 21)] + frag_offsets('s71')
        ld, cp = reduce_frag(64, 16, gA.vS, V(6), 's66', 's67', V(1), V(7), 'r2')
        tail += ld + cp
    tail.extend(stamp(11))
    tail.extend(stamp_out())
    tail.append(raw('s_endpgm', 'branch'))
    resolve_waits(head + apro + bodies[0] + bodies[1] + bodies[2] + bodies[3] + tail)
    body = fold(bodies)
    npre = len(bodies[3])
    while hazards(head + apro + body + body + body[:npre] + tail):
        pass
    rare = []
    for site, lab in rare_sites:
        rare += [label(f'TR_{site}'), raw(f's_call_b64 s[62:63], {lab}', 'branch'), raw(f's_branch RET_{site}', 'branch')]
    for var, lab in rare_variants.items():
        rc = rare_code(var, lab)
        while hazards(rc):
            pass
        rare += rc
    nb = lambda q: sum(1 for i in q if i.kind == 'barrier')
    na = nb(apro) + 3 * nb(body) + nb(body[:npre]) + nb(tail)
    assert na == nb(pc), (na, nb(pc))
    print(stats(apro, 'A pro'), file=sys.stderr); print(stats(body, 'A body'), file=sys.stderr)
    print(stats(tail, 'A tail'), file=sys.stderr); print(stats(pc, 'P'), file=sys.stderr); print(stats(rare, 'rare'), file=sys.stderr)
    lines = render(head) + render(apro) + ['.p2align 6', 'L_A_loop:'] + render(body) + render(rare) + render(tail) + ['.p2align 6'] + render(pc) + ['L_k1_end:']
    return lines

def build_k3():
    c = []
    e = c.append
    e(raw('s_cmp_ge_u32 s2, 1728')); e(raw('s_cbranch_scc0 L3_go')); e(raw('s_endpgm')); e(label('L3_go'))
    e(raw('s_load_dwordx2 s[4:5], s[0:1], 80'))
    e(raw('s_load_dwordx2 s[6:7], s[0:1], 96'))
    e(valu('v_lshrrev_b32', V(1), 6, V(0)))
    e(valu('v_readfirstlane_b32', 's16', V(1)))
    e(valu('v_and_b32', V(0), 63, V(0)))
    if OPT.get('k3x', 1):
        e(salu('s_and_b32', 's17', 's2', 7))
        e(salu('s_mul_i32', 's17', 's17', 216))
        e(salu('s_lshr_b32', 's18', 's2', 3))
        e(salu('s_add_u32', 's17', 's17', 's18'))
        e(salu('s_lshl_b32', 's17', 's17', 2))
    else:
        e(salu('s_lshl_b32', 's17', 's2', 2))
    e(salu('s_add_u32', 's17', 's17', 's16'))
    e(salu('s_mul_hi_u32', 's18', 's17', (2 ** 32 + 215) // 216))
    e(salu('s_mul_i32', 's19', 's18', 216))
    e(salu('s_sub_u32', 's19', 's17', 's19'))
    e(salu('s_mul_hi_u32', 's20', 's19', (2 ** 32 + 26) // 27))
    e(salu('s_mul_i32', 's21', 's20', 27))
    e(salu('s_sub_u32', 's21', 's19', 's21'))
    e(salu('s_mul_hi_u32', 's22', 's21', (2 ** 32 + 2) // 3))
    e(salu('s_mul_i32', 's23', 's22', 3))
    e(salu('s_sub_u32', 's23', 's21', 's23'))
    e(raw('s_waitcnt lgkmcnt(0)'))
    e(salu('s_mov_b32', 's8', 's6')); e(salu('s_mov_b32', 's9', 's7'))
    e(salu('s_mov_b32', 's10', PART_WS_OFF + 256 * 221184)); e(salu('s_mov_b32', 's11', 0x20000))
    e(salu('s_mov_b32', 's12', 's4')); e(salu('s_mov_b32', 's13', 's5'))
    e(salu('s_mov_b32', 's14', 16 * 192 * 1152 * 2)); e(salu('s_mov_b32', 's15', 0x20000))
    e(salu('s_mul_i32', 's24', 's18', 8 * 221184))
    e(salu('s_lshl_b32', 's25', 's19', 10))
    e(salu('s_add_u32', 's24', 's24', 's25'))
    e(salu('s_add_u32', 's24', 's24', PART_WS_OFF))
    e(valu('v_lshlrev_b32', V(1), 4, V(0)))
    for hg in range(8):
        e(buf_load(V(8 + 4 * hg, 4), V(1), 's[8:11]', 's24', 0, tag=('p', hg), pol=OPT.get('rpol', '').replace('+', ' ')))
        e(salu('s_add_u32', 's24', 's24', 221184))
    e(salu('s_and_b32', 's26', 's18', 15))
    e(salu('s_mul_i32', 's26', 's26', 192))
    e(salu('s_lshr_b32', 's27', 's20', 1))
    e(salu('s_mul_i32', 's27', 's27', 48))
    e(salu('s_add_u32', 's26', 's26', 's27'))
    e(salu('s_lshl_b32', 's27', 's23', 4))
    e(salu('s_add_u32', 's26', 's26', 's27'))
    e(salu('s_mul_i32', 's26', 's26', 2304))
    e(salu('s_lshr_b32', 's27', 's18', 4))
    e(salu('s_mul_i32', 's27', 's27', 1152))
    e(salu('s_add_u32', 's26', 's26', 's27'))
    e(salu('s_and_b32', 's27', 's20', 1))
    e(salu('s_mul_i32', 's27', 's27', 576))
    e(salu('s_add_u32', 's26', 's26', 's27'))
    e(salu('s_lshl_b32', 's27', 's22', 6))
    e(salu('s_add_u32', 's26', 's26', 's27'))
    e(valu('v_and_b32', V(2), 15, V(0)))
    e(valu('v_mul_u32_u24', V(2), 2304, V(2)))
    e(valu('v_lshrrev_b32', V(3), 4, V(0)))
    e(valu('v_lshl_add_u32', V(2), V(3), 3, V(2)))
    ACC = 40
    for hg in range(8):
        e(wait(vm=('p', hg)))
        for r in range(4):
            src = V(8 + 4 * hg + r)
            if hg == 0:
                e(valu('v_lshlrev_b32', V(ACC + 2 * r), 16, src))
                e(valu('v_and_b32', V(ACC + 2 * r + 1), 0xffff0000, src))
            else:
                e(valu('v_lshlrev_b32', V(4), 16, src))
                e(valu('v_and_b32', V(5), 0xffff0000, src))
                e(valu('v_add_f32', V(ACC + 2 * r), V(ACC + 2 * r), V(4)))
                e(valu('v_add_f32', V(ACC + 2 * r + 1), V(ACC + 2 * r + 1), V(5)))
    for r in range(4):
        e(valu('v_cvt_pk_bf16_f32', V(8 + r), V(ACC + 2 * r), V(ACC + 2 * r + 1)))
    e(buf_store(V(8, 2), V(2), 's[12:15]', 's26', 0))
    e(buf_store(V(10, 2), V(2), 's[12:15]', 's26', 32))
    e(raw('s_endpgm', 'branch'))
    resolve_waits(c)
    while hazards(c):
        pass
    return render(c)


def kd(name, vgpr, sgpr=102):
    return ['.p2align 6', f'.amdhsa_kernel {name}', f'  .amdhsa_next_free_vgpr {vgpr}', f'  .amdhsa_next_free_sgpr {sgpr}',
            f'  .amdhsa_accum_offset {(vgpr + 3) // 4 * 4}', '  .amdhsa_group_segment_fixed_size 0', '  .amdhsa_kernarg_size 104',
            '  .amdhsa_user_sgpr_count 2', '  .amdhsa_user_sgpr_kernarg_segment_ptr 1', '  .amdhsa_system_sgpr_workgroup_id_x 1',
            '.end_amdhsa_kernel']


def kern(name, lines):
    return [f'.globl {name}', '.p2align 8', f'.type {name},@function', f'{name}:'] + lines


if __name__ == '__main__':
    which = sys.argv[2] if len(sys.argv) > 2 else '123'
    STAMPS = 's' in which
    for kv in sys.argv[3:]:
        k, v = kv.split('='); OPT[k] = int(v) if v.lstrip('-').isdigit() else v
    out = []
    single = '3' not in which
    k1 = NAME + '_kernel' if single else 'k1_kernel'
    if single:
        out.append(f'; @launch grid=(256,1,1) block=(512,1,1) lds={LDS_BYTES}')
    else:
        OPT['inred'] = 0
        out.append(f'; @launch kernel=k1_kernel grid=(256,1,1) block=(512,1,1) lds={LDS_BYTES}')
        out.append(f'; @launch kernel=k3_kernel grid=(1728,1,1) block=(256,1,1) lds=0')
    out += ['.amdgcn_target "amdgcn-amd-amdhsa--gfx950"', '.text']
    out += kern(k1, build_k1())
    if not single: out += kern('k3_kernel', build_k3())
    out += ['.section .rodata,"a"'] + kd(k1, 256) + ([] if single else kd('k3_kernel', 48, 32))
    open(sys.argv[1], 'w').write('\n'.join(out) + '\n')
```

```python
import sys, math
sys.path.insert(0, 'gen')
from asmlib import *

NAME = 'concat_heads__mha_block_cached__mha_block_cached__near_ridge'
CSCALE = math.log2(math.e) / math.sqrt(128.0)
THR = 1024.0

KV_BASE = 0
WQ_BASE = 65536
NWQ = 4
WSLOT = {}
XB_BASE = WQ_BASE + NWQ * 8192
H_BASE = XB_BASE + 16384
LDS_BYTES = 163840

SRD_K, SRD_V, SRD_WQ, SRD_X, SRD_WS, SRD_WO = 's[8:11]', 's[12:15]', 's[16:19]', 's[20:23]', 's[24:27]', 's[28:31]'
S_W = 's50'
S_WAVE = 's39'
S_ID = 's51'

PART_WS_OFF = 0


STAMPS = False
OPT = {}
STAMP_OFF = 120 * 1024 * 1024
def stamp(k):
    if not STAMPS: return []
    assert k < 12
    return [raw(f's_memtime s[{76 + 2 * k}:{77 + 2 * k}]')]
def stamp_init():
    if not STAMPS: return []
    return [salu('s_mov_b32', f's{r}', 0) for r in range(76, 100)] + [raw('s_memrealtime s[100:101]')]
def stamp_out(t0=V(8, 4), a=V(1)):
    if not STAMPS: return []
    c = [raw('s_memrealtime s[52:53]'), raw('s_waitcnt vmcnt(0) lgkmcnt(0)'), salu('s_lshl_b32', 's54', 's2', 3), salu('s_add_u32', 's54', 's54', S_WAVE),
         salu('s_lshl_b32', 's54', 's54', 7), salu('s_add_u32', 's54', 's54', STAMP_OFF), salu('s_mov_b32', 's26', STAMP_OFF + 1024 * 1024),
         valu('v_mov_b32', a, 0), raw('s_mov_b64 exec, 1')]
    regs = list(range(76, 102)) + [52, 53]
    for k in range(7):
        for r in range(4):
            c.append(valu('v_mov_b32', V(t0.n + r), f's{regs[4 * k + r]}'))
        c.append(buf_store(t0, a, SRD_WS, 's54', 16 * k))
        c.append(nop(3))
    return c


PHYS = {7: 0, 1: 1, 2: 2, 4: 3, 3: 4, 5: 5, 6: 6, 0: 7}
def kslot(t): return t % 4
def vslot(t): return 4 + t % 4
def wslot0(k): return 8 + k % 6
XS = [4, 5, 6, 16, 17, 18, 19, 14, 15]
XBASE = 14 * 8192
def xslot(M, qt): return XS[(M % 3) * 3 + qt]
S_SET = 's3'


def common_prologue(e, nwg=256):
    e(raw(f's_cmp_ge_u32 s2, {nwg}'))
    e(raw('s_cbranch_scc0 L_go'))
    e(raw('s_endpgm'))
    e(label('L_go'))
    e(raw('s_load_dwordx2 s[4:5], s[0:1], 80'))
    e(raw('s_load_dwordx2 s[6:7], s[0:1], 96'))
    e(raw('s_load_dwordx2 s[72:73], s[0:1], 88'))
    e(salu('s_and_b32', 's32', 's2', 7))
    e(salu('s_lshr_b32', 's33', 's2', 3))
    e(salu('s_lshl_b32', 's34', 's32', 2))
    e(salu('s_lshr_b32', 's35', 's33', 3))
    e(salu('s_add_u32', 's34', 's34', 's35'))
    e(salu('s_and_b32', 's35', 's33', 7))
    e(salu('s_lshr_b32', 's36', 's34', 4))
    e(salu('s_and_b32', 's37', 's34', 15))
    e(salu('s_lshl_b32', S_ID, 's34', 3))
    e(salu('s_add_u32', S_ID, S_ID, 's35'))
    e(salu('s_mul_i32', 's38', 's36', 40))
    e(salu('s_add_u32', 's52', 's0', 's38'))
    e(salu('s_addc_u32', 's53', 's1', 0))
    e(raw('s_load_dwordx4 s[40:43], s[52:53], 0'))
    e(raw('s_load_dwordx4 s[44:47], s[52:53], 16'))
    e(raw('s_load_dwordx2 s[48:49], s[52:53], 32'))
    e(valu('v_lshrrev_b32', V(1), 6, V(0)))
    e(valu('v_readfirstlane_b32', S_WAVE, V(1)))
    e(valu('v_and_b32', V(0), 63, V(0)))
    e(salu('s_and_b32', S_W, S_WAVE, 3))
    e(salu('s_lshr_b32', S_SET, S_WAVE, 2))
    e(salu('s_lshl_b32', 's58', S_SET, 9))
    e(salu('s_add_u32', 's58', 's58', 65536))
    e(salu('s_lshl_b32', 's62', S_W, 11))
    e(salu('s_lshl_b32', 's63', S_SET, 10))
    e(salu('s_add_u32', 's63', 's63', 's62'))
    e(salu('s_add_u32', 's62', 's62', 's58'))
    q_dma_addrs(e)
    e(raw('s_waitcnt lgkmcnt(0)'))
    e(salu('s_lshl_b32', 's54', 's35', 10))
    e(salu('s_add_u32', 's16', 's46', 's54')); e(salu('s_addc_u32', 's17', 's47', 0))
    e(salu('s_sub_u32', 's18', 576 * 8192, 's54')); e(salu('s_mov_b32', 's19', 0x20000))
    e(salu('s_mul_i32', 's54', 's37', 221184))
    e(salu('s_add_u32', 's20', 's40', 's54')); e(salu('s_addc_u32', 's21', 's41', 0))
    e(salu('s_mov_b32', 's22', 221184)); e(salu('s_mov_b32', 's23', 0x20000))
    for x in wq0_dma(0) + x0_dma(0) + wq0_dma(1) + wq0_dma(2) + x0_dma(1) + wq0_dma(3) + wq0_dma(4) + x0_dma(2) + wq0_dma(5): e(x)
    e(salu('s_lshl_b32', 's54', 's37', 3))
    e(salu('s_add_u32', 's54', 's54', 's35'))
    e(salu('s_lshl_b32', 's54', 's54', 19))
    e(salu('s_add_u32', 's8', 's42', 's54')); e(salu('s_addc_u32', 's9', 's43', 0))
    e(salu('s_mov_b32', 's10', 524288)); e(salu('s_mov_b32', 's11', 0x20000))
    e(salu('s_add_u32', 's12', 's44', 's54')); e(salu('s_addc_u32', 's13', 's45', 0))
    e(salu('s_mov_b32', 's14', 524288)); e(salu('s_mov_b32', 's15', 0x20000))
    e(salu('s_mov_b32', 's24', 's6')); e(salu('s_mov_b32', 's25', 's7'))
    e(salu('s_mov_b32', 's26', PART_WS_OFF + 256 * 221184)); e(salu('s_mov_b32', 's27', 0x20000))
    e(salu('s_mul_i32', 's54', 's35', 589824))
    e(salu('s_add_u32', 's28', 's48', 's54')); e(salu('s_addc_u32', 's29', 's49', 0))
    e(salu('s_mov_b32', 's30', 589824)); e(salu('s_mov_b32', 's31', 0x20000))
    if OPT.get('cpf', 1):
        e(raw('s_getpc_b64 s[52:53]'))
        e(label('L_cpf'))
        e(salu('s_lshr_b32', 's54', 's2', 3))
        e(salu('s_lshl_b32', 's54', 's54', 3))
        e(salu('s_add_u32', 's54', 's54', S_WAVE))
        e(salu('s_lshl_b32', 's54', 's54', 9))
        e(valu('v_and_b32', V(20), 3, V(0)))
        e(valu('v_lshlrev_b32', V(20), 7, V(20)))
        e(valu('v_add_u32', V(20), 's54', V(20)))
        e(valu('v_min_u32', V(20), 'L_k1_end-L_cpf-8', V(20)))
        e(Ins('global_load_dword v21, v20, s[52:53]', 'vm', rd=[20], wr=[21]))
    for x in stamp_init() + stamp(0): e(x)


CODE_BYTES = 90000


def wq0_dma(k):
    return [salu('s_add_u32', 'm0', 's63', wslot0(k) * 8192), salu('s_mov_b32', 's66', k * 262144), dma(A.vWd, SRD_WQ, 's66', 0, tag=('W0', k))]


def x0_dma(M):
    o = []
    for qt in range(3):
        o += [salu('s_add_u32', 'm0', 's63', xslot(M, qt) * 8192), salu('s_mov_b32', 's66', M * 128 + qt * 18432),
              dma(A.vXd, SRD_X, 's66', 0, tag=('X0', M))]
    return o


def kv0_dma(kind, t):
    if kind == 'K':
        assert kslot(t + 1) == kslot(t) + 1
        return [salu('s_add_u32', 'm0', 's68', kslot(t) * 8192), salu('s_add_u32', 's66', 's70', t * 8192),
                dma(A.vKd, SRD_K, 's66', 0, tag=('K0', t), pol='nt'), dma(A.vKd, SRD_K, 's66', 1024, tag=('K0', t), pol='nt')]
    assert vslot(t + 1) == vslot(t) + 1
    return [salu('s_add_u32', 'm0', 's69', vslot(t) * 8192), salu('s_add_u32', 's66', 's70', t * 8192),
            dma(A.vVd, SRD_V, 's66', 0, tag=('V0', t), pol='nt'), dma(A.vVd, SRD_V, 's66', 2048, tag=('V0', t), pol='nt')]


def q_dma_addrs(e):
    t0, t1 = A.T0, A.T1
    e(salu('s_and_b32', 's54', S_W, 1))
    e(valu('v_and_b32', t0, 3, V(0)))
    e(valu('v_xor_b32', t0, 's54', t0))
    e(valu('v_lshrrev_b32', t1, 4, V(0)))
    e(valu('v_lshl_add_u32', t0, t1, 2, t0))
    e(valu('v_lshlrev_b32', t0, 4, t0))
    e(valu('v_bfe_u32', t1, V(0), 2, 2))
    e(valu('v_lshl_add_u32', t0, t1, 13, t0))
    e(salu('s_lshl_b32', 's54', S_W, 16))
    e(salu('s_lshl_b32', 's55', S_SET, 15))
    e(salu('s_add_u32', 's54', 's54', 's55'))
    e(valu('v_add_u32', A.vWd, 's54', t0))
    e(salu('s_lshl_b32', 's54', S_SET, 2))
    e(valu('v_lshrrev_b32', t1, 4, V(0)))
    e(valu('v_add_u32', t1, 's54', t1))
    e(valu('v_and_b32', t0, 7, V(0)))
    e(valu('v_xor_b32', t0, t0, t1))
    e(valu('v_lshrrev_b32', t1, 3, V(0)))
    e(valu('v_mul_u32_u24', t1, 1152, t1))
    e(valu('v_lshl_add_u32', t0, t0, 4, t1))
    e(salu('s_mul_i32', 's54', S_W, 48 * 1152))
    e(salu('s_mul_i32', 's55', S_SET, 8 * 1152))
    e(salu('s_add_u32', 's54', 's54', 's55'))
    e(valu('v_add_u32', A.vXd, 's54', t0))


def q_rd_addrs(e):
    t0, t1 = A.T0, A.T1
    e(valu('v_and_b32', t0, 3, V(0)))
    e(valu('v_bfe_u32', t1, V(0), 4, 1))
    e(valu('v_xor_b32', t0, t0, t1))
    e(valu('v_bfe_u32', t1, V(0), 2, 2))
    e(valu('v_lshl_add_u32', t0, t1, 2, t0))
    e(valu('v_lshrrev_b32', t1, 4, V(0)))
    e(valu('v_lshl_add_u32', t0, t1, 7, t0))
    e(valu('v_lshlrev_b32', t0, 4, t0))
    e(valu('v_and_b32', t1, 1, V(0)))
    e(valu('v_lshl_add_u32', t0, t1, 3, t0))
    e(valu('v_add_u32', A.vW0, 's58', t0))
    e(valu('v_xor_b32', A.vW1, 8, A.vW0))
    e(valu('v_lshrrev_b32', t0, 4, V(0)))
    e(valu('v_bfe_u32', t1, V(0), 1, 3))
    e(valu('v_xor_b32', t0, t0, t1))
    e(valu('v_lshlrev_b32', t0, 4, t0))
    e(valu('v_and_b32', t1, 15, V(0)))
    e(valu('v_lshl_add_u32', t0, t1, 7, t0))
    e(salu('s_lshl_b32', 's54', S_W, 11))
    e(salu('s_add_u32', 's54', 's54', XBASE))
    e(valu('v_add_u32', A.vXr0, 's54', t0))
    e(valu('v_xor_b32', A.vXr1, 64, A.vXr0))
    e(valu('v_subrev_u32', A.vXr2, XBASE, A.vXr0))
    e(valu('v_subrev_u32', A.vXr3, XBASE, A.vXr1))


def q0_wread(n):
    if n >= 72: return []
    k, f = divmod(n, 4)
    i, t = f >> 1, f & 1
    buf = A.F + (n % 4) * 4
    va = A.vW0 if t == 0 else A.vW1
    off = (wslot0(k) - 8) * 8192 + i * 256
    return [ds_read('ds_read_b64_tr_b16', V(buf, 2), va, off, tag=('pf0', n)), ds_read('ds_read_b64_tr_b16', V(buf + 2, 2), va, off + 1024, tag=('pf0', n))]


def q0_xread(k):
    o = []
    for qt in range(3):
        a = xslot(k // 2, qt) * 8192
        va, off = ((A.vXr1 if k % 2 else A.vXr0), a - XBASE) if a >= XBASE else ((A.vXr3 if k % 2 else A.vXr2), a)
        o.append(ds_read('ds_read_b128', V(A.xf(k, qt), 4), va, off, tag=('xf0', k)))
    return o


def q_conv(i):
    ops = []
    for qt in range(3):
        tm = A.P[0] + qt * 4
        for t in range(2):
            a = A.o(qt, 2 * i + t)
            for r in range(4): ops.append(valu('v_mul_f32', V(a + r), 's59', V(a + r)))
            ops.append(valu('v_cvt_pk_bf16_f32', V(tm + 2 * t), V(a), V(a + 1)))
            ops.append(valu('v_cvt_pk_bf16_f32', V(tm + 2 * t + 1), V(a + 2), V(a + 3)))
        q = A.q(qt, i)
        for k in range(2):
            ops.append(valu('v_cndmask_b32', V(q + k), V(tm + k), V(tm + 2 + k), 's[64:65]'))
            ops.append(valu('v_cndmask_b32', V(q + 2 + k), V(tm + 2 + k), V(tm + k), 's[64:65]'))
    return ops


def q0_phase():
    c = []; e = c.append
    q_rd_addrs(e)
    kv_dma_addrs(e, A.vKd, A.vVd, A.T0, A.T1)
    e(salu('s_lshl_b32', 's70', S_SET, 13))
    e(salu('s_add_u32', 's68', 's56', 's70'))
    e(salu('s_add_u32', 's69', 's57', 's70'))
    e(salu('s_mov_b32', 's59', CSCALE))
    e(salu('s_mov_b32', 's64', 0xffff0000)); e(salu('s_mov_b32', 's65', 0xffff0000))
    e(wait(vm=[('W0', 0), ('X0', 0)]))
    e(barrier())
    c += stamp(1)
    c += q0_wread(0) + q0_wread(1) + q0_wread(2) + q0_xread(0)
    gaps = [[] for _ in range(72 * 3 + 1)]

    def chain(ops, lo, hi):
        for a, o in enumerate(ops): gaps[min(lo + (a * (hi - lo + 1)) // len(ops), 216)].append(o)
    wn = 6
    kvq = {OPT.get('kv0', 8): kv0_dma('K', 0), OPT.get('kv1', 14): kv0_dma('V', 0), OPT.get('kv2', 12): kv0_dma('K', 2), OPT.get('kv3', 16): kv0_dma('V', 2)}
    for k in range(18):
        g0 = (4 * k + 1) * 3
        ops = []
        if k < 17:
            for j, x in enumerate(q0_xread(k + 1)): gaps[g0 + 2 * j].append(x)
        while wn < 18 and wn - 6 <= k - 1:
            ops += wq0_dma(wn); wn += 1
        if k % 2 == 1 and (k - 1) // 2 + 3 <= 8: ops += x0_dma((k - 1) // 2 + 3)
        ops += kvq.get(k, [])
        if ops: chain(ops, g0, g0 + 10)
    for n in range(72):
        k, f = divmod(n, 4)
        if f == 1 and k < 17:
            c.append(wait(vm=[('W0', k + 1), ('X0', (k + 1) // 2)]))
            c.append(barrier())
        c.append(wait(lg=[('pf0', n)] + ([('xf0', k)] if f == 0 else [])))
        rd = q0_wread(n + 3)
        for qt in range(3):
            d = A.o(qt, f)
            c.append(mfma(d, A.F + (n % 4) * 4, A.xf(k, qt), d if k else None))
            if qt < len(rd): c.append(rd[qt])
            c += gaps[n * 3 + qt]
    c += stamp(2)
    c += q_conv(0) + q_conv(1)
    return c


QT_BASE = 8 * 8192


def kv_dma_addrs(e, vK, vV, t0, t1):
    e(salu('s_and_b32', 's54', S_W, 1))
    e(salu('s_lshl_b32', 's55', 's54', 1))
    e(valu('v_and_b32', t0, 3, V(0)))
    e(valu('v_xor_b32', t0, 's55', t0))
    e(valu('v_lshrrev_b32', t1, 4, V(0)))
    e(valu('v_lshl_add_u32', t0, t1, 2, t0))
    e(valu('v_lshlrev_b32', t0, 4, t0))
    e(valu('v_bfe_u32', t1, V(0), 2, 2))
    e(valu('v_lshl_add_u32', t0, t1, 8, t0))
    e(salu('s_lshl_b32', 's56', S_W, 11))
    e(salu('s_lshr_b32', 's57', S_W, 1))
    e(salu('s_lshl_b32', 's57', 's57', 2))
    e(salu('s_add_u32', 's57', 's57', 's54'))
    e(salu('s_lshl_b32', 's57', 's57', 10))
    e(valu('v_add_u32', vK, 's56', t0))
    e(valu('v_add_u32', vV, 's57', t0))


def k_dma(vK, t):
    if OPT.get('nokv') and t >= 4: return [Ins('s_nop 0', 'dma', tag=('K', t))]
    return [salu('s_add_u32', 'm0', 's56', KV_BASE + kslot(t) * 8192), salu('s_mov_b32', 's58', t * 8192),
            dma(vK, SRD_K, 's58', 0, tag=('K', t), pol='nt'), dma(vK, SRD_K, 's58', 1024, tag=('K', t), pol='nt')]


def v_dma(vV, t):
    if OPT.get('nokv') and t >= 4: return [Ins('s_nop 0', 'dma', tag=('V', t))]
    return [salu('s_add_u32', 'm0', 's57', KV_BASE + vslot(t) * 8192), salu('s_mov_b32', 's59', t * 8192),
            dma(vV, SRD_V, 's59', 0, tag=('V', t), pol='nt'), dma(vV, SRD_V, 's59', 2048, tag=('V', t), pol='nt')]


class A:
    vK, vV0, vV1, vH, vO = V(2), V(3), V(4), V(5), V(6)
    T0, T1 = V(1), V(7)
    E = 8
    TA, TB = 16, 17
    TS = 18
    L = 21
    LI = 24
    MX = 27
    NM = 28
    F = 40
    S = (56, 68)
    P = (80, 92)
    Q = 104
    O = 152
    X = 248
    vWd, vXd, vW0, vW1, vXr0, vXr1, vKd, vVd = V(8), V(9), V(10), V(11), V(12), V(13), V(14), V(15)
    vXr2, vXr3 = V(16), V(17)
    XF = 56
    @staticmethod
    def xf(k, qt): return A.XF + ((k % 2) * 3 + qt) * 4

    @staticmethod
    def q(qt, ks): return A.Q + (qt * 4 + ks) * 4
    @staticmethod
    def o(qt, dt): return A.O + (qt * 8 + dt) * 4
    @staticmethod
    def s(kt, qt): return A.S[kt] + qt * 4
    @staticmethod
    def p(par, qt): return A.P[par] + qt * 4
    @staticmethod
    def nm(qt): return A.NM + qt * 4


rare_variants = {}
rare_sites = []


def sm_groups(kt, par, site, variant, first, pending):
    g = []
    pend = list(pending)

    def E(q, i): return V(A.E + (q % 2) * 4 + i)
    def ex(q, i): return valu('v_exp_f32', E(q, i), V(A.s(kt, q) + i))
    def ad1(q): return valu('v_add_f32', V(A.TA), E(q, 0), E(q, 1))
    def cv1(q): return valu('v_cvt_pk_bf16_f32', V(A.p(par, q) + 2 * kt), E(q, 0), E(q, 1))
    def ad2(q): return valu('v_add_f32', V(A.TB), E(q, 2), E(q, 3))
    def cv2(q): return valu('v_cvt_pk_bf16_f32', V(A.p(par, q) + 2 * kt + 1), E(q, 2), E(q, 3))
    def ts(q): return valu('v_add_f32', V(A.TS + q), V(A.TA), V(A.TB))
    pend = pend + [None] * 3
    g = [[ex(0, 0)], [ex(0, 1)], [ex(0, 2)], [pend[0], pend[1]], [ex(0, 3)], [ad1(0), cv1(0)], [ex(1, 0)], [ad2(0), cv2(0)],
         [ex(1, 1)], [pend[2], ts(0)], [ex(1, 2)], [ad1(1)], [ex(1, 3)], [cv1(1)], [ex(2, 0)], [ad2(1), cv2(1)],
         [ex(2, 1)], [ts(1)], [ex(2, 2)], [ad1(2), cv1(2)], [ex(2, 3)], [ad2(2), ts(2)]]
    g = [[x for x in y if x is not None] for y in g]
    if variant is not None:
        g.append([valu('v_max3_f32', V(A.MX), V(A.TS), V(A.TS + 1), V(A.TS + 2)), valu('v_cmp_lt_f32', 'vcc', 's60', V(A.MX))])
        g.append([cv2(2), Ins(f's_cbranch_vccnz TR_{site}', 'branch', srd=['vcc']), label(f'RET_{site}')])
        if variant not in rare_variants:
            rare_variants[variant] = f'RARE_{len(rare_variants)}'
        if (site, rare_variants[variant]) not in rare_sites:
            rare_sites.append((site, rare_variants[variant]))
    else:
        g.append([cv2(2)])
        g.append([])
    if first:
        left = [valu('v_mov_b32', V(A.L + q), V(A.TS + q)) for q in range(3)]
    else:
        left = [valu('v_add_f32', V(A.L + q), V(A.L + q), V(A.TS + q)) for q in range(3)]
    g = [x for x in g]
    assert len(g) == 24
    return g, left


def xlane(op, r, tmp):
    return [valu('v_mov_b32', tmp, r), valu('v_permlane32_swap_b32', r, tmp), valu(op, r, r, tmp),
            valu('v_mov_b32', tmp, r), valu('v_permlane16_swap_b32', r, tmp), valu(op, r, r, tmp)]


def init_ops():
    ops = []
    for q in range(3):
        m = V(A.nm(q)); t = V(A.nm(q) + 1); s = A.s(0, q)
        ops.append(valu('v_max3_f32', m, V(s), V(s + 1), V(s + 2)))
        ops.append(valu('v_max_f32', m, m, V(s + 3)))
    xl = [xlane('v_max_f32', V(A.nm(q)), V(A.nm(q) + 1)) for q in range(3)]
    for k in range(6):
        for q in range(3):
            ops.append(xl[q][k])
    for q in range(3):
        ops.append(valu('v_ceil_f32', V(A.nm(q)), V(A.nm(q))))
    for q in range(3):
        ops.append(valu('v_sub_f32', V(A.nm(q)), 0, V(A.nm(q))))
    for q in range(3):
        s = A.s(0, q)
        for i in range(4):
            ops.append(valu('v_add_f32', V(s + i), V(A.nm(q)), V(s + i)))
    for q in range(3):
        for i in range(1, 4):
            ops.append(valu('v_mov_b32', V(A.nm(q) + i), V(A.nm(q))))
    return ops


def init_sb_ops():
    ops = []
    for q in range(3):
        s = A.s(1, q)
        for i in range(4):
            ops.append(valu('v_add_f32', V(s + i), V(A.nm(q)), V(s + i)))
    return ops


def linv_ops():
    ops = []
    for q in range(3):
        ops.append(valu('v_mov_b32', V(A.LI + q), V(A.L + q)))
    xl = [xlane('v_add_f32', V(A.LI + q), V(A.X + q)) for q in range(3)]
    for k in range(6):
        for q in range(3):
            ops.append(xl[q][k])
    for q in range(3):
        ops.append(valu('v_rcp_f32', V(A.LI + q), V(A.LI + q)))
    return ops


def epilogue_ops(sink, dst=None):
    ops = []
    n = 0
    for i in range(4):
        for qt in range(3):
            buf = A.X + (n % 2) * 4 if dst is None else dst(qt, i)
            n += 1
            for half in range(2):
                o = A.o(qt, 2 * i + half)
                for r in range(4):
                    ops.append(valu('v_mul_f32', V(o + r), V(A.LI + qt), V(o + r)))
                ops.append(valu('v_cvt_pk_bf16_f32', V(buf + 2 * half), V(o), V(o + 1)))
                ops.append(valu('v_cvt_pk_bf16_f32', V(buf + 2 * half + 1), V(o + 2), V(o + 3)))
            ops.extend(sink(qt, i, V(buf, 4)))
    return ops


def rare_code(variant, lab):
    kt, par, do_o, do_l, presc, adj = variant
    c = [label(lab), nop(16)]
    n = V(A.TA); f = V(A.TB); t = V(A.MX)
    for q in range(3):
        s = A.s(kt, q)
        c.append(valu('v_max3_f32', n, V(s), V(s + 1), V(s + 2)))
        c.append(valu('v_max_f32', n, n, V(s + 3)))
        c.extend(xlane('v_max_f32', n, t))
        c.append(valu('v_ceil_f32', n, n))
        c.append(valu('v_max_f32', n, 0, n))
        c.append(valu('v_sub_f32', f, 0, n))
        c.append(valu('v_exp_f32', f, f))
        for i in range(4):
            c.append(valu('v_sub_f32', V(s + i), V(s + i), n))
            if adj:
                so = A.s(1 - kt, q)
                c.append(valu('v_sub_f32', V(so + i), V(so + i), n))
            c.append(valu('v_sub_f32', V(A.nm(q) + i), V(A.nm(q) + i), n))
        if do_l:
            c.append(valu('v_mul_f32', V(A.L + q), f, V(A.L + q)))
        if do_o:
            for r in range(32):
                c.append(valu('v_mul_f32', V(A.o(q, 0) + r), f, V(A.o(q, 0) + r)))
        for (pp, off) in presc:
            r = V(A.p(pp, q) + off)
            lo, hi = V(A.E), V(A.E + 1)
            c.append(valu('v_lshlrev_b32', lo, 16, r))
            c.append(valu('v_and_b32', hi, 0xffff0000, r))
            c.append(valu('v_mul_f32', lo, f, lo))
            c.append(valu('v_mul_f32', hi, f, hi))
            c.append(valu('v_cvt_pk_bf16_f32', r, lo, hi))
        for i in range(4):
            c.append(valu('v_exp_f32', V(A.E + i), V(s + i)))
        c.append(valu('v_cvt_pk_bf16_f32', V(A.p(par, q) + 2 * kt), V(A.E), V(A.E + 1)))
        c.append(valu('v_cvt_pk_bf16_f32', V(A.p(par, q) + 2 * kt + 1), V(A.E + 2), V(A.E + 3)))
        c.append(valu('v_add_f32', V(A.E), V(A.E), V(A.E + 1)))
        c.append(valu('v_add_f32', V(A.E + 2), V(A.E + 2), V(A.E + 3)))
        c.append(valu('v_add_f32', V(A.TS + q), V(A.E), V(A.E + 2)))
    c.append(valu('v_exp_f32', V(A.E), V(A.s(1 - kt, 0))))
    c.append(nop(4))
    c.append(raw('s_setpc_b64 s[62:63]', 'branch'))
    return c


class AGen:
    def __init__(self, osink):
        self.pendL = []
        self.osink = osink

    @staticmethod
    def frag(nu):
        t, j = nu // 16 - 1, nu % 16
        if j % 2 == 0:
            return ('K', t + 1, j // 8, (j // 2) % 4) if t + 1 <= 63 else None
        tile, dt = (t - 1, 4 + (j - 1) // 2) if j < 8 else (t, (j - 9) // 2)
        return ('V', tile, dt, 0) if 0 <= tile <= 63 else None

    def read(self, nu):
        f = self.frag(nu)
        if f is None:
            return []
        kind, tile, a, b = f
        buf = A.F + (nu % 4) * 4
        if kind == 'K':
            return [ds_read('ds_read_b128', V(buf, 4), A.vK, KV_BASE + kslot(tile) * 8192 + a * 4096 + b * 256, tag=('f', nu))]
        va = A.vV0 if a % 2 == 0 else A.vV1
        off = KV_BASE + vslot(tile) * 8192 + (a >> 1) * 256
        return [ds_read('ds_read_b64_tr_b16', V(buf, 2), va, off, tag=('f', nu)),
                ds_read('ds_read_b64_tr_b16', V(buf + 2, 2), va, off + 4096, tag=('f', nu))]

    def iteration(self, t, more=None, bar=None):
        T = t + 1
        j16 = t % 16
        nu0 = 16 * (t + 1)
        has_qk = T <= 63
        newhead = has_qk and T % 16 == 0
        def loc(u):
            return f'p{u + 1}' if u <= 0 else (f't{u}' if u >= 62 else f'{u % 16}')
        pos = [dict(pre=[], m=None, w=[], rd=[], post=[]) for _ in range(48)]
        for m in range(48):
            j, qt = divmod(m, 3)
            f = self.frag(nu0 + j)
            if f is None:
                continue
            kind, tile, a, b = f
            fb = A.F + ((nu0 + j) % 4) * 4
            tags = [('f', nu0 + j)]
            if kind == 'K':
                d = A.s(a, qt)
                pos[m]['m'] = mfma(d, fb, A.q(qt, b), d if b else (None if newhead else A.nm(qt)))
                if newhead and t >= 0 and a == 0: tags.append(('q', T, b))
            else:
                d = A.o(qt, a)
                pos[m]['m'] = mfma(d, fb, A.p(tile % 2, qt), d if tile % 16 else None)
            if qt == 0:
                if m > 0 and pos[m - 1]['m'] is not None: pos[m - 1]['w'].append(wait(lg=tags))
                else: pos[m]['pre'].append(wait(lg=tags))
        for i in range(8):
            v = self.read(nu0 + 2 * i + 3)
            if v: pos[6 * i + 1]['rd'].append(v[1])
            pos[6 * i + 3]['rd'] += self.read(nu0 + 2 * i + 4)
            v = self.read(nu0 + 2 * i + 5)
            if v: pos[6 * i + 5]['rd'].append(v[0])
        if bar: pos[OPT.get('barpos', 6)]['w'] = list(bar) + pos[OPT.get('barpos', 6)]['w']
        extra = [[] for _ in range(48)]

        def spread(ops, lo, hi):
            n = len(ops)
            for k, o in enumerate(ops):
                extra[lo + (k * (hi - lo + 1)) // n].append(o)
        SH = 2

        def place(g, base):
            for k, ops in enumerate(g):
                gp = base + k - SH
                if k == 23 and ops and ops[-1].kind == 'label':
                    pos[base + 23]['br'] = ops[-2:]
                    ops = ops[:-2]
                if gp >= 0: pos[gp]['post'].extend(ops)
        if 0 <= t <= 63:
            par = t % 2
            var = (1, par, t % 16 != 0, True, ((par, 0), (par, 1)), t % 16 != 15)
            g1, self.pendL = sm_groups(1, par, f'Y{loc(t)}', var, False, self.pendL)
            place(g1, 0)
        early = [[valu('v_exp_f32', V(A.E + i), V(A.s(1, 0) + i))] for i in range(SH)] if has_qk else []
        par = T % 2
        if newhead:
            pre = list(self.pendL)
            if t >= 0: pre += linv_ops()
            spread(pre + init_ops(), 24, 35)
            g0, self.pendL = sm_groups(0, par, None, None, True, [])
            for k, g in enumerate(g0): extra[36 + k // 2].extend(g)
            extra[47].extend(init_sb_ops())
            for x in early: extra[47].extend(x)
        elif has_qk:
            var = (0, par, True, True, tuple((t % 2, k) for k in range(4)), True)
            g0, self.pendL = sm_groups(0, par, f'X{loc(t)}', var, False, self.pendL)
            place(g0, 24)
            for k, x in enumerate(early): pos[48 - SH + k]['post'].extend(x)
        elif t == 63:
            spread(self.pendL + linv_ops(), 24, 40); self.pendL = []
        if j16 == 0 and 0 < t < 64:
            eo = epilogue_ops(self.osink(t // 16 - 1))
            half = len(eo) // 2
            spread(eo[:half], 0, 25)
            spread(eo[half:], 27, 45)
        if more: spread(more, 3, 23)
        if has_qk and T % 16 == 15:
            for ks in range(4):
                for qt in range(3):
                    pos[27 + 6 * ks + qt]['rd'].append(ds_read('ds_read_b128', V(A.q(qt, ks), 4), A.vH, (qt * 4 + ks) * 1024, tag=('q', T + 1, ks)))
        out = []
        for m in range(48):
            out.extend(pos[m]['pre'])
            if pos[m]['m'] is not None:
                out.append(pos[m]['m'])
            out += pos[m]['w'] + pos[m]['rd']
            if 'br' in pos[m]:
                out += extra[m] + pos[m]['br'] + pos[m]['post']
            else:
                out += pos[m]['post'] + extra[m]
        return out


def a_setup(e):
    t0, t1 = A.T0, A.T1
    e(valu('v_lshrrev_b32', t0, 4, V(0)))
    e(valu('v_bfe_u32', t1, V(0), 3, 1))
    e(valu('v_lshlrev_b32', t1, 1, t1))
    e(valu('v_xor_b32', t0, t0, t1))
    e(valu('v_and_b32', t1, 3, V(0)))
    e(valu('v_lshl_add_u32', t0, t1, 2, t0))
    e(valu('v_bfe_u32', t1, V(0), 2, 2))
    e(valu('v_lshl_add_u32', t0, t1, 6, t0))
    e(valu('v_lshlrev_b32', A.vK, 4, t0))
    e(valu('v_bfe_u32', t0, V(0), 1, 1))
    e(valu('v_bfe_u32', t1, V(0), 4, 1))
    e(valu('v_lshl_add_u32', t0, t1, 1, t0))
    e(valu('v_bfe_u32', t1, V(0), 2, 2))
    e(valu('v_lshl_add_u32', t0, t1, 2, t0))
    e(valu('v_lshrrev_b32', t1, 4, V(0)))
    e(valu('v_lshl_add_u32', t0, t1, 6, t0))
    e(valu('v_lshlrev_b32', t0, 4, t0))
    e(valu('v_and_b32', t1, 1, V(0)))
    e(valu('v_lshl_add_u32', A.vV0, t1, 3, t0))
    e(valu('v_xor_b32', A.vV1, 32, A.vV0))
    e(salu('s_mul_i32', 's54', S_W, 12288))
    e(salu('s_add_u32', 's54', 's54', H_BASE))
    e(valu('v_lshlrev_b32', t0, 4, V(0)))
    e(valu('v_add_u32', A.vH, 's54', t0))
    e(valu('v_mov_b32', A.vO, t0))
    e(salu('s_mov_b32', 's60', THR))


class P:
    vKd, vVd, vWd, vX, vW0, vW1, vH0, vH1, vBw, vBr = V(2), V(3), V(4), V(5), V(6), V(7), V(8), V(9), V(10), V(11)
    T0, T1 = V(1), V(12)
    PK = 12
    F = 16
    ACC = 32
    XF = 128
    X = 152
    vX1 = V(200)
    vBr1 = V(201)
    vBw2 = V(202)

    @staticmethod
    def acc(qt, i, t): return P.ACC + ((qt * 4 + i) * 2 + t) * 4
    @staticmethod
    def x(M, qt, j): return P.X + ((M % 2) * 6 + qt * 2 + j) * 4
    @staticmethod
    def xf(k, qt): return P.XF + ((k % 2) * 3 + qt) * 4


def p_setup(e):
    t0, t1 = P.T0, P.T1
    kv_dma_addrs(e, P.vKd, P.vVd, t0, t1)
    e(salu('s_and_b32', 's54', S_W, 1))
    e(valu('v_and_b32', t0, 3, V(0)))
    e(valu('v_xor_b32', t0, 's54', t0))
    e(valu('v_lshrrev_b32', t1, 4, V(0)))
    e(valu('v_lshl_add_u32', t0, t1, 2, t0))
    e(valu('v_lshlrev_b32', t0, 4, t0))
    e(valu('v_bfe_u32', t1, V(0), 2, 2))
    e(valu('v_lshl_add_u32', t0, t1, 13, t0))
    e(salu('s_lshl_b32', 's54', S_W, 16))
    e(valu('v_add_u32', P.vWd, 's54', t0))
    e(salu('s_and_b32', 's54', 's34', 3))
    e(salu('s_lshl_b32', 's54', 's54', 1))
    e(salu('s_add_u32', 's54', 's54', 's35'))
    if not OPT.get('rot'): e(salu('s_mov_b32', 's54', 0))
    e(salu('s_lshl_b32', 's54', 's54', 7))
    for m in range(9):
        e(salu('s_sub_u32', 's55', 's54', 1152))
        e(salu('s_cmp_ge_u32', 's54', 1152))
        e(salu('s_cselect_b32', f's{40 + m}', 's55', 's54'))
        e(salu('s_add_u32', 's54', f's{40 + m}', 128))
    e(salu('s_mul_i32', 's54', S_W, 48 * 1152))
    e(valu('v_and_b32', t0, 7, V(0)))
    e(valu('v_lshrrev_b32', t1, 3, V(0)))
    e(valu('v_mul_u32_u24', t1, 1152, t1))
    e(valu('v_lshl_add_u32', t0, t0, 4, t1))
    e(valu('v_add_u32', P.vX, 's54', t0))
    e(valu('v_xor_b32', t0, 32, P.vX))
    e(valu('v_add_u32', P.vX1, 8 * 1152, t0))


def p_setup2(e):
    t0, t1 = P.T0, P.T1
    e(salu('s_lshl_b32', 's54', S_W, 12))
    e(salu('s_add_u32', 's54', 's54', XB_BASE))
    e(valu('v_and_b32', t0, 3, V(0)))
    e(valu('v_lshrrev_b32', t1, 3, V(0)))
    e(valu('v_lshl_add_u32', t0, t1, 2, t0))
    e(valu('v_lshlrev_b32', t0, 4, t0))
    e(valu('v_bfe_u32', t1, V(0), 2, 1))
    e(valu('v_xor_b32', t1, 1, t1))
    e(valu('v_mul_u32_u24', t1, 1024 + 64, t1))
    e(valu('v_xor_b32', t0, t0, t1))
    e(valu('v_add_u32', P.vBw, 's54', t0))
    e(valu('v_and_b32', t1, 1024, t1))
    e(valu('v_add_u32', P.vBw2, P.vBw, t1))
    e(valu('v_bfe_u32', t0, V(0), 3, 1))
    e(valu('v_lshlrev_b32', t0, 1, t0))
    e(valu('v_lshrrev_b32', t1, 4, V(0)))
    e(valu('v_xor_b32', t0, t0, t1))
    e(valu('v_and_b32', t1, 15, V(0)))
    e(valu('v_lshl_add_u32', t0, t1, 2, t0))
    e(valu('v_lshlrev_b32', t0, 4, t0))
    e(valu('v_add_u32', P.vBr, 's54', t0))
    e(valu('v_xor_b32', P.vBr1, 64, P.vBr))
    e(valu('v_and_b32', t0, 3, V(0)))
    e(valu('v_bfe_u32', t1, V(0), 4, 1))
    e(valu('v_xor_b32', t0, t0, t1))
    e(valu('v_bfe_u32', t1, V(0), 2, 2))
    e(valu('v_lshl_add_u32', t0, t1, 2, t0))
    e(valu('v_lshrrev_b32', t1, 4, V(0)))
    e(valu('v_lshl_add_u32', t0, t1, 7, t0))
    e(valu('v_lshlrev_b32', t0, 4, t0))
    e(valu('v_and_b32', t1, 1, V(0)))
    e(valu('v_lshl_add_u32', t0, t1, 3, t0))
    e(valu('v_add_u32', P.vW0, WQ_BASE, t0))
    e(valu('v_xor_b32', P.vW1, 8, P.vW0))
    e(salu('s_mul_i32', 's54', S_W, 12288))
    e(salu('s_add_u32', 's54', 's54', H_BASE))
    e(valu('v_lshlrev_b32', t0, 4, V(0)))
    e(valu('v_bfe_u32', t1, V(0), 4, 1))
    e(valu('v_lshl_add_u32', t0, t1, 3, t0))
    e(valu('v_add_u32', P.vH0, 's54', t0))
    e(valu('v_xor_b32', P.vH1, 8, P.vH0))
    e(salu('s_mov_b32', 's61', CSCALE))


def wq_dma(k):
    h, j = divmod(k, 18)
    so = (j & 1) * 262144 + h * 256
    pol = OPT.get('wqpol', '')
    if OPT.get('rot') == 2 and h == 0:
        a66 = [salu('s_mov_b32', 's66', j * 262144)]
    else:
        a66 = [salu('s_lshl_b32', 's66', f's{40 + j // 2}', 12), salu('s_add_u32', 's66', 's66', so)]
    return [salu('s_add_u32', 'm0', 's56', WQ_BASE + WSLOT[k] * 8192)] + a66 + [dma(P.vWd, SRD_WQ, 's66', 0, tag=('W', k), pol=pol),
            salu('s_add_u32', 's67', 's66', 32768 - 1024), dma(P.vWd, SRD_WQ, 's67', 1024, tag=('W', k), pol=pol)]


def x_load(M, idx):
    qt, j = divmod(idx, 2)
    so = f's{40 + M % 9}'
    pre = []
    if M >= 11:
        pre.append(wait(lg=('xw', M - 2, idx)))
    if OPT.get('rot') == 2 and M < 9:
        pre.append(salu('s_mov_b32', 's64', M * 128 + qt * 18432))
        so = 's64'
    elif qt:
        pre.append(salu('s_add_u32', 's64', so, qt * 18432))
        so = 's64'
    return pre + [buf_load(V(P.x(M, qt, j), 4), P.vX1 if j else P.vX, SRD_X, so, 0, tag=('X', M, idx), pol=OPT.get('xpol', ''))]


def x_write(M, idx):
    qt, j = divmod(idx, 2)
    va, off = ((P.vBw, 0), (P.vBw, 2048), (P.vBw2, 1024))[qt]
    return [wait(vm=('X', M, idx)), ds_write('ds_write_b128', va, V(P.x(M, qt, j), 4), off + j * 512, tag=('xw', M, idx))]


def x_read_even(M, qt):
    return [ds_read('ds_read_b128', V(P.xf(0, qt), 4), P.vBr1, (1024, 3072, 3072)[qt], tag=('xf', 2 * M))]


def x_read_odd(M):
    return [ds_read('ds_read_b128', V(P.xf(1, qt), 4), P.vBr, (0, 2048, 1024)[qt], tag=('xf', 2 * M + 1)) for qt in range(3)]


def q_handoff_tile(qt, i, t, n):
    a = P.acc(qt, i, t)
    pk = P.PK + (n % 2) * 2
    ops = [valu('v_mul_f32', V(a + r), 's61', V(a + r)) for r in range(4)]
    ops.append(valu('v_cvt_pk_bf16_f32', V(pk), V(a), V(a + 1)))
    ops.append(valu('v_cvt_pk_bf16_f32', V(pk + 1), V(a + 2), V(a + 3)))
    ops.append(ds_write('ds_write_b64', P.vH0 if t == 0 else P.vH1, V(pk, 2), (qt * 4 + i) * 1024, tag='hw'))
    return ops


class G2:
    def __init__(self, name, cset, order, o, acc, F, PK, vT0, vT1, vS, slot_off, sstore):
        self.name, self.cset, self.order, self.o = name, cset, order, o
        self.ACC, self.F, self.PK, self.vT0, self.vT1, self.vS = acc, F, PK, vT0, vT1, vS
        self.slot_off = slot_off
        self.sstore = sstore
        self.fr = [(u, kb, nt) for u in range(36) for kb in range(4) for nt in range(2)]

    def acc(self, qt, nt): return self.ACC + (qt * 2 + nt) * 4

    def dma(self, u, vD):
        p, hi = divmod(u, 4)
        so = self.order[hi] * 128 * 1152 + self.cset * 576
        pol = OPT.get('wopol', '')
        return [salu('s_add_u32', 'm0', 's56', self.slot_off(u)[0]), salu('s_add_u32', 's66', f's{40 + p}', so),
                dma(vD, SRD_WO, 's66', 0, tag=('U', self.name, u), pol=pol),
                salu('s_add_u32', 's67', 's66', 18432 - 1024), dma(vD, SRD_WO, 's67', 1024, tag=('U', self.name, u), pol=pol)]

    def rd(self, n):
        if n >= len(self.fr):
            return []
        u, kb, nt = self.fr[n]
        buf = self.F + (n % 4) * 4
        va = self.vT0 if nt == 0 else self.vT1
        off = self.slot_off(u)[1] + kb * 2048
        return [ds_read('ds_read_b64_tr_b16', V(buf, 2), va, off, tag=('gf', n)),
                ds_read('ds_read_b64_tr_b16', V(buf + 2, 2), va, off + 1024, tag=('gf', n))]

    def start(self):
        return self.rd(0) + self.rd(1) + self.rd(2)

    def unit(self, u, atoms=(), otag=None):
        out = []
        q = list(atoms)
        if getattr(self, 'pend', None):
            q.insert(len(q) // 2, self.pend.pop(0))
        p, hi = divmod(u, 4)
        h = self.order[hi]
        for kb in range(4):
            for nt in range(2):
                n = u * 8 + kb * 2 + nt
                tags = [('gf', n)]
                if otag and nt == 0:
                    tags.append(otag(kb))
                out.append(wait(lg=tags))
                for qt in range(3):
                    d = self.acc(qt, nt)
                    out.append(mfma(d, self.F + (n % 4) * 4, self.o(h, qt, kb), None if (hi == 0 and kb == 0) else d))
                    if qt == 0:
                        out.extend(self.rd(n + 3))
                    elif q:
                        out.extend(q.pop(0))
        for x in q:
            out.extend(x)
        if hi == 3:
            sts = []
            for qt in range(3):
                pk = self.PKS[qt]
                for t2 in range(2):
                    a = self.acc(qt, t2)
                    out.append(valu('v_cvt_pk_bf16_f32', V(pk + 2 * t2), V(a), V(a + 1)))
                    out.append(valu('v_cvt_pk_bf16_f32', V(pk + 2 * t2 + 1), V(a + 2), V(a + 3)))
                st = [] if OPT.get('nopst') else [buf_store(V(pk, 4), self.vS, SRD_WS, self.sstore, qt * 1024, tag=('st', self.name, p), pol=OPT.get('ppol', 'sc1').replace('+', ' '))]
                if qt == 2:
                    st += [salu('s_add_u32', self.sstore, self.sstore, 3072), salu('s_sub_u32', 's55', self.sstore, 27648),
                           salu('s_cmp_ge_u32', self.sstore, 's75'), salu('s_cselect_b32', self.sstore, 's55', self.sstore)]
                sts.append(st)
            if p == 8 or OPT.get('stburst'):
                for st in sts:
                    out.extend(st)
            else:
                self.pend = sts
        return out


def g2_setup(e, cset, vT0, vT1, vS, base, t0, t1, sstore):
    e(valu('v_bfe_u32', t0, V(0), 1, 1))
    e(valu('v_bfe_u32', t1, V(0), 4, 1))
    e(valu('v_lshl_add_u32', t0, t1, 1, t0))
    e(valu('v_lshrrev_b32', t1, 2, V(0)))
    e(valu('v_lshl_add_u32', t0, t1, 2, t0))
    e(valu('v_lshlrev_b32', t0, 4, t0))
    e(valu('v_and_b32', t1, 1, V(0)))
    e(valu('v_lshl_add_u32', t0, t1, 3, t0))
    e(valu('v_add_u32', vT0, base, t0))
    e(valu('v_xor_b32', vT1, 32, vT0))
    e(valu('v_lshlrev_b32', vS, 4, V(0)))
    e(salu('s_mul_i32', sstore, S_ID, 221184))
    e(salu('s_mul_i32', 's54', S_W, 2 * 27648))
    e(salu('s_add_u32', sstore, sstore, 's54'))
    e(salu('s_add_u32', sstore, sstore, PART_WS_OFF + cset * 27648))
    e(salu('s_add_u32', 's75', sstore, 27648))
    e(salu('s_and_b32', 's54', 's34', 3 if OPT.get('prot', 1) else 0))
    e(salu('s_mul_i32', 's55', 's54', 2 * 3072))
    e(salu('s_add_u32', sstore, sstore, 's55'))
    if cset == 1:
        e(salu('s_lshl_b32', 's54', 's54', 7))
        for m in range(9):
            e(salu('s_sub_u32', 's55', 's54', 576))
            e(salu('s_cmp_ge_u32', 's54', 576))
            e(salu('s_cselect_b32', f's{40 + m}', 's55', 's54'))
            e(salu('s_add_u32', 's54', f's{40 + m}', 64))


def wo_vd(e, vD, t0, t1):
    e(valu('v_bfe_u32', t1, V(0), 4, 1))
    e(valu('v_lshlrev_b32', t1, 1, t1))
    e(valu('v_and_b32', t0, 3, V(0)))
    e(valu('v_xor_b32', t0, t0, t1))
    e(valu('v_lshlrev_b32', t0, 4, t0))
    e(valu('v_lshrrev_b32', t1, 2, V(0)))
    e(valu('v_mul_u32_u24', t1, 1152, t1))
    e(valu('v_add_u32', t0, t0, t1))
    e(salu('s_mul_i32', 's54', S_W, 32 * 1152))
    e(valu('v_add_u32', vD, 's54', t0))


A_RING = [0, 1, 2, 4, 3, 5, 6, 7]
P_PARK = {0: 208, 1: 160, 2: 112, 3: 64}
A_PARK = {3: 56, 2: A.Q, 0: 152, 1: 200}


def h_read(base, vaddr, tag):
    return [ds_read('ds_read_b128', V(base + (qt * 4 + i) * 4, 4), vaddr, (qt * 4 + i) * 1024, tag=(tag, i)) for i in range(4) for qt in range(3)]


def h_write(base, vaddr, tag):
    return [ds_write('ds_write_b128', vaddr, V(base + (qt * 4 + i) * 4, 4), (qt * 4 + i) * 1024, tag=tag) for i in range(4) for qt in range(3)]


def split_atoms(ops):
    at, cur = [], []
    for o in ops:
        cur.append(o)
        if o.kind in ('dma', 'vm'):
            at.append(cur); cur = []
    assert not cur
    return at


def p_wread(n):
    k, f = divmod(n, 8)
    i, t = f >> 1, f & 1
    buf = P.F + (n % 4) * 4
    va = P.vW0 if t == 0 else P.vW1
    off = WSLOT[k] * 8192 + i * 256
    return [ds_read('ds_read_b64_tr_b16', V(buf, 2), va, off, tag=('pf', n)),
            ds_read('ds_read_b64_tr_b16', V(buf + 2, 2), va, off + 1024, tag=('pf', n))]


def reduce_frag(ld, acc, vS, vO, s_src, s_dst, t0, t1, tagp):
    loads = []
    for hg in range(8):
        loads.append(salu('s_add_u32', 's64', s_src, hg * 221184))
        loads.append(buf_load(V(ld + 4 * hg, 4), vS, SRD_WS, 's64', 0, tag=(tagp, hg), pol='sc1'))
    comp = []
    for hg in range(8):
        comp.append(wait(vm=(tagp, hg)))
        for r in range(4):
            src = V(ld + 4 * hg + r)
            if hg == 0:
                comp.append(valu('v_lshlrev_b32', V(acc + 2 * r), 16, src))
                comp.append(valu('v_and_b32', V(acc + 2 * r + 1), 0xffff0000, src))
            else:
                comp.append(valu('v_lshlrev_b32', t0, 16, src))
                comp.append(valu('v_and_b32', t1, 0xffff0000, src))
                comp.append(valu('v_add_f32', V(acc + 2 * r), V(acc + 2 * r), t0))
                comp.append(valu('v_add_f32', V(acc + 2 * r + 1), V(acc + 2 * r + 1), t1))
    for r in range(4):
        comp.append(valu('v_cvt_pk_bf16_f32', V(ld + r), V(acc + 2 * r), V(acc + 2 * r + 1)))
    comp.append(buf_store(V(ld, 2), vO, SRD_OUT, s_dst, 0))
    comp.append(buf_store(V(ld + 2, 2), vO, SRD_OUT, s_dst, 32))
    return loads, comp


SRD_OUT, SRD_DBG = 's[8:11]', 's[12:15]'


def red_setup(e, vO, t0):
    e(salu('s_mov_b32', 's8', 's4')); e(salu('s_mov_b32', 's9', 's5'))
    e(salu('s_mov_b32', 's10', 16 * 192 * 1152 * 2)); e(salu('s_mov_b32', 's11', 0x20000))
    e(salu('s_mov_b32', 's12', 's72')); e(salu('s_mov_b32', 's13', 's73'))
    e(salu('s_mov_b32', 's14', 256)); e(salu('s_mov_b32', 's15', 0x20000))
    e(salu('s_and_b32', 's54', 's35', 3))
    e(salu('s_lshr_b32', 's55', 's35', 2))
    e(salu('s_mul_i32', 's68', 's34', 8 * 221184))
    e(salu('s_mul_i32', 's64', 's54', 2 * 27648))
    e(salu('s_add_u32', 's68', 's68', 's64'))
    e(salu('s_mul_i32', 's64', 's55', 27648))
    e(salu('s_add_u32', 's68', 's68', 's64'))
    if PART_WS_OFF: e(salu('s_add_u32', 's68', 's68', PART_WS_OFF))
    e(salu('s_mul_i32', 's69', 's37', 192 * 2304))
    e(salu('s_mul_i32', 's64', 's54', 48 * 2304))
    e(salu('s_add_u32', 's69', 's69', 's64'))
    e(salu('s_mul_i32', 's64', 's36', 1152))
    e(salu('s_add_u32', 's69', 's69', 's64'))
    e(salu('s_mul_i32', 's64', 's55', 576))
    e(salu('s_add_u32', 's69', 's69', 's64'))
    e(salu('s_lshl_b32', 's70', 's34', 2))
    e(valu('v_and_b32', vO, 15, V(0)))
    e(valu('v_mul_u32_u24', vO, 2304, vO))
    e(valu('v_lshrrev_b32', t0, 4, V(0)))
    e(valu('v_lshl_add_u32', vO, t0, 3, vO))


def signal(lab, t0, t1):
    return [salu('s_cmp_eq_u32', S_WAVE, 4), raw(f's_cbranch_scc0 {lab}', 'branch'),
            salu('s_lshl_b32', 's64', 's35', 2), salu('s_lshl_b32', 's64', 1, 's64'),
            valu('v_mov_b32', t0, 's64'), valu('v_mov_b32', t1, 0), raw('s_mov_b64 exec, 1'),
            Ins(f'buffer_atomic_add {t0}, {t1}, {SRD_DBG}, s70 offen sc1', 'salu', rd=[t0.n, t1.n]),
            raw('s_mov_b64 exec, -1'), label(lab)]


def poll(lab, level, t0, t1):
    c = [valu('v_mov_b32', t1, 0), salu('s_mov_b32', 's65', 0), label(lab),
         raw(f'buffer_load_dword {t0}, {t1}, {SRD_DBG}, s70 offen sc1'), raw('s_waitcnt vmcnt(0)'),
         valu('v_readfirstlane_b32', 's64', t0)]
    if level == 1:
        c += [nop(2), salu('s_lshr_b32', 's66', 's64', 1), salu('s_or_b32', 's64', 's64', 's66'), salu('s_and_b32', 's64', 's64', 0x11111111),
              salu('s_cmp_eq_u32', 's64', 0x11111111)]
    else:
        c += [nop(2), salu('s_cmp_eq_u32', 's64', 0x22222222)]
    c += [raw(f's_cbranch_scc1 {lab}_ok', 'branch'), salu('s_add_u32', 's65', 's65', 1), raw('s_sleep 2'),
          salu('s_cmp_lt_u32', 's65', 1 << 22), raw(f's_cbranch_scc1 {lab}', 'branch'), label(f'{lab}_ok')]
    return c


def frag_offsets(sidx):
    return [salu('s_lshl_b32', 's66', sidx, 10), salu('s_add_u32', 's66', 's66', 's68'),
            salu('s_mul_i32', 's64', sidx, 43), salu('s_lshr_b32', 's64', 's64', 7),
            salu('s_mul_i32', 's65', 's64', 3), salu('s_sub_u32', 's65', sidx, 's65'),
            salu('s_mul_i32', 's65', 's65', 16 * 2304), salu('s_lshl_b32', 's64', 's64', 6),
            salu('s_add_u32', 's67', 's69', 's65'), salu('s_add_u32', 's67', 's67', 's64')]


def build_k1():
    INK = OPT.get('inred', 1)
    head = []
    e = head.append
    common_prologue(e)
    head += q0_phase()
    e(salu('s_cmp_ge_u32', S_WAVE, 4))
    e(raw('s_cbranch_scc0 L_A', 'branch'))
    e(raw('s_branch L_P', 'branch'))

    names = [('IT', t) for t in range(-1, 64)]
    quota = {n: 0 for n in names}
    T0 = 0
    QE, QN, QC = OPT.get('qe', 9), OPT.get('qn', 9), OPT.get('qc', 9)
    def fill(ts, total, fixed):
        rest = [t for t in ts if t not in fixed]
        rem = total - sum(fixed.values())
        for i, t in enumerate(rest):
            quota[('IT', t)] = (rem * (i + 1)) // len(rest) - (rem * i) // len(rest)
        for t, v in fixed.items():
            quota[('IT', t)] = v
    if OPT.get('kal', 0):
        for t in range(0, 45): quota[('IT', t)] = 8
        for t in (2, 4, 6, 8, 10, 18, 23, 34, 39): quota[('IT', t)] = 16
    else:
        fill(range(0, 14), 150, {0: 8})
        fill(range(14, 30), 144, {15: QN, 16: QE, 28: QC, 29: QC})
        fill(range(30, 46), 138, {31: QN, 32: QE, 44: QC, 45: 0})
    start = {}
    c = 144
    for n in names:
        start[n] = c; c += quota[n]
    assert c == 576
    iv_of = {}
    for idx, n in enumerate(names):
        for fr in range(start[n], start[n] + quota[n]):
            iv_of[fr] = idx
    hdead = {1: ('IT', 13), 2: ('IT', 29), 3: ('IT', 45)}
    for hq in (1, 2): assert start[hdead[hq]] + quota[hdead[hq]] >= 144 * hq + 150
    front = {}

    NG = 576 * 3
    gaps = [[] for _ in range(NG + 1)]

    ZF = OPT.get('zone', 62)
    pref = [False] * (NG + 64)
    for n in names:
        if n[0] == 'IT':
            for g in range(start[n] * 3, start[n] * 3 + (quota[n] * 3 * ZF) // 100):
                pref[g] = True
        else:
            for g in range(start[n] * 3, (start[n] + quota[n]) * 3):
                pref[g] = True

    def chain(atoms, lo, hi, zone=True):
        n = len(atoms)
        Z = [g for g in range(lo, hi + 1) if pref[g]] if zone else []
        if len(Z) * 2 < n or not Z:
            Z = list(range(lo, hi + 1))
        for a, at in enumerate(atoms):
            g = Z[(a * (len(Z) - 1)) // max(n - 1, 1)]
            gaps[min(g, NG)].append(at)
    for k in range(18, 72):
        M = k // 2
        g0 = k * 24
        at = []
        if k % 2 == 0:
            at.append(x_read_odd(M))
            lw = [x_write(M + 1, i) for i in range(3)] if M + 1 < 36 else []
            ll = [x_load(M + 2, i) for i in range(3, 6)] if M + 2 < 36 else []
            while lw or ll:
                if ll: at.append(ll.pop(0))
                if lw: at.append(lw.pop(0))
        elif M + 1 < 36:
            ll = [x_load(M + 3, i) for i in range(3)] if M + 3 < 36 else [[], [], []]
            at += [x_write(M + 1, 3), x_read_even(M + 1, 0) + x_read_even(M + 1, 1), ll[0], x_write(M + 1, 4), ll[1], x_write(M + 1, 5),
                   x_read_even(M + 1, 2), ll[2]]
        if OPT.get('kal', 0) and any(start[n] == k * 8 and quota[n] for n in names):
            front[k * 8] = at
        else:
            chain(at, g0 + 1, g0 + 21)
        if k % 18 == 17:
            cv = []
            nn = 0
            for f in range(8):
                for qt in range(3):
                    o = q_handoff_tile(qt, f >> 1, f & 1, nn); nn += 1
                    cv += [o[:4], o[4:]]
            chain(cv, g0 + 6, g0 + 39, zone=False)
        if k in (52, 70):
            hr = [valu('v_and_b32', P.T0, ~15, P.vH0)] + h_read(P_PARK[0 if k == 52 else 1], P.T0, ('po', k))
            chain([hr[:4], hr[4:7], hr[7:10], hr[10:]], g0 + 8, g0 + 20)

    pslot = {}
    free = list(range(6))
    for u in range(36):
        if u == 13: free += [6, 7]
        pslot[u] = None
    seq = list(range(6))
    gA = G2('A', 0, [3, 2, 0, 1], lambda h, qt, i: A_PARK[h] + (qt * 4 + i) * 4, acc=8, F=32, PK=0, vT0=V(2), vT1=V(3), vS=V(4),
            slot_off=lambda u: (A_RING[u % 8] * 8192, A_RING[u % 8] * 8192), sstore='s74')
    gP = G2('P', 1, [0, 1, 2, 3], lambda h, qt, i: P_PARK[h] + (qt * 4 + i) * 4, acc=32, F=16, PK=0, vT0=V(6), vT1=V(7), vS=V(5),
            slot_off=lambda u: (WQ_BASE + pslot[u] * 8192, pslot[u] * 8192), sstore='s74')
    gA.PKS = [48, 52, 248]
    gP.PKS = [56, 60, 12]
    p_issue = {}
    fl = list(range(6))
    nxt = 0
    for u in range(5):
        pslot[u] = fl.pop(0); nxt += 1
    for sv in range(36):
        if sv >= 1:
            fl.append(pslot[sv - 1])
        if sv == 7:
            fl += [6, 7]
        lst = []
        while fl and nxt < 36 and len(lst) < 2:
            pslot[nxt] = fl.pop(0); lst.append(nxt); nxt += 1
        p_issue[sv] = lst

    w_issue = {}
    fl = [3]
    wn = 18
    for idx in range(len(names)):
        if idx == 1: fl += [0, 1, 2]
        for k in range(18, wn):
            if iv_of[k * 8 + 7] == idx - 1:
                fl.append(WSLOT[k])
        lst = []
        while wn < 72 and fl:
            WSLOT[wn] = fl.pop(0); lst.append(wn); wn += 1
        w_issue[idx] = lst

    pc = [label('L_P')]
    if OPT.get('prioP'): pc.append(salu('s_setprio', OPT['prioP']))
    pc.append(salu('s_mul_i32', 's54', S_W, 6144))
    pc.append(salu('s_add_u32', 's54', 's54', QT_BASE))
    pc.append(valu('v_lshlrev_b32', P.T0, 4, V(0)))
    pc.append(valu('v_add_u32', P.T0, 's54', P.T0))
    for i in range(2):
        for qt in range(3):
            pc.append(ds_write('ds_write_b128', P.T0, V(A.q(qt, i), 4), (qt * 2 + i) * 1024, tag='qt'))
    pc.append(wait(vm=[('K0', 0)], lg='qt'))
    pc.append(barrier())
    p_setup(pc.append)
    for i in range(6): pc.extend(x_load(9, i))
    for i in range(6): pc.extend(x_load(10, i))
    p_setup2(pc.append)
    vHl = V(8)
    published = set()
    pc.append(salu('s_mul_i32', 's75', 's37', 36864))
    pc.append(salu('s_mul_i32', 's55', S_W, 9216))
    pc.append(salu('s_add_u32', 's75', 's75', 's55'))
    pc.append(salu('s_sub_u32', 's75', 's75', 9 * 128))
    pc.append(valu('v_lshlrev_b32', V(203), 7, V(0)))
    pc.append(valu('v_mov_b32', V(204), 0x7fffff00))
    pc.append(valu('v_cmp_gt_u32', 'vcc', 9, V(0)))
    pc.append(valu('v_cndmask_b32', V(203), V(204), V(203), 'vcc'))
    vD = V(4)
    rd_next = 144
    for idx, n in enumerate(names):
        side = []
        need = []
        post = []
        lg = None
        t = n[1] if n[0] == 'IT' else None
        f0, q = start[n], quota[n]
        for k in w_issue[idx]:
            side += split_atoms(wq_dma(k))
        newpub = set()
        if idx + 1 < len(names):
            n2 = names[idx + 1]
            newpub = {fr // 8 for fr in range(start[n2], start[n2] + quota[n2])}
            need += [('W', k) for k in sorted(newpub)]
        if n in hdead.values():
            lg = 'hw'
        if n[0] == 'IT':
            if 0 <= t and t + 4 <= 63:
                side += split_atoms(k_dma(P.vKd, t + 4))
            if 2 <= t and t + 2 <= 63:
                side += split_atoms(v_dma(P.vVd, t + 2))
            if 4 <= t + 1 <= 63:
                need.append(('V', t + 1))
            if 4 <= t + 3 <= 63:
                need.append(('K', t + 3))
            if OPT.get('wot', 'p') == 'p' and t in range(3, 35, 4):
                side.append([salu('s_add_u32', 's75', 's75', 9 * 128), buf_load(V(204), V(203), SRD_WO, 's75', 0)])
            if t == -1:
                need += [('V0', 0), ('K0', 2), ('V0', 2)]
            if t == T0 - 1:
                for i in range(4): post.extend(x_write(9, i))
                post.extend(x_read_even(9, 0) + x_read_even(9, 1) + x_write(9, 4) + x_write(9, 5) + x_read_even(9, 2))
                for i in range(3): post.extend(x_load(11, i))
            if t == 45:
                for at in gaps[NG]: post.extend(at)
            if t == 47:
                wo_vd(post.append, vD, P.T0, V(12))
                g2_setup(post.append, 1, gP.vT0, gP.vT1, gP.vS, WQ_BASE, P.T0, V(12), 's74')
                post.append(valu('v_and_b32', vHl, ~15, P.vH0))
            if t == 50:
                post += h_read(P_PARK[2], vHl, ('po', t)); lg = 'all'
            if 54 <= t <= 58:
                post += gP.dma(t - 54, vD)
            if t == 59:
                need += [('U', 'P', 0), ('U', 'P', 1)]
            if t == 60:
                post += gA.dma(0, vD)
            if t in (61, 62, 63):
                v = t - 61
                if t == 61:
                    post += gP.start()
                at = []
                for u in p_issue[v]:
                    at += split_atoms(gP.dma(u, vD))
                for u in ([1], [2, 3], [4, 5])[v]: at += split_atoms(gA.dma(u, vD))
                post += gP.unit(v, at)
                need.append(('U', 'P', v + 2))
                if t == 63:
                    need += [('U', 'A', 0), ('U', 'A', 1)]
        boost = OPT.get('boost') and n[0] == 'IT' and t in (15, 16, 31, 32)
        if boost: pc.append(salu('s_setprio', 2))
        if q:
            while rd_next < min(f0 + 3, 576) and rd_next // 8 in published:
                pc.extend(p_wread(rd_next)); rd_next += 1
            tgt = {}
            if OPT.get('kal', 0):
                if OPT.get('fprio'): pc.append(salu('s_setprio', 2))
                for at in front.get(f0, []) + side: pc.extend(at)
                if OPT.get('fprio'): pc.append(salu('s_setprio', OPT.get('mprio', 0)))
            else:
                if side:
                    pc.extend(side.pop(0))
                ng = max(1, (q * 3 * ZF) // 100)
                for a, at in enumerate(side):
                    tgt.setdefault((a * ng) // len(side), []).append(at)
            for fr in range(f0, f0 + q):
                k, f = divmod(fr, 8)
                i, tt = f >> 1, f & 1
                pc.append(wait(lg=[('pf', fr)] + ([('xf', k)] if f == 0 else [])))
                rd = []
                if rd_next == fr + 3 and rd_next < 576 and rd_next // 8 in published:
                    rd = p_wread(rd_next); rd_next += 1
                for qt in range(3):
                    d = P.acc(qt, i, tt)
                    pc.append(mfma(d, P.F + (fr % 4) * 4, P.xf(k, qt), d if k % 18 else None))
                    if qt < len(rd): pc.append(rd[qt])
                    for at in gaps[fr * 3 + qt]:
                        pc.extend(at)
                    for at in tgt.get((fr - f0) * 3 + qt, []):
                        pc.extend(at)
                if OPT.get('pfine') == t and fr - f0 < 10: pc.extend(stamp(fr - f0 + 2))
        else:
            for at in side:
                pc.extend(at)
        pc.extend(post)
        if boost: pc.append(salu('s_setprio', 0))
        pc.append(wait(vm=need, lg=lg))
        pc.append(barrier())
        published |= newpub
        if OPT.get('novm') and n == ('IT', 0): novm0 = len(pc)
        if OPT.get('novm') and n == ('IT', 52):
            for x in pc[novm0:]:
                if x.kind in ('dma', 'vm'):
                    kk = 'kv' if x.tag and x.tag[0] in 'KV' else ('w' if x.tag and x.tag[0] == 'W' else 'x')
                    if OPT['novm'] == 'all' or kk in OPT['novm'].split('+'):
                        x.text = 's_nop 0'
        st = {('IT', -1): 3, ('IT', 0): 4, ('IT', 16): 5, ('IT', 32): 6, ('IT', 48): 7, ('IT', 63): 8}
        if OPT.get('stpro'):
            st = {('PRO', k): i + 1 for i, k in enumerate([0, 1, 3, 5, 7, 9, 11, 13, 15, 17])}; st[('HND', 0)] = 11
        if OPT.get('stit') is not None:
            st = {('IT', OPT['stit'] + i): i + 1 for i in range(11)}
        if 'stg' in OPT: st = {}
        if 'pfine' in OPT: st = {('IT', OPT['pfine'] - 1): 1}
        if n in st:
            pc.extend(stamp(st[n]))
    nost = OPT.get('stpro') or 'stit' in OPT or 'stg' in OPT or 'pfine' in OPT
    for g in range(33):
        v = g + 3
        at = []
        need = []
        for u in p_issue[v]:
            at += split_atoms(gP.dma(u, vD))
        if g == 0:
            at += split_atoms(gA.dma(6, vD))
        if g + 7 < 36:
            at += split_atoms(gA.dma(g + 7, vD))
        if v + 2 < 36:
            need.append(('U', 'P', v + 2))
        need.append(('U', 'A', g + 2 if g < 32 else 35))
        lg = None
        otag = None
        if g == 0:
            pc += h_read(P_PARK[3], vHl, 'po3')
            otag = lambda kb: ('po3', kb)
            hw = h_write(P_PARK[0], vHl, 'hw0'); at = [[x] for x in hw] + at; lg = 'hw0'
        if g == 2:
            hw = h_write(P_PARK[1], vHl, 'hw1'); at = [[x] for x in hw] + at; lg = 'hw1'
        if g == 5 and INK:
            rs = []; red_setup(rs.append, V(9), V(1)); at = [rs[i:i + 4] for i in range(0, len(rs), 4)] + at
        if g == 30 and INK:
            need.append(('st', 'P', 6))
        if g == 31 and INK:
            pc += signal('L_sig1', V(1), V(2))
        pc += gP.unit(v, at, otag)
        pc.append(wait(vm=need, lg=lg))
        pc.append(barrier())
        if 'stg' in OPT and 0 <= g - OPT['stg'] < 11: pc.extend(stamp(g - OPT['stg'] + 1))
    if not nost: pc.extend(stamp(9))
    if INK:
        pc += poll('L_poll1', 1, V(1), V(2))
        NF = 6
        lc = []
        for r in range(NF):
            pre = [salu('s_add_u32', 's71', S_W, 4 * r), salu('s_min_u32', 's71', 's71', 20)] + frag_offsets('s71') + \
                  [salu('s_mov_b32', f's{40 + r}', 's67')]
            ld, cp = reduce_frag(64 + 32 * r, 16, gP.vS, V(9), 's66', f's{40 + r}', V(1), V(2), ('r1', r))
            lc.append((pre + ld, cp))
        for r in range(NF):
            pc += lc[r][0]
        for r in range(NF):
            pc += lc[r][1]
        pc.append(wait(vm=('st', 'P', 8)))
        pc.append(barrier())
        if not nost: pc.extend(stamp(10))
        pc += signal('L_sig2', V(1), V(2))
        pc += [salu('s_cmp_ge_u32', S_W, 2), raw('s_cbranch_scc1 L_P_end', 'branch')]
        pc += poll('L_poll2p', 2, V(1), V(2))
        pc += [salu('s_add_u32', 's71', S_W, 25)] + frag_offsets('s71')
        ld, cp = reduce_frag(64, 16, gP.vS, V(9), 's66', 's67', V(1), V(2), 'r2')
        pc += ld + cp
        pc.append(label('L_P_end'))
    if not nost: pc.extend(stamp(11))
    pc.extend(stamp_out())
    pc.append(raw('s_endpgm', 'branch'))
    resolve_waits(head + pc)
    while hazards(head + pc):
        pass

    def osink(h):
        def sink(qt, i, buf):
            return [ds_write('ds_write_b128', A.vH, buf, (qt * 4 + i) * 1024, tag='ow')]
        return sink
    ag = AGen(osink)
    apro = [label('L_A')]
    e = apro.append
    if OPT.get('prioA', 1): e(salu('s_setprio', OPT.get('prioA', 1)))

    a_setup(e)
    e(salu('s_mov_b32', 's71', 0))
    e(salu('s_mul_i32', 's54', S_W, 6144))
    e(salu('s_add_u32', 's54', 's54', QT_BASE))
    e(valu('v_add_u32', A.T0, 's54', A.vO))
    e(wait(vm=[('K0', 0)]))
    e(barrier())
    for n in (0, 2):
        apro.extend(ag.read(n))
    for i in range(2):
        for qt in range(3):
            e(ds_read('ds_read_b128', V(A.q(qt, 2 + i), 4), A.T0, (qt * 2 + i) * 1024, tag='qt'))
    e(wait(lg='qt'))
    def bar(t):
        b = []
        if t == 0: b.append(wait(vm='all'))
        if t % 16 == 1: b.append(wait(lg='ow' if t > 1 else None))
        b.append(barrier())
        if t == 0: b += stamp(3)
        def cst(k):
            if not STAMPS: return []
            return [salu('s_cmp_eq_u32', 's71', OPT.get('sth', 3)), raw(f's_cbranch_scc0 L_cs{k}', 'branch')] + stamp(k) + [label(f'L_cs{k}')]
        if t % 16 == 5: b += cst(5)
        if t % 16 == 6: b = cst(6) + b + cst(7)
        return b
    apro.extend(ag.iteration(-1))
    apro.extend(ag.iteration(0, bar=bar(0))); apro.extend(stamp(4))
    bodies = []
    for h in range(4):
        b = []
        for j in range(1, 14):
            b.extend(ag.iteration(16 * h + j, bar=bar(16 * h + j)))
        b.append(salu('s_cmp_eq_u32', 's71', 3))
        b.append(raw('s_cbranch_scc1 L_A_tail', 'branch'))
        if h < 3:
            for j in (14, 15, 16):
                b.extend(ag.iteration(16 * h + j, bar=bar(16 * h + j)))
            b.append(salu('s_add_u32', 's71', 's71', 1))
            b.append(raw('s_branch L_A_loop', 'branch'))
        bodies.append(b)
    tail = [label('L_A_tail')]
    tail.extend(ag.iteration(62, bar=bar(62)))
    tail.extend(ag.iteration(63, bar=bar(63)))
    eo = epilogue_ops(osink(3), dst=lambda qt, i: A_PARK[3] + (qt * 4 + i) * 4)
    tail.extend(ag.iteration(64))
    tail.extend(eo)
    g2_setup(tail.append, 0, gA.vT0, gA.vT1, gA.vS, 0, A.T0, A.T1, 's74')
    tail.append(wait(lg='all'))
    tail.append(barrier())
    tail.extend(stamp(8))
    if OPT.get('prio2') is not None: tail.append(salu('s_setprio', OPT['prio2']))
    tail += gA.start()
    for g in range(36):
        at = []
        otag = None
        lg = None
        vmn = None
        if g == 1:
            at = [[x] for x in h_read(A_PARK[0], A.vH, 'ao0')]; lg = ('ao0', 3)
        if g == 3:
            tail += h_read(A_PARK[1], A.vH, 'ao1')
            otag = lambda kb: ('ao1', kb)
        if g == 5 and INK:
            rs = []; red_setup(rs.append, V(6), V(1)); at = [rs[i:i + 4] for i in range(0, len(rs), 4)]
        if g == 30 and INK:
            vmn = ('st', 'A', 6)
        tail += gA.unit(g, at, otag)
        if g <= 32:
            tail.append(wait(lg=lg, vm=vmn))
            tail.append(barrier())
    tail.extend(stamp(9))
    if INK:
        tail.append(wait(vm='all'))
        tail.append(barrier())
        tail.extend(stamp(10))
        tail += poll('L_poll2a', 2, V(1), V(7))
        tail += [salu('s_add_u32', 's71', S_W, 21)] + frag_offsets('s71')
        ld, cp = reduce_frag(64, 16, gA.vS, V(6), 's66', 's67', V(1), V(7), 'r2')
        tail += ld + cp
    tail.extend(stamp(11))
    tail.extend(stamp_out())
    tail.append(raw('s_endpgm', 'branch'))
    resolve_waits(head + apro + bodies[0] + bodies[1] + bodies[2] + bodies[3] + tail)
    body = fold(bodies)
    npre = len(bodies[3])
    while hazards(head + apro + body + body + body[:npre] + tail):
        pass
    rare = []
    for site, lab in rare_sites:
        rare += [label(f'TR_{site}'), raw(f's_call_b64 s[62:63], {lab}', 'branch'), raw(f's_branch RET_{site}', 'branch')]
    for var, lab in rare_variants.items():
        rc = rare_code(var, lab)
        while hazards(rc):
            pass
        rare += rc
    nb = lambda q: sum(1 for i in q if i.kind == 'barrier')
    na = nb(apro) + 3 * nb(body) + nb(body[:npre]) + nb(tail)
    assert na == nb(pc), (na, nb(pc))
    print(stats(apro, 'A pro'), file=sys.stderr); print(stats(body, 'A body'), file=sys.stderr)
    print(stats(tail, 'A tail'), file=sys.stderr); print(stats(pc, 'P'), file=sys.stderr); print(stats(rare, 'rare'), file=sys.stderr)
    lines = render(head) + render(apro) + ['.p2align 6', 'L_A_loop:'] + render(body) + render(rare) + render(tail) + ['.p2align 6'] + render(pc) + ['L_k1_end:']
    return lines

def build_k3_old():
    c = []
    e = c.append
    e(raw('s_cmp_ge_u32 s2, 1728')); e(raw('s_cbranch_scc0 L3_go')); e(raw('s_endpgm')); e(label('L3_go'))
    e(raw('s_load_dwordx2 s[4:5], s[0:1], 80'))
    e(raw('s_load_dwordx2 s[6:7], s[0:1], 96'))
    e(valu('v_lshrrev_b32', V(1), 6, V(0)))
    e(valu('v_readfirstlane_b32', 's16', V(1)))
    e(valu('v_and_b32', V(0), 63, V(0)))
    if OPT.get('k3x', 1):
        e(salu('s_and_b32', 's17', 's2', 7))
        e(salu('s_mul_i32', 's17', 's17', 216))
        e(salu('s_lshr_b32', 's18', 's2', 3))
        e(salu('s_add_u32', 's17', 's17', 's18'))
        e(salu('s_lshl_b32', 's17', 's17', 2))
    else:
        e(salu('s_lshl_b32', 's17', 's2', 2))
    e(salu('s_add_u32', 's17', 's17', 's16'))
    e(salu('s_mul_hi_u32', 's18', 's17', (2 ** 32 + 215) // 216))
    e(salu('s_mul_i32', 's19', 's18', 216))
    e(salu('s_sub_u32', 's19', 's17', 's19'))
    e(salu('s_mul_hi_u32', 's20', 's19', (2 ** 32 + 26) // 27))
    e(salu('s_mul_i32', 's21', 's20', 27))
    e(salu('s_sub_u32', 's21', 's19', 's21'))
    e(salu('s_mul_hi_u32', 's22', 's21', (2 ** 32 + 2) // 3))
    e(salu('s_mul_i32', 's23', 's22', 3))
    e(salu('s_sub_u32', 's23', 's21', 's23'))
    e(raw('s_waitcnt lgkmcnt(0)'))
    e(salu('s_mov_b32', 's8', 's6')); e(salu('s_mov_b32', 's9', 's7'))
    e(salu('s_mov_b32', 's10', PART_WS_OFF + 256 * 221184)); e(salu('s_mov_b32', 's11', 0x20000))
    e(salu('s_mov_b32', 's12', 's4')); e(salu('s_mov_b32', 's13', 's5'))
    e(salu('s_mov_b32', 's14', 16 * 192 * 1152 * 2)); e(salu('s_mov_b32', 's15', 0x20000))
    e(salu('s_mul_i32', 's24', 's18', 8 * 221184))
    e(salu('s_lshl_b32', 's25', 's19', 10))
    e(salu('s_add_u32', 's24', 's24', 's25'))
    e(salu('s_add_u32', 's24', 's24', PART_WS_OFF))
    e(valu('v_lshlrev_b32', V(1), 4, V(0)))
    for hg in range(8):
        e(buf_load(V(8 + 4 * hg, 4), V(1), 's[8:11]', 's24', 0, tag=('p', hg), pol=OPT.get('rpol', '').replace('+', ' ')))
        e(salu('s_add_u32', 's24', 's24', 221184))
    e(salu('s_and_b32', 's26', 's18', 15))
    e(salu('s_mul_i32', 's26', 's26', 192))
    e(salu('s_lshr_b32', 's27', 's20', 1))
    e(salu('s_mul_i32', 's27', 's27', 48))
    e(salu('s_add_u32', 's26', 's26', 's27'))
    e(salu('s_lshl_b32', 's27', 's23', 4))
    e(salu('s_add_u32', 's26', 's26', 's27'))
    e(salu('s_mul_i32', 's26', 's26', 2304))
    e(salu('s_lshr_b32', 's27', 's18', 4))
    e(salu('s_mul_i32', 's27', 's27', 1152))
    e(salu('s_add_u32', 's26', 's26', 's27'))
    e(salu('s_and_b32', 's27', 's20', 1))
    e(salu('s_mul_i32', 's27', 's27', 576))
    e(salu('s_add_u32', 's26', 's26', 's27'))
    e(salu('s_lshl_b32', 's27', 's22', 6))
    e(salu('s_add_u32', 's26', 's26', 's27'))
    e(valu('v_and_b32', V(2), 15, V(0)))
    e(valu('v_mul_u32_u24', V(2), 2304, V(2)))
    e(valu('v_lshrrev_b32', V(3), 4, V(0)))
    e(valu('v_lshl_add_u32', V(2), V(3), 3, V(2)))
    ACC = 40
    for hg in range(8):
        e(wait(vm=('p', hg)))
        for r in range(4):
            src = V(8 + 4 * hg + r)
            if hg == 0:
                e(valu('v_lshlrev_b32', V(ACC + 2 * r), 16, src))
                e(valu('v_and_b32', V(ACC + 2 * r + 1), 0xffff0000, src))
            else:
                e(valu('v_lshlrev_b32', V(4), 16, src))
                e(valu('v_and_b32', V(5), 0xffff0000, src))
                e(valu('v_add_f32', V(ACC + 2 * r), V(ACC + 2 * r), V(4)))
                e(valu('v_add_f32', V(ACC + 2 * r + 1), V(ACC + 2 * r + 1), V(5)))
    for r in range(4):
        e(valu('v_cvt_pk_bf16_f32', V(8 + r), V(ACC + 2 * r), V(ACC + 2 * r + 1)))
    e(buf_store(V(8, 2), V(2), 's[12:15]', 's26', 0))
    e(buf_store(V(10, 2), V(2), 's[12:15]', 's26', 32))
    e(raw('s_endpgm', 'branch'))
    resolve_waits(c)
    while hazards(c):
        pass
    return render(c)


def build_k3():
    c = []
    e = c.append
    e(raw('s_cmp_ge_u32 s2, 256')); e(raw('s_cbranch_scc0 L3_go')); e(raw('s_endpgm')); e(label('L3_go'))
    e(raw('s_load_dwordx2 s[4:5], s[0:1], 80'))
    e(raw('s_load_dwordx2 s[6:7], s[0:1], 96'))
    e(valu('v_lshrrev_b32', V(1), 6, V(0)))
    e(valu('v_readfirstlane_b32', 's22', V(1)))
    e(valu('v_and_b32', V(0), 63, V(0)))
    e(salu('s_and_b32', 's17', 's2', 7))
    e(salu('s_lshr_b32', 's19', 's2', 3))
    e(salu('s_lshl_b32', 's18', 's17', 2))
    e(salu('s_lshr_b32', 's20', 's19', 3))
    e(salu('s_add_u32', 's18', 's18', 's20'))
    e(salu('s_and_b32', 's20', 's19', 7))
    e(salu('s_mul_i32', 's24', 's18', 8 * 221184))
    e(salu('s_mul_i32', 's25', 's20', 27648))
    e(salu('s_add_u32', 's24', 's24', 's25'))
    e(salu('s_mul_i32', 's25', 's22', 3072))
    e(salu('s_add_u32', 's24', 's24', 's25'))
    if PART_WS_OFF: e(salu('s_add_u32', 's24', 's24', PART_WS_OFF))
    e(valu('v_lshlrev_b32', V(1), 4, V(0)))
    e(raw('s_waitcnt lgkmcnt(0)'))
    e(salu('s_mov_b32', 's8', 's6')); e(salu('s_mov_b32', 's9', 's7'))
    e(salu('s_mov_b32', 's10', PART_WS_OFF + 256 * 221184)); e(salu('s_mov_b32', 's11', 0x20000))
    LD = 16
    for qt in range(3):
        for hg in range(8):
            e(salu('s_add_u32', 's25', 's24', hg * 221184))
            e(buf_load(V(LD + (qt * 8 + hg) * 4, 4), V(1), 's[8:11]', 's25', qt * 1024, tag=('p', qt, hg), pol=OPT.get('rpol', '').replace('+', ' ')))
    e(salu('s_mov_b32', 's12', 's4')); e(salu('s_mov_b32', 's13', 's5'))
    e(salu('s_mov_b32', 's14', 16 * 192 * 1152 * 2)); e(salu('s_mov_b32', 's15', 0x20000))
    e(salu('s_and_b32', 's26', 's18', 15))
    e(salu('s_mul_i32', 's26', 's26', 192))
    e(salu('s_lshr_b32', 's27', 's20', 1))
    e(salu('s_mul_i32', 's27', 's27', 48))
    e(salu('s_add_u32', 's26', 's26', 's27'))
    e(salu('s_mul_i32', 's26', 's26', 2304))
    e(salu('s_lshr_b32', 's27', 's18', 4))
    e(salu('s_mul_i32', 's27', 's27', 1152))
    e(salu('s_add_u32', 's26', 's26', 's27'))
    e(salu('s_and_b32', 's27', 's20', 1))
    e(salu('s_mul_i32', 's27', 's27', 576))
    e(salu('s_add_u32', 's26', 's26', 's27'))
    e(salu('s_lshl_b32', 's27', 's22', 6))
    e(salu('s_add_u32', 's26', 's26', 's27'))
    e(valu('v_and_b32', V(2), 15, V(0)))
    e(valu('v_mul_u32_u24', V(2), 2304, V(2)))
    e(valu('v_lshrrev_b32', V(3), 4, V(0)))
    e(valu('v_lshl_add_u32', V(2), V(3), 3, V(2)))
    ACC = 8
    for qt in range(3):
        for hg in range(8):
            e(wait(vm=('p', qt, hg)))
            for r in range(4):
                src = V(LD + (qt * 8 + hg) * 4 + r)
                if hg == 0:
                    e(valu('v_lshlrev_b32', V(ACC + 2 * r), 16, src))
                    e(valu('v_and_b32', V(ACC + 2 * r + 1), 0xffff0000, src))
                else:
                    e(valu('v_lshlrev_b32', V(4), 16, src))
                    e(valu('v_and_b32', V(5), 0xffff0000, src))
                    e(valu('v_add_f32', V(ACC + 2 * r), V(ACC + 2 * r), V(4)))
                    e(valu('v_add_f32', V(ACC + 2 * r + 1), V(ACC + 2 * r + 1), V(5)))
        o = LD + qt * 32
        for r in range(4):
            e(valu('v_cvt_pk_bf16_f32', V(o + r), V(ACC + 2 * r), V(ACC + 2 * r + 1)))
        e(buf_store(V(o, 2), V(2), 's[12:15]', 's26', 0))
        e(buf_store(V(o + 2, 2), V(2), 's[12:15]', 's26', 32))
        e(salu('s_add_u32', 's26', 's26', 16 * 2304))
    e(raw('s_endpgm', 'branch'))
    resolve_waits(c)
    while hazards(c):
        pass
    return render(c)


def kd(name, vgpr, sgpr=102):
    return ['.p2align 6', f'.amdhsa_kernel {name}', f'  .amdhsa_next_free_vgpr {vgpr}', f'  .amdhsa_next_free_sgpr {sgpr}',
            f'  .amdhsa_accum_offset {(vgpr + 3) // 4 * 4}', '  .amdhsa_group_segment_fixed_size 0', '  .amdhsa_kernarg_size 104',
            '  .amdhsa_user_sgpr_count 2', '  .amdhsa_user_sgpr_kernarg_segment_ptr 1', '  .amdhsa_system_sgpr_workgroup_id_x 1',
            '.end_amdhsa_kernel']


def kern(name, lines):
    return [f'.globl {name}', '.p2align 8', f'.type {name},@function', f'{name}:'] + lines


if __name__ == '__main__':
    which = sys.argv[2] if len(sys.argv) > 2 else '123'
    STAMPS = 's' in which
    for kv in sys.argv[3:]:
        k, v = kv.split('='); OPT[k] = int(v) if v.lstrip('-').isdigit() else v
    out = []
    single = '3' not in which
    k1 = NAME + '_kernel' if single else 'k1_kernel'
    if single:
        out.append(f'; @launch grid=(256,1,1) block=(512,1,1) lds={LDS_BYTES}')
    else:
        OPT['inred'] = 0
        out.append(f'; @launch kernel=k1_kernel grid=(256,1,1) block=(512,1,1) lds={LDS_BYTES}')
        out.append('; @launch kernel=k3_kernel grid=(1728,1,1) block=(256,1,1) lds=0' if OPT.get('k3old') else '; @launch kernel=k3_kernel grid=(256,1,1) block=(576,1,1) lds=0')
    out += ['.amdgcn_target "amdgcn-amd-amdhsa--gfx950"', '.text']
    out += kern(k1, build_k1())
    if not single: out += kern('k3_kernel', build_k3_old() if OPT.get('k3old') else build_k3())
    out += ['.section .rodata,"a"'] + kd(k1, 256) + ([] if single else kd('k3_kernel', 48 if OPT.get('k3old') else 112, 32))
    open(sys.argv[1], 'w').write('\n'.join(out) + '\n')
```

```python
import sys, math
sys.path.insert(0, 'gen')
from asmlib import *

NAME = 'concat_heads__mha_block_cached__mha_block_cached__near_ridge'
CSCALE = math.log2(math.e) / math.sqrt(128.0)
THR = 1024.0

KV_BASE = 0
WQ_BASE = 65536
NWQ = 4
WSLOT = {}
XB_BASE = WQ_BASE + NWQ * 8192
H_BASE = XB_BASE + 16384
LDS_BYTES = 163840

SRD_K, SRD_V, SRD_WQ, SRD_X, SRD_WS, SRD_WO = 's[8:11]', 's[12:15]', 's[16:19]', 's[20:23]', 's[24:27]', 's[28:31]'
S_W = 's50'
S_WAVE = 's39'
S_ID = 's51'

PART_WS_OFF = 0


STAMPS = False
OPT = {}
STAMP_OFF = 120 * 1024 * 1024
def stamp(k):
    if not STAMPS: return []
    assert k < 12
    return [raw(f's_memtime s[{76 + 2 * k}:{77 + 2 * k}]')]
def stamp_init():
    if not STAMPS: return []
    return [salu('s_mov_b32', f's{r}', 0) for r in range(76, 100)] + [raw('s_memrealtime s[100:101]')]
def stamp_out(t0=V(8, 4), a=V(1)):
    if not STAMPS: return []
    c = [raw('s_memrealtime s[52:53]'), raw('s_waitcnt vmcnt(0) lgkmcnt(0)'), salu('s_lshl_b32', 's54', 's2', 3), salu('s_add_u32', 's54', 's54', S_WAVE),
         salu('s_lshl_b32', 's54', 's54', 7), salu('s_add_u32', 's54', 's54', STAMP_OFF), salu('s_mov_b32', 's26', STAMP_OFF + 1024 * 1024),
         valu('v_mov_b32', a, 0), raw('s_mov_b64 exec, 1')]
    regs = list(range(76, 102)) + [52, 53]
    for k in range(7):
        for r in range(4):
            c.append(valu('v_mov_b32', V(t0.n + r), f's{regs[4 * k + r]}'))
        c.append(buf_store(t0, a, SRD_WS, 's54', 16 * k))
        c.append(nop(3))
    return c


PHYS = {7: 0, 1: 1, 2: 2, 4: 3, 3: 4, 5: 5, 6: 6, 0: 7}
def kslot(t): return t % 4
def vslot(t): return 4 + t % 4
def wslot0(k): return 8 + k % 6
XS = [4, 5, 6, 16, 17, 18, 19, 14, 15]
XBASE = 14 * 8192
def xslot(M, qt): return XS[(M % 3) * 3 + qt]
S_SET = 's3'


def common_prologue(e, nwg=256):
    e(raw(f's_cmp_ge_u32 s2, {nwg}'))
    e(raw('s_cbranch_scc0 L_go'))
    e(raw('s_endpgm'))
    e(label('L_go'))
    e(raw('s_load_dwordx2 s[4:5], s[0:1], 80'))
    e(raw('s_load_dwordx2 s[6:7], s[0:1], 96'))
    e(raw('s_load_dwordx2 s[72:73], s[0:1], 88'))
    e(salu('s_and_b32', 's32', 's2', 7))
    e(salu('s_lshr_b32', 's33', 's2', 3))
    if OPT.get('map', 0) == 1:
        e(salu('s_lshr_b32', 's34', 's32', 2))
        e(salu('s_lshl_b32', 's34', 's34', 4))
        e(salu('s_lshr_b32', 's35', 's33', 1))
        e(salu('s_add_u32', 's34', 's34', 's35'))
        e(salu('s_and_b32', 's35', 's32', 3))
        e(salu('s_lshl_b32', 's35', 's35', 1))
        e(salu('s_and_b32', 's33', 's33', 1))
        e(salu('s_add_u32', 's35', 's35', 's33'))
    elif OPT.get('map', 0) == 2:
        e(salu('s_lshr_b32', 's34', 's32', 1))
        e(salu('s_lshl_b32', 's34', 's34', 3))
        e(salu('s_lshr_b32', 's35', 's33', 2))
        e(salu('s_add_u32', 's34', 's34', 's35'))
        e(salu('s_and_b32', 's35', 's32', 1))
        e(salu('s_lshl_b32', 's35', 's35', 2))
        e(salu('s_and_b32', 's33', 's33', 3))
        e(salu('s_add_u32', 's35', 's35', 's33'))
    else:
        e(salu('s_lshl_b32', 's34', 's32', 2))
        e(salu('s_lshr_b32', 's35', 's33', 3))
        e(salu('s_add_u32', 's34', 's34', 's35'))
        e(salu('s_and_b32', 's35', 's33', 7))
    e(salu('s_lshr_b32', 's36', 's34', 4))
    e(salu('s_and_b32', 's37', 's34', 15))
    e(salu('s_lshl_b32', S_ID, 's34', 3))
    e(salu('s_add_u32', S_ID, S_ID, 's35'))
    e(salu('s_mul_i32', 's38', 's36', 40))
    e(salu('s_add_u32', 's52', 's0', 's38'))
    e(salu('s_addc_u32', 's53', 's1', 0))
    e(raw('s_load_dwordx4 s[40:43], s[52:53], 0'))
    e(raw('s_load_dwordx4 s[44:47], s[52:53], 16'))
    e(raw('s_load_dwordx2 s[48:49], s[52:53], 32'))
    e(valu('v_lshrrev_b32', V(1), 6, V(0)))
    e(valu('v_readfirstlane_b32', S_WAVE, V(1)))
    e(valu('v_and_b32', V(0), 63, V(0)))
    e(salu('s_and_b32', S_W, S_WAVE, 3))
    e(salu('s_lshr_b32', S_SET, S_WAVE, 2))
    e(salu('s_lshl_b32', 's58', S_SET, 9))
    e(salu('s_add_u32', 's58', 's58', 65536))
    e(salu('s_lshl_b32', 's62', S_W, 11))
    e(salu('s_lshl_b32', 's63', S_SET, 10))
    e(salu('s_add_u32', 's63', 's63', 's62'))
    e(salu('s_add_u32', 's62', 's62', 's58'))
    q_dma_addrs(e)
    e(raw('s_waitcnt lgkmcnt(0)'))
    e(salu('s_lshl_b32', 's54', 's35', 10))
    e(salu('s_add_u32', 's16', 's46', 's54')); e(salu('s_addc_u32', 's17', 's47', 0))
    e(salu('s_sub_u32', 's18', 576 * 8192, 's54')); e(salu('s_mov_b32', 's19', 0x20000))
    e(salu('s_mul_i32', 's54', 's37', 221184))
    e(salu('s_add_u32', 's20', 's40', 's54')); e(salu('s_addc_u32', 's21', 's41', 0))
    e(salu('s_mov_b32', 's22', 221184)); e(salu('s_mov_b32', 's23', 0x20000))
    for x in wq0_dma(0) + x0_dma(0) + wq0_dma(1) + wq0_dma(2) + x0_dma(1) + wq0_dma(3) + wq0_dma(4) + x0_dma(2) + wq0_dma(5): e(x)
    e(salu('s_lshl_b32', 's54', 's37', 3))
    e(salu('s_add_u32', 's54', 's54', 's35'))
    e(salu('s_lshl_b32', 's54', 's54', 19))
    e(salu('s_add_u32', 's8', 's42', 's54')); e(salu('s_addc_u32', 's9', 's43', 0))
    e(salu('s_mov_b32', 's10', 524288)); e(salu('s_mov_b32', 's11', 0x20000))
    e(salu('s_add_u32', 's12', 's44', 's54')); e(salu('s_addc_u32', 's13', 's45', 0))
    e(salu('s_mov_b32', 's14', 524288)); e(salu('s_mov_b32', 's15', 0x20000))
    e(salu('s_mov_b32', 's24', 's6')); e(salu('s_mov_b32', 's25', 's7'))
    e(salu('s_mov_b32', 's26', PART_WS_OFF + 256 * 221184)); e(salu('s_mov_b32', 's27', 0x20000))
    e(salu('s_mul_i32', 's54', 's35', 589824))
    e(salu('s_add_u32', 's28', 's48', 's54')); e(salu('s_addc_u32', 's29', 's49', 0))
    e(salu('s_mov_b32', 's30', 589824)); e(salu('s_mov_b32', 's31', 0x20000))
    if OPT.get('cpf', 1):
        e(raw('s_getpc_b64 s[52:53]'))
        e(label('L_cpf'))
        e(salu('s_lshr_b32', 's54', 's2', 3))
        e(salu('s_lshl_b32', 's54', 's54', 3))
        e(salu('s_add_u32', 's54', 's54', S_WAVE))
        e(salu('s_lshl_b32', 's54', 's54', 9))
        e(valu('v_and_b32', V(20), 3, V(0)))
        e(valu('v_lshlrev_b32', V(20), 7, V(20)))
        e(valu('v_add_u32', V(20), 's54', V(20)))
        e(valu('v_min_u32', V(20), 'L_k1_end-L_cpf-8', V(20)))
        e(Ins('global_load_dword v21, v20, s[52:53]', 'vm', rd=[20], wr=[21]))
    for x in stamp_init() + stamp(0): e(x)


CODE_BYTES = 90000


def wq0_dma(k):
    return [salu('s_add_u32', 'm0', 's63', wslot0(k) * 8192), salu('s_mov_b32', 's66', k * 262144), dma(A.vWd, SRD_WQ, 's66', 0, tag=('W0', k))]


def x0_dma(M):
    o = []
    for qt in range(3):
        o += [salu('s_add_u32', 'm0', 's63', xslot(M, qt) * 8192), salu('s_mov_b32', 's66', M * 128 + qt * 18432),
              dma(A.vXd, SRD_X, 's66', 0, tag=('X0', M))]
    return o


def kv0_dma(kind, t):
    if kind == 'K':
        assert kslot(t + 1) == kslot(t) + 1
        return [salu('s_add_u32', 'm0', 's68', kslot(t) * 8192), salu('s_add_u32', 's66', 's70', t * 8192),
                dma(A.vKd, SRD_K, 's66', 0, tag=('K0', t), pol='nt'), dma(A.vKd, SRD_K, 's66', 1024, tag=('K0', t), pol='nt')]
    assert vslot(t + 1) == vslot(t) + 1
    return [salu('s_add_u32', 'm0', 's69', vslot(t) * 8192), salu('s_add_u32', 's66', 's70', t * 8192),
            dma(A.vVd, SRD_V, 's66', 0, tag=('V0', t), pol='nt'), dma(A.vVd, SRD_V, 's66', 2048, tag=('V0', t), pol='nt')]


def q_dma_addrs(e):
    t0, t1 = A.T0, A.T1
    e(salu('s_and_b32', 's54', S_W, 1))
    e(valu('v_and_b32', t0, 3, V(0)))
    e(valu('v_xor_b32', t0, 's54', t0))
    e(valu('v_lshrrev_b32', t1, 4, V(0)))
    e(valu('v_lshl_add_u32', t0, t1, 2, t0))
    e(valu('v_lshlrev_b32', t0, 4, t0))
    e(valu('v_bfe_u32', t1, V(0), 2, 2))
    e(valu('v_lshl_add_u32', t0, t1, 13, t0))
    e(salu('s_lshl_b32', 's54', S_W, 16))
    e(salu('s_lshl_b32', 's55', S_SET, 15))
    e(salu('s_add_u32', 's54', 's54', 's55'))
    e(valu('v_add_u32', A.vWd, 's54', t0))
    e(salu('s_lshl_b32', 's54', S_SET, 2))
    e(valu('v_lshrrev_b32', t1, 4, V(0)))
    e(valu('v_add_u32', t1, 's54', t1))
    e(valu('v_and_b32', t0, 7, V(0)))
    e(valu('v_xor_b32', t0, t0, t1))
    e(valu('v_lshrrev_b32', t1, 3, V(0)))
    e(valu('v_mul_u32_u24', t1, 1152, t1))
    e(valu('v_lshl_add_u32', t0, t0, 4, t1))
    e(salu('s_mul_i32', 's54', S_W, 48 * 1152))
    e(salu('s_mul_i32', 's55', S_SET, 8 * 1152))
    e(salu('s_add_u32', 's54', 's54', 's55'))
    e(valu('v_add_u32', A.vXd, 's54', t0))


def q_rd_addrs(e):
    t0, t1 = A.T0, A.T1
    e(valu('v_and_b32', t0, 3, V(0)))
    e(valu('v_bfe_u32', t1, V(0), 4, 1))
    e(valu('v_xor_b32', t0, t0, t1))
    e(valu('v_bfe_u32', t1, V(0), 2, 2))
    e(valu('v_lshl_add_u32', t0, t1, 2, t0))
    e(valu('v_lshrrev_b32', t1, 4, V(0)))
    e(valu('v_lshl_add_u32', t0, t1, 7, t0))
    e(valu('v_lshlrev_b32', t0, 4, t0))
    e(valu('v_and_b32', t1, 1, V(0)))
    e(valu('v_lshl_add_u32', t0, t1, 3, t0))
    e(valu('v_add_u32', A.vW0, 's58', t0))
    e(valu('v_xor_b32', A.vW1, 8, A.vW0))
    e(valu('v_lshrrev_b32', t0, 4, V(0)))
    e(valu('v_bfe_u32', t1, V(0), 1, 3))
    e(valu('v_xor_b32', t0, t0, t1))
    e(valu('v_lshlrev_b32', t0, 4, t0))
    e(valu('v_and_b32', t1, 15, V(0)))
    e(valu('v_lshl_add_u32', t0, t1, 7, t0))
    e(salu('s_lshl_b32', 's54', S_W, 11))
    e(salu('s_add_u32', 's54', 's54', XBASE))
    e(valu('v_add_u32', A.vXr0, 's54', t0))
    e(valu('v_xor_b32', A.vXr1, 64, A.vXr0))
    e(valu('v_subrev_u32', A.vXr2, XBASE, A.vXr0))
    e(valu('v_subrev_u32', A.vXr3, XBASE, A.vXr1))


def q0_wread(n):
    if n >= 72: return []
    k, f = divmod(n, 4)
    i, t = f >> 1, f & 1
    buf = A.F + (n % 4) * 4
    va = A.vW0 if t == 0 else A.vW1
    off = (wslot0(k) - 8) * 8192 + i * 256
    return [ds_read('ds_read_b64_tr_b16', V(buf, 2), va, off, tag=('pf0', n)), ds_read('ds_read_b64_tr_b16', V(buf + 2, 2), va, off + 1024, tag=('pf0', n))]


def q0_xread(k):
    o = []
    for qt in range(3):
        a = xslot(k // 2, qt) * 8192
        va, off = ((A.vXr1 if k % 2 else A.vXr0), a - XBASE) if a >= XBASE else ((A.vXr3 if k % 2 else A.vXr2), a)
        o.append(ds_read('ds_read_b128', V(A.xf(k, qt), 4), va, off, tag=('xf0', k)))
    return o


def q_conv(i):
    ops = []
    for qt in range(3):
        tm = A.P[0] + qt * 4
        for t in range(2):
            a = A.o(qt, 2 * i + t)
            for r in range(4): ops.append(valu('v_mul_f32', V(a + r), 's59', V(a + r)))
            ops.append(valu('v_cvt_pk_bf16_f32', V(tm + 2 * t), V(a), V(a + 1)))
            ops.append(valu('v_cvt_pk_bf16_f32', V(tm + 2 * t + 1), V(a + 2), V(a + 3)))
        q = A.q(qt, i)
        for k in range(2):
            ops.append(valu('v_cndmask_b32', V(q + k), V(tm + k), V(tm + 2 + k), 's[64:65]'))
            ops.append(valu('v_cndmask_b32', V(q + 2 + k), V(tm + 2 + k), V(tm + k), 's[64:65]'))
    return ops


def q0_phase():
    c = []; e = c.append
    q_rd_addrs(e)
    kv_dma_addrs(e, A.vKd, A.vVd, A.T0, A.T1)
    e(salu('s_lshl_b32', 's70', S_SET, 13))
    e(salu('s_add_u32', 's68', 's56', 's70'))
    e(salu('s_add_u32', 's69', 's57', 's70'))
    e(salu('s_mov_b32', 's59', CSCALE))
    e(salu('s_mov_b32', 's64', 0xffff0000)); e(salu('s_mov_b32', 's65', 0xffff0000))
    e(wait(vm=[('W0', 0), ('X0', 0)]))
    e(barrier())
    c += stamp(1)
    c += q0_wread(0) + q0_wread(1) + q0_wread(2) + q0_xread(0)
    gaps = [[] for _ in range(72 * 3 + 1)]

    def chain(ops, lo, hi):
        for a, o in enumerate(ops): gaps[min(lo + (a * (hi - lo + 1)) // len(ops), 216)].append(o)
    wn = 6
    kvq = {OPT.get('kv0', 8): kv0_dma('K', 0), OPT.get('kv1', 14): kv0_dma('V', 0), OPT.get('kv2', 12): kv0_dma('K', 2), OPT.get('kv3', 16): kv0_dma('V', 2)}
    for k in range(18):
        g0 = (4 * k + 1) * 3
        ops = []
        if k < 17:
            for j, x in enumerate(q0_xread(k + 1)): gaps[g0 + 2 * j].append(x)
        while wn < 18 and wn - 6 <= k - 1:
            ops += wq0_dma(wn); wn += 1
        if k % 2 == 1 and (k - 1) // 2 + 3 <= 8: ops += x0_dma((k - 1) // 2 + 3)
        ops += kvq.get(k, [])
        if ops: chain(ops, g0, g0 + 10)
    for n in range(72):
        k, f = divmod(n, 4)
        if f == 1 and k < 17:
            c.append(wait(vm=[('W0', k + 1), ('X0', (k + 1) // 2)]))
            c.append(barrier())
        c.append(wait(lg=[('pf0', n)] + ([('xf0', k)] if f == 0 else [])))
        rd = q0_wread(n + 3)
        for qt in range(3):
            d = A.o(qt, f)
            c.append(mfma(d, A.F + (n % 4) * 4, A.xf(k, qt), d if k else None))
            if qt < len(rd): c.append(rd[qt])
            c += gaps[n * 3 + qt]
    c += stamp(2)
    c += q_conv(0) + q_conv(1)
    return c


QT_BASE = 8 * 8192


def kv_dma_addrs(e, vK, vV, t0, t1):
    e(salu('s_and_b32', 's54', S_W, 1))
    e(salu('s_lshl_b32', 's55', 's54', 1))
    e(valu('v_and_b32', t0, 3, V(0)))
    e(valu('v_xor_b32', t0, 's55', t0))
    e(valu('v_lshrrev_b32', t1, 4, V(0)))
    e(valu('v_lshl_add_u32', t0, t1, 2, t0))
    e(valu('v_lshlrev_b32', t0, 4, t0))
    e(valu('v_bfe_u32', t1, V(0), 2, 2))
    e(valu('v_lshl_add_u32', t0, t1, 8, t0))
    e(salu('s_lshl_b32', 's56', S_W, 11))
    e(salu('s_lshr_b32', 's57', S_W, 1))
    e(salu('s_lshl_b32', 's57', 's57', 2))
    e(salu('s_add_u32', 's57', 's57', 's54'))
    e(salu('s_lshl_b32', 's57', 's57', 10))
    e(valu('v_add_u32', vK, 's56', t0))
    e(valu('v_add_u32', vV, 's57', t0))


def k_dma(vK, t):
    if OPT.get('nokv') and t >= 4: return [Ins('s_nop 0', 'dma', tag=('K', t))]
    return [salu('s_add_u32', 'm0', 's56', KV_BASE + kslot(t) * 8192), salu('s_mov_b32', 's58', t * 8192),
            dma(vK, SRD_K, 's58', 0, tag=('K', t), pol='nt'), dma(vK, SRD_K, 's58', 1024, tag=('K', t), pol='nt')]


def v_dma(vV, t):
    if OPT.get('nokv') and t >= 4: return [Ins('s_nop 0', 'dma', tag=('V', t))]
    return [salu('s_add_u32', 'm0', 's57', KV_BASE + vslot(t) * 8192), salu('s_mov_b32', 's59', t * 8192),
            dma(vV, SRD_V, 's59', 0, tag=('V', t), pol='nt'), dma(vV, SRD_V, 's59', 2048, tag=('V', t), pol='nt')]


class A:
    vK, vV0, vV1, vH, vO = V(2), V(3), V(4), V(5), V(6)
    T0, T1 = V(1), V(7)
    E = 8
    TA, TB = 16, 17
    TS = 18
    L = 21
    LI = 24
    MX = 27
    NM = 28
    F = 40
    S = (56, 68)
    P = (80, 92)
    Q = 104
    O = 152
    X = 248
    vWd, vXd, vW0, vW1, vXr0, vXr1, vKd, vVd = V(8), V(9), V(10), V(11), V(12), V(13), V(14), V(15)
    vXr2, vXr3 = V(16), V(17)
    XF = 56
    @staticmethod
    def xf(k, qt): return A.XF + ((k % 2) * 3 + qt) * 4

    @staticmethod
    def q(qt, ks): return A.Q + (qt * 4 + ks) * 4
    @staticmethod
    def o(qt, dt): return A.O + (qt * 8 + dt) * 4
    @staticmethod
    def s(kt, qt): return A.S[kt] + qt * 4
    @staticmethod
    def p(par, qt): return A.P[par] + qt * 4
    @staticmethod
    def nm(qt): return A.NM + qt * 4


rare_variants = {}
rare_sites = []


def sm_groups(kt, par, site, variant, first, pending):
    g = []
    pend = list(pending)

    def E(q, i): return V(A.E + (q % 2) * 4 + i)
    def ex(q, i): return valu('v_exp_f32', E(q, i), V(A.s(kt, q) + i))
    def ad1(q): return valu('v_add_f32', V(A.TA), E(q, 0), E(q, 1))
    def cv1(q): return valu('v_cvt_pk_bf16_f32', V(A.p(par, q) + 2 * kt), E(q, 0), E(q, 1))
    def ad2(q): return valu('v_add_f32', V(A.TB), E(q, 2), E(q, 3))
    def cv2(q): return valu('v_cvt_pk_bf16_f32', V(A.p(par, q) + 2 * kt + 1), E(q, 2), E(q, 3))
    def ts(q): return valu('v_add_f32', V(A.TS + q), V(A.TA), V(A.TB))
    pend = pend + [None] * 3
    g = [[ex(0, 0)], [ex(0, 1)], [ex(0, 2)], [pend[0], pend[1]], [ex(0, 3)], [ad1(0), cv1(0)], [ex(1, 0)], [ad2(0), cv2(0)],
         [ex(1, 1)], [pend[2], ts(0)], [ex(1, 2)], [ad1(1)], [ex(1, 3)], [cv1(1)], [ex(2, 0)], [ad2(1), cv2(1)],
         [ex(2, 1)], [ts(1)], [ex(2, 2)], [ad1(2), cv1(2)], [ex(2, 3)], [ad2(2), ts(2)]]
    g = [[x for x in y if x is not None] for y in g]
    if variant is not None:
        g.append([valu('v_max3_f32', V(A.MX), V(A.TS), V(A.TS + 1), V(A.TS + 2)), valu('v_cmp_lt_f32', 'vcc', 's60', V(A.MX))])
        g.append([cv2(2), Ins(f's_cbranch_vccnz TR_{site}', 'branch', srd=['vcc']), label(f'RET_{site}')])
        if variant not in rare_variants:
            rare_variants[variant] = f'RARE_{len(rare_variants)}'
        if (site, rare_variants[variant]) not in rare_sites:
            rare_sites.append((site, rare_variants[variant]))
    else:
        g.append([cv2(2)])
        g.append([])
    if first:
        left = [valu('v_mov_b32', V(A.L + q), V(A.TS + q)) for q in range(3)]
    else:
        left = [valu('v_add_f32', V(A.L + q), V(A.L + q), V(A.TS + q)) for q in range(3)]
    g = [x for x in g]
    assert len(g) == 24
    return g, left


def xlane(op, r, tmp):
    return [valu('v_mov_b32', tmp, r), valu('v_permlane32_swap_b32', r, tmp), valu(op, r, r, tmp),
            valu('v_mov_b32', tmp, r), valu('v_permlane16_swap_b32', r, tmp), valu(op, r, r, tmp)]


def init_ops():
    ops = []
    for q in range(3):
        m = V(A.nm(q)); t = V(A.nm(q) + 1); s = A.s(0, q)
        ops.append(valu('v_max3_f32', m, V(s), V(s + 1), V(s + 2)))
        ops.append(valu('v_max_f32', m, m, V(s + 3)))
    xl = [xlane('v_max_f32', V(A.nm(q)), V(A.nm(q) + 1)) for q in range(3)]
    for k in range(6):
        for q in range(3):
            ops.append(xl[q][k])
    for q in range(3):
        ops.append(valu('v_ceil_f32', V(A.nm(q)), V(A.nm(q))))
    for q in range(3):
        ops.append(valu('v_sub_f32', V(A.nm(q)), 0, V(A.nm(q))))
    for q in range(3):
        s = A.s(0, q)
        for i in range(4):
            ops.append(valu('v_add_f32', V(s + i), V(A.nm(q)), V(s + i)))
    for q in range(3):
        for i in range(1, 4):
            ops.append(valu('v_mov_b32', V(A.nm(q) + i), V(A.nm(q))))
    return ops


def init_sb_ops():
    ops = []
    for q in range(3):
        s = A.s(1, q)
        for i in range(4):
            ops.append(valu('v_add_f32', V(s + i), V(A.nm(q)), V(s + i)))
    return ops


def linv_ops():
    ops = []
    for q in range(3):
        ops.append(valu('v_mov_b32', V(A.LI + q), V(A.L + q)))
    xl = [xlane('v_add_f32', V(A.LI + q), V(A.X + q)) for q in range(3)]
    for k in range(6):
        for q in range(3):
            ops.append(xl[q][k])
    for q in range(3):
        ops.append(valu('v_rcp_f32', V(A.LI + q), V(A.LI + q)))
    return ops


def epilogue_ops(sink, dst=None):
    ops = []
    n = 0
    for i in range(4):
        for qt in range(3):
            buf = A.X + (n % 2) * 4 if dst is None else dst(qt, i)
            n += 1
            for half in range(2):
                o = A.o(qt, 2 * i + half)
                for r in range(4):
                    ops.append(valu('v_mul_f32', V(o + r), V(A.LI + qt), V(o + r)))
                ops.append(valu('v_cvt_pk_bf16_f32', V(buf + 2 * half), V(o), V(o + 1)))
                ops.append(valu('v_cvt_pk_bf16_f32', V(buf + 2 * half + 1), V(o + 2), V(o + 3)))
            ops.extend(sink(qt, i, V(buf, 4)))
    return ops


def rare_code(variant, lab):
    kt, par, do_o, do_l, presc, adj = variant
    c = [label(lab), nop(16)]
    n = V(A.TA); f = V(A.TB); t = V(A.MX)
    for q in range(3):
        s = A.s(kt, q)
        c.append(valu('v_max3_f32', n, V(s), V(s + 1), V(s + 2)))
        c.append(valu('v_max_f32', n, n, V(s + 3)))
        c.extend(xlane('v_max_f32', n, t))
        c.append(valu('v_ceil_f32', n, n))
        c.append(valu('v_max_f32', n, 0, n))
        c.append(valu('v_sub_f32', f, 0, n))
        c.append(valu('v_exp_f32', f, f))
        for i in range(4):
            c.append(valu('v_sub_f32', V(s + i), V(s + i), n))
            if adj:
                so = A.s(1 - kt, q)
                c.append(valu('v_sub_f32', V(so + i), V(so + i), n))
            c.append(valu('v_sub_f32', V(A.nm(q) + i), V(A.nm(q) + i), n))
        if do_l:
            c.append(valu('v_mul_f32', V(A.L + q), f, V(A.L + q)))
        if do_o:
            for r in range(32):
                c.append(valu('v_mul_f32', V(A.o(q, 0) + r), f, V(A.o(q, 0) + r)))
        for (pp, off) in presc:
            r = V(A.p(pp, q) + off)
            lo, hi = V(A.E), V(A.E + 1)
            c.append(valu('v_lshlrev_b32', lo, 16, r))
            c.append(valu('v_and_b32', hi, 0xffff0000, r))
            c.append(valu('v_mul_f32', lo, f, lo))
            c.append(valu('v_mul_f32', hi, f, hi))
            c.append(valu('v_cvt_pk_bf16_f32', r, lo, hi))
        for i in range(4):
            c.append(valu('v_exp_f32', V(A.E + i), V(s + i)))
        c.append(valu('v_cvt_pk_bf16_f32', V(A.p(par, q) + 2 * kt), V(A.E), V(A.E + 1)))
        c.append(valu('v_cvt_pk_bf16_f32', V(A.p(par, q) + 2 * kt + 1), V(A.E + 2), V(A.E + 3)))
        c.append(valu('v_add_f32', V(A.E), V(A.E), V(A.E + 1)))
        c.append(valu('v_add_f32', V(A.E + 2), V(A.E + 2), V(A.E + 3)))
        c.append(valu('v_add_f32', V(A.TS + q), V(A.E), V(A.E + 2)))
    c.append(valu('v_exp_f32', V(A.E), V(A.s(1 - kt, 0))))
    c.append(nop(4))
    c.append(raw('s_setpc_b64 s[62:63]', 'branch'))
    return c


class AGen:
    def __init__(self, osink):
        self.pendL = []
        self.osink = osink

    @staticmethod
    def frag(nu):
        t, j = nu // 16 - 1, nu % 16
        if j % 2 == 0:
            return ('K', t + 1, j // 8, (j // 2) % 4) if t + 1 <= 63 else None
        tile, dt = (t - 1, 4 + (j - 1) // 2) if j < 8 else (t, (j - 9) // 2)
        return ('V', tile, dt, 0) if 0 <= tile <= 63 else None

    def read(self, nu):
        f = self.frag(nu)
        if f is None:
            return []
        kind, tile, a, b = f
        buf = A.F + (nu % 4) * 4
        if kind == 'K':
            return [ds_read('ds_read_b128', V(buf, 4), A.vK, KV_BASE + kslot(tile) * 8192 + a * 4096 + b * 256, tag=('f', nu))]
        va = A.vV0 if a % 2 == 0 else A.vV1
        off = KV_BASE + vslot(tile) * 8192 + (a >> 1) * 256
        return [ds_read('ds_read_b64_tr_b16', V(buf, 2), va, off, tag=('f', nu)),
                ds_read('ds_read_b64_tr_b16', V(buf + 2, 2), va, off + 4096, tag=('f', nu))]

    def iteration(self, t, more=None, bar=None):
        T = t + 1
        j16 = t % 16
        nu0 = 16 * (t + 1)
        has_qk = T <= 63
        newhead = has_qk and T % 16 == 0
        def loc(u):
            return f'p{u + 1}' if u <= 0 else (f't{u}' if u >= 62 else f'{u % 16}')
        pos = [dict(pre=[], m=None, w=[], rd=[], post=[]) for _ in range(48)]
        for m in range(48):
            j, qt = divmod(m, 3)
            f = self.frag(nu0 + j)
            if f is None:
                continue
            kind, tile, a, b = f
            fb = A.F + ((nu0 + j) % 4) * 4
            tags = [('f', nu0 + j)]
            if kind == 'K':
                d = A.s(a, qt)
                pos[m]['m'] = mfma(d, fb, A.q(qt, b), d if b else (None if newhead else A.nm(qt)))
                if newhead and t >= 0 and a == 0: tags.append(('q', T, b))
            else:
                d = A.o(qt, a)
                pos[m]['m'] = mfma(d, fb, A.p(tile % 2, qt), d if tile % 16 else None)
            if qt == 0:
                if m > 0 and pos[m - 1]['m'] is not None: pos[m - 1]['w'].append(wait(lg=tags))
                else: pos[m]['pre'].append(wait(lg=tags))
        for i in range(8):
            v = self.read(nu0 + 2 * i + 3)
            if v: pos[6 * i + 1]['rd'].append(v[1])
            pos[6 * i + 3]['rd'] += self.read(nu0 + 2 * i + 4)
            v = self.read(nu0 + 2 * i + 5)
            if v: pos[6 * i + 5]['rd'].append(v[0])
        if bar: pos[OPT.get('barpos', 6)]['w'] = list(bar) + pos[OPT.get('barpos', 6)]['w']
        extra = [[] for _ in range(48)]

        def spread(ops, lo, hi):
            n = len(ops)
            for k, o in enumerate(ops):
                extra[lo + (k * (hi - lo + 1)) // n].append(o)
        SH = 2

        def place(g, base):
            for k, ops in enumerate(g):
                gp = base + k - SH
                if k == 23 and ops and ops[-1].kind == 'label':
                    pos[base + 23]['br'] = ops[-2:]
                    ops = ops[:-2]
                if gp >= 0: pos[gp]['post'].extend(ops)
        if 0 <= t <= 63:
            par = t % 2
            var = (1, par, t % 16 != 0, True, ((par, 0), (par, 1)), t % 16 != 15)
            g1, self.pendL = sm_groups(1, par, f'Y{loc(t)}', var, False, self.pendL)
            place(g1, 0)
        early = [[valu('v_exp_f32', V(A.E + i), V(A.s(1, 0) + i))] for i in range(SH)] if has_qk else []
        par = T % 2
        if newhead:
            pre = list(self.pendL)
            if t >= 0: pre += linv_ops()
            spread(pre + init_ops(), 24, 35)
            g0, self.pendL = sm_groups(0, par, None, None, True, [])
            for k, g in enumerate(g0): extra[36 + k // 2].extend(g)
            extra[47].extend(init_sb_ops())
            for x in early: extra[47].extend(x)
        elif has_qk:
            var = (0, par, True, True, tuple((t % 2, k) for k in range(4)), True)
            g0, self.pendL = sm_groups(0, par, f'X{loc(t)}', var, False, self.pendL)
            place(g0, 24)
            for k, x in enumerate(early): pos[48 - SH + k]['post'].extend(x)
        elif t == 63:
            spread(self.pendL + linv_ops(), 24, 40); self.pendL = []
        if j16 == 0 and 0 < t < 64:
            eo = epilogue_ops(self.osink(t // 16 - 1))
            half = len(eo) // 2
            spread(eo[:half], 0, 25)
            spread(eo[half:], 27, 45)
        if more: spread(more, 3, 23)
        if has_qk and T % 16 == 15:
            for ks in range(4):
                for qt in range(3):
                    pos[27 + 6 * ks + qt]['rd'].append(ds_read('ds_read_b128', V(A.q(qt, ks), 4), A.vH, (qt * 4 + ks) * 1024, tag=('q', T + 1, ks)))
        out = []
        for m in range(48):
            out.extend(pos[m]['pre'])
            if pos[m]['m'] is not None:
                out.append(pos[m]['m'])
            out += pos[m]['w'] + pos[m]['rd']
            if 'br' in pos[m]:
                out += extra[m] + pos[m]['br'] + pos[m]['post']
            else:
                out += pos[m]['post'] + extra[m]
        return out


def a_setup(e):
    t0, t1 = A.T0, A.T1
    e(valu('v_lshrrev_b32', t0, 4, V(0)))
    e(valu('v_bfe_u32', t1, V(0), 3, 1))
    e(valu('v_lshlrev_b32', t1, 1, t1))
    e(valu('v_xor_b32', t0, t0, t1))
    e(valu('v_and_b32', t1, 3, V(0)))
    e(valu('v_lshl_add_u32', t0, t1, 2, t0))
    e(valu('v_bfe_u32', t1, V(0), 2, 2))
    e(valu('v_lshl_add_u32', t0, t1, 6, t0))
    e(valu('v_lshlrev_b32', A.vK, 4, t0))
    e(valu('v_bfe_u32', t0, V(0), 1, 1))
    e(valu('v_bfe_u32', t1, V(0), 4, 1))
    e(valu('v_lshl_add_u32', t0, t1, 1, t0))
    e(valu('v_bfe_u32', t1, V(0), 2, 2))
    e(valu('v_lshl_add_u32', t0, t1, 2, t0))
    e(valu('v_lshrrev_b32', t1, 4, V(0)))
    e(valu('v_lshl_add_u32', t0, t1, 6, t0))
    e(valu('v_lshlrev_b32', t0, 4, t0))
    e(valu('v_and_b32', t1, 1, V(0)))
    e(valu('v_lshl_add_u32', A.vV0, t1, 3, t0))
    e(valu('v_xor_b32', A.vV1, 32, A.vV0))
    e(salu('s_mul_i32', 's54', S_W, 12288))
    e(salu('s_add_u32', 's54', 's54', H_BASE))
    e(valu('v_lshlrev_b32', t0, 4, V(0)))
    e(valu('v_add_u32', A.vH, 's54', t0))
    e(valu('v_mov_b32', A.vO, t0))
    e(salu('s_mov_b32', 's60', THR))


class P:
    vKd, vVd, vWd, vX, vW0, vW1, vH0, vH1, vBw, vBr = V(2), V(3), V(4), V(5), V(6), V(7), V(8), V(9), V(10), V(11)
    T0, T1 = V(1), V(12)
    PK = 12
    F = 16
    ACC = 32
    XF = 128
    X = 152
    vX1 = V(200)
    vBr1 = V(201)
    vBw2 = V(202)

    @staticmethod
    def acc(qt, i, t): return P.ACC + ((qt * 4 + i) * 2 + t) * 4
    @staticmethod
    def x(M, qt, j): return P.X + ((M % 2) * 6 + qt * 2 + j) * 4
    @staticmethod
    def xf(k, qt): return P.XF + ((k % 2) * 3 + qt) * 4


def p_setup(e):
    t0, t1 = P.T0, P.T1
    kv_dma_addrs(e, P.vKd, P.vVd, t0, t1)
    e(salu('s_and_b32', 's54', S_W, 1))
    e(valu('v_and_b32', t0, 3, V(0)))
    e(valu('v_xor_b32', t0, 's54', t0))
    e(valu('v_lshrrev_b32', t1, 4, V(0)))
    e(valu('v_lshl_add_u32', t0, t1, 2, t0))
    e(valu('v_lshlrev_b32', t0, 4, t0))
    e(valu('v_bfe_u32', t1, V(0), 2, 2))
    e(valu('v_lshl_add_u32', t0, t1, 13, t0))
    e(salu('s_lshl_b32', 's54', S_W, 16))
    e(valu('v_add_u32', P.vWd, 's54', t0))
    e(salu('s_and_b32', 's54', 's34', 3))
    e(salu('s_lshl_b32', 's54', 's54', 1))
    e(salu('s_add_u32', 's54', 's54', 's35'))
    if not OPT.get('rot'): e(salu('s_mov_b32', 's54', 0))
    e(salu('s_lshl_b32', 's54', 's54', 7))
    for m in range(9):
        e(salu('s_sub_u32', 's55', 's54', 1152))
        e(salu('s_cmp_ge_u32', 's54', 1152))
        e(salu('s_cselect_b32', f's{40 + m}', 's55', 's54'))
        e(salu('s_add_u32', 's54', f's{40 + m}', 128))
    e(salu('s_mul_i32', 's54', S_W, 48 * 1152))
    e(valu('v_and_b32', t0, 7, V(0)))
    e(valu('v_lshrrev_b32', t1, 3, V(0)))
    e(valu('v_mul_u32_u24', t1, 1152, t1))
    e(valu('v_lshl_add_u32', t0, t0, 4, t1))
    e(valu('v_add_u32', P.vX, 's54', t0))
    e(valu('v_xor_b32', t0, 32, P.vX))
    e(valu('v_add_u32', P.vX1, 8 * 1152, t0))


def p_setup2(e):
    t0, t1 = P.T0, P.T1
    e(salu('s_lshl_b32', 's54', S_W, 12))
    e(salu('s_add_u32', 's54', 's54', XB_BASE))
    e(valu('v_and_b32', t0, 3, V(0)))
    e(valu('v_lshrrev_b32', t1, 3, V(0)))
    e(valu('v_lshl_add_u32', t0, t1, 2, t0))
    e(valu('v_lshlrev_b32', t0, 4, t0))
    e(valu('v_bfe_u32', t1, V(0), 2, 1))
    e(valu('v_xor_b32', t1, 1, t1))
    e(valu('v_mul_u32_u24', t1, 1024 + 64, t1))
    e(valu('v_xor_b32', t0, t0, t1))
    e(valu('v_add_u32', P.vBw, 's54', t0))
    e(valu('v_and_b32', t1, 1024, t1))
    e(valu('v_add_u32', P.vBw2, P.vBw, t1))
    e(valu('v_bfe_u32', t0, V(0), 3, 1))
    e(valu('v_lshlrev_b32', t0, 1, t0))
    e(valu('v_lshrrev_b32', t1, 4, V(0)))
    e(valu('v_xor_b32', t0, t0, t1))
    e(valu('v_and_b32', t1, 15, V(0)))
    e(valu('v_lshl_add_u32', t0, t1, 2, t0))
    e(valu('v_lshlrev_b32', t0, 4, t0))
    e(valu('v_add_u32', P.vBr, 's54', t0))
    e(valu('v_xor_b32', P.vBr1, 64, P.vBr))
    e(valu('v_and_b32', t0, 3, V(0)))
    e(valu('v_bfe_u32', t1, V(0), 4, 1))
    e(valu('v_xor_b32', t0, t0, t1))
    e(valu('v_bfe_u32', t1, V(0), 2, 2))
    e(valu('v_lshl_add_u32', t0, t1, 2, t0))
    e(valu('v_lshrrev_b32', t1, 4, V(0)))
    e(valu('v_lshl_add_u32', t0, t1, 7, t0))
    e(valu('v_lshlrev_b32', t0, 4, t0))
    e(valu('v_and_b32', t1, 1, V(0)))
    e(valu('v_lshl_add_u32', t0, t1, 3, t0))
    e(valu('v_add_u32', P.vW0, WQ_BASE, t0))
    e(valu('v_xor_b32', P.vW1, 8, P.vW0))
    e(salu('s_mul_i32', 's54', S_W, 12288))
    e(salu('s_add_u32', 's54', 's54', H_BASE))
    e(valu('v_lshlrev_b32', t0, 4, V(0)))
    e(valu('v_bfe_u32', t1, V(0), 4, 1))
    e(valu('v_lshl_add_u32', t0, t1, 3, t0))
    e(valu('v_add_u32', P.vH0, 's54', t0))
    e(valu('v_xor_b32', P.vH1, 8, P.vH0))
    e(salu('s_mov_b32', 's61', CSCALE))


def wq_dma(k):
    h, j = divmod(k, 18)
    so = (j & 1) * 262144 + h * 256
    pol = OPT.get('wqpol', '')
    if OPT.get('rot') == 2 and h == 0:
        a66 = [salu('s_mov_b32', 's66', j * 262144)]
    else:
        a66 = [salu('s_lshl_b32', 's66', f's{40 + j // 2}', 12), salu('s_add_u32', 's66', 's66', so)]
    return [salu('s_add_u32', 'm0', 's56', WQ_BASE + WSLOT[k] * 8192)] + a66 + [dma(P.vWd, SRD_WQ, 's66', 0, tag=('W', k), pol=pol),
            salu('s_add_u32', 's67', 's66', 32768 - 1024), dma(P.vWd, SRD_WQ, 's67', 1024, tag=('W', k), pol=pol)]


def x_load(M, idx):
    qt, j = divmod(idx, 2)
    so = f's{40 + M % 9}'
    pre = []
    if M >= 11:
        pre.append(wait(lg=('xw', M - 2, idx)))
    if OPT.get('rot') == 2 and M < 9:
        pre.append(salu('s_mov_b32', 's64', M * 128 + qt * 18432))
        so = 's64'
    elif qt:
        pre.append(salu('s_add_u32', 's64', so, qt * 18432))
        so = 's64'
    return pre + [buf_load(V(P.x(M, qt, j), 4), P.vX1 if j else P.vX, SRD_X, so, 0, tag=('X', M, idx), pol=OPT.get('xpol', ''))]


def x_write(M, idx):
    qt, j = divmod(idx, 2)
    va, off = ((P.vBw, 0), (P.vBw, 2048), (P.vBw2, 1024))[qt]
    return [wait(vm=('X', M, idx)), ds_write('ds_write_b128', va, V(P.x(M, qt, j), 4), off + j * 512, tag=('xw', M, idx))]


def x_read_even(M, qt):
    return [ds_read('ds_read_b128', V(P.xf(0, qt), 4), P.vBr1, (1024, 3072, 3072)[qt], tag=('xf', 2 * M))]


def x_read_odd(M):
    return [ds_read('ds_read_b128', V(P.xf(1, qt), 4), P.vBr, (0, 2048, 1024)[qt], tag=('xf', 2 * M + 1)) for qt in range(3)]


def q_handoff_tile(qt, i, t, n):
    a = P.acc(qt, i, t)
    pk = P.PK + (n % 2) * 2
    ops = [valu('v_mul_f32', V(a + r), 's61', V(a + r)) for r in range(4)]
    ops.append(valu('v_cvt_pk_bf16_f32', V(pk), V(a), V(a + 1)))
    ops.append(valu('v_cvt_pk_bf16_f32', V(pk + 1), V(a + 2), V(a + 3)))
    ops.append(ds_write('ds_write_b64', P.vH0 if t == 0 else P.vH1, V(pk, 2), (qt * 4 + i) * 1024, tag='hw'))
    return ops


class G2:
    def __init__(self, name, cset, order, o, acc, F, PK, vT0, vT1, vS, slot_off, sstore):
        self.name, self.cset, self.order, self.o = name, cset, order, o
        self.ACC, self.F, self.PK, self.vT0, self.vT1, self.vS = acc, F, PK, vT0, vT1, vS
        self.slot_off = slot_off
        self.sstore = sstore
        self.fr = [(u, kb, nt) for u in range(36) for kb in range(4) for nt in range(2)]

    def acc(self, qt, nt): return self.ACC + (qt * 2 + nt) * 4

    def dma(self, u, vD):
        p, hi = divmod(u, 4)
        so = self.order[hi] * 128 * 1152 + self.cset * 576
        pol = OPT.get('wopol', '')
        return [salu('s_add_u32', 'm0', 's56', self.slot_off(u)[0]), salu('s_add_u32', 's66', f's{40 + p}', so),
                dma(vD, SRD_WO, 's66', 0, tag=('U', self.name, u), pol=pol),
                salu('s_add_u32', 's67', 's66', 18432 - 1024), dma(vD, SRD_WO, 's67', 1024, tag=('U', self.name, u), pol=pol)]

    def rd(self, n):
        if n >= len(self.fr):
            return []
        u, kb, nt = self.fr[n]
        buf = self.F + (n % 4) * 4
        va = self.vT0 if nt == 0 else self.vT1
        off = self.slot_off(u)[1] + kb * 2048
        return [ds_read('ds_read_b64_tr_b16', V(buf, 2), va, off, tag=('gf', n)),
                ds_read('ds_read_b64_tr_b16', V(buf + 2, 2), va, off + 1024, tag=('gf', n))]

    def start(self):
        return self.rd(0) + self.rd(1) + self.rd(2)

    def unit(self, u, atoms=(), otag=None):
        out = []
        q = list(atoms)
        if getattr(self, 'pend', None):
            q.insert(len(q) // 2, self.pend.pop(0))
        p, hi = divmod(u, 4)
        h = self.order[hi]
        for kb in range(4):
            for nt in range(2):
                n = u * 8 + kb * 2 + nt
                tags = [('gf', n)]
                if otag and nt == 0:
                    tags.append(otag(kb))
                out.append(wait(lg=tags))
                for qt in range(3):
                    d = self.acc(qt, nt)
                    out.append(mfma(d, self.F + (n % 4) * 4, self.o(h, qt, kb), None if (hi == 0 and kb == 0) else d))
                    if qt == 0:
                        out.extend(self.rd(n + 3))
                    elif q:
                        out.extend(q.pop(0))
        for x in q:
            out.extend(x)
        if hi == 3:
            sts = []
            for qt in range(3):
                pk = self.PKS[qt]
                for t2 in range(2):
                    a = self.acc(qt, t2)
                    out.append(valu('v_cvt_pk_bf16_f32', V(pk + 2 * t2), V(a), V(a + 1)))
                    out.append(valu('v_cvt_pk_bf16_f32', V(pk + 2 * t2 + 1), V(a + 2), V(a + 3)))
                st = [] if OPT.get('nopst') else [buf_store(V(pk, 4), self.vS, SRD_WS, self.sstore, qt * 1024, tag=('st', self.name, p), pol=OPT.get('ppol', 'sc1').replace('+', ' '))]
                if qt == 2:
                    st += [salu('s_add_u32', self.sstore, self.sstore, 3072), salu('s_sub_u32', 's55', self.sstore, 27648),
                           salu('s_cmp_ge_u32', self.sstore, 's75'), salu('s_cselect_b32', self.sstore, 's55', self.sstore)]
                sts.append(st)
            if p == 8 or OPT.get('stburst'):
                for st in sts:
                    out.extend(st)
            else:
                self.pend = sts
        return out


def g2_setup(e, cset, vT0, vT1, vS, base, t0, t1, sstore):
    e(valu('v_bfe_u32', t0, V(0), 1, 1))
    e(valu('v_bfe_u32', t1, V(0), 4, 1))
    e(valu('v_lshl_add_u32', t0, t1, 1, t0))
    e(valu('v_lshrrev_b32', t1, 2, V(0)))
    e(valu('v_lshl_add_u32', t0, t1, 2, t0))
    e(valu('v_lshlrev_b32', t0, 4, t0))
    e(valu('v_and_b32', t1, 1, V(0)))
    e(valu('v_lshl_add_u32', t0, t1, 3, t0))
    e(valu('v_add_u32', vT0, base, t0))
    e(valu('v_xor_b32', vT1, 32, vT0))
    e(valu('v_lshlrev_b32', vS, 4, V(0)))
    e(salu('s_mul_i32', sstore, S_ID, 221184))
    e(salu('s_mul_i32', 's54', S_W, 2 * 27648))
    e(salu('s_add_u32', sstore, sstore, 's54'))
    e(salu('s_add_u32', sstore, sstore, PART_WS_OFF + cset * 27648))
    e(salu('s_add_u32', 's75', sstore, 27648))
    e(salu('s_and_b32', 's54', 's34', 3 if OPT.get('prot', 1) else 0))
    e(salu('s_mul_i32', 's55', 's54', 2 * 3072))
    e(salu('s_add_u32', sstore, sstore, 's55'))
    if cset == 1:
        e(salu('s_lshl_b32', 's54', 's54', 7))
        for m in range(9):
            e(salu('s_sub_u32', 's55', 's54', 576))
            e(salu('s_cmp_ge_u32', 's54', 576))
            e(salu('s_cselect_b32', f's{40 + m}', 's55', 's54'))
            e(salu('s_add_u32', 's54', f's{40 + m}', 64))


def wo_vd(e, vD, t0, t1):
    e(valu('v_bfe_u32', t1, V(0), 4, 1))
    e(valu('v_lshlrev_b32', t1, 1, t1))
    e(valu('v_and_b32', t0, 3, V(0)))
    e(valu('v_xor_b32', t0, t0, t1))
    e(valu('v_lshlrev_b32', t0, 4, t0))
    e(valu('v_lshrrev_b32', t1, 2, V(0)))
    e(valu('v_mul_u32_u24', t1, 1152, t1))
    e(valu('v_add_u32', t0, t0, t1))
    e(salu('s_mul_i32', 's54', S_W, 32 * 1152))
    e(valu('v_add_u32', vD, 's54', t0))


A_RING = [0, 1, 2, 4, 3, 5, 6, 7]
P_PARK = {0: 208, 1: 160, 2: 112, 3: 64}
A_PARK = {3: 56, 2: A.Q, 0: 152, 1: 200}


def h_read(base, vaddr, tag):
    return [ds_read('ds_read_b128', V(base + (qt * 4 + i) * 4, 4), vaddr, (qt * 4 + i) * 1024, tag=(tag, i)) for i in range(4) for qt in range(3)]


def h_write(base, vaddr, tag):
    return [ds_write('ds_write_b128', vaddr, V(base + (qt * 4 + i) * 4, 4), (qt * 4 + i) * 1024, tag=tag) for i in range(4) for qt in range(3)]


def split_atoms(ops):
    at, cur = [], []
    for o in ops:
        cur.append(o)
        if o.kind in ('dma', 'vm'):
            at.append(cur); cur = []
    assert not cur
    return at


def p_wread(n):
    k, f = divmod(n, 8)
    i, t = f >> 1, f & 1
    buf = P.F + (n % 4) * 4
    va = P.vW0 if t == 0 else P.vW1
    off = WSLOT[k] * 8192 + i * 256
    return [ds_read('ds_read_b64_tr_b16', V(buf, 2), va, off, tag=('pf', n)),
            ds_read('ds_read_b64_tr_b16', V(buf + 2, 2), va, off + 1024, tag=('pf', n))]


def reduce_frag(ld, acc, vS, vO, s_src, s_dst, t0, t1, tagp):
    loads = []
    for hg in range(8):
        loads.append(salu('s_add_u32', 's64', s_src, hg * 221184))
        loads.append(buf_load(V(ld + 4 * hg, 4), vS, SRD_WS, 's64', 0, tag=(tagp, hg), pol='sc1'))
    comp = []
    for hg in range(8):
        comp.append(wait(vm=(tagp, hg)))
        for r in range(4):
            src = V(ld + 4 * hg + r)
            if hg == 0:
                comp.append(valu('v_lshlrev_b32', V(acc + 2 * r), 16, src))
                comp.append(valu('v_and_b32', V(acc + 2 * r + 1), 0xffff0000, src))
            else:
                comp.append(valu('v_lshlrev_b32', t0, 16, src))
                comp.append(valu('v_and_b32', t1, 0xffff0000, src))
                comp.append(valu('v_add_f32', V(acc + 2 * r), V(acc + 2 * r), t0))
                comp.append(valu('v_add_f32', V(acc + 2 * r + 1), V(acc + 2 * r + 1), t1))
    for r in range(4):
        comp.append(valu('v_cvt_pk_bf16_f32', V(ld + r), V(acc + 2 * r), V(acc + 2 * r + 1)))
    comp.append(buf_store(V(ld, 2), vO, SRD_OUT, s_dst, 0))
    comp.append(buf_store(V(ld + 2, 2), vO, SRD_OUT, s_dst, 32))
    return loads, comp


SRD_OUT, SRD_DBG = 's[8:11]', 's[12:15]'


def red_setup(e, vO, t0):
    e(salu('s_mov_b32', 's8', 's4')); e(salu('s_mov_b32', 's9', 's5'))
    e(salu('s_mov_b32', 's10', 16 * 192 * 1152 * 2)); e(salu('s_mov_b32', 's11', 0x20000))
    e(salu('s_mov_b32', 's12', 's72')); e(salu('s_mov_b32', 's13', 's73'))
    e(salu('s_mov_b32', 's14', 256)); e(salu('s_mov_b32', 's15', 0x20000))
    e(salu('s_and_b32', 's54', 's35', 3))
    e(salu('s_lshr_b32', 's55', 's35', 2))
    e(salu('s_mul_i32', 's68', 's34', 8 * 221184))
    e(salu('s_mul_i32', 's64', 's54', 2 * 27648))
    e(salu('s_add_u32', 's68', 's68', 's64'))
    e(salu('s_mul_i32', 's64', 's55', 27648))
    e(salu('s_add_u32', 's68', 's68', 's64'))
    if PART_WS_OFF: e(salu('s_add_u32', 's68', 's68', PART_WS_OFF))
    e(salu('s_mul_i32', 's69', 's37', 192 * 2304))
    e(salu('s_mul_i32', 's64', 's54', 48 * 2304))
    e(salu('s_add_u32', 's69', 's69', 's64'))
    e(salu('s_mul_i32', 's64', 's36', 1152))
    e(salu('s_add_u32', 's69', 's69', 's64'))
    e(salu('s_mul_i32', 's64', 's55', 576))
    e(salu('s_add_u32', 's69', 's69', 's64'))
    e(salu('s_lshl_b32', 's70', 's34', 2))
    e(valu('v_and_b32', vO, 15, V(0)))
    e(valu('v_mul_u32_u24', vO, 2304, vO))
    e(valu('v_lshrrev_b32', t0, 4, V(0)))
    e(valu('v_lshl_add_u32', vO, t0, 3, vO))


def signal(lab, t0, t1):
    return [salu('s_cmp_eq_u32', S_WAVE, 4), raw(f's_cbranch_scc0 {lab}', 'branch'),
            salu('s_lshl_b32', 's64', 's35', 2), salu('s_lshl_b32', 's64', 1, 's64'),
            valu('v_mov_b32', t0, 's64'), valu('v_mov_b32', t1, 0), raw('s_mov_b64 exec, 1'),
            Ins(f'buffer_atomic_add {t0}, {t1}, {SRD_DBG}, s70 offen sc1', 'salu', rd=[t0.n, t1.n]),
            raw('s_mov_b64 exec, -1'), label(lab)]


def poll(lab, level, t0, t1):
    c = [valu('v_mov_b32', t1, 0), salu('s_mov_b32', 's65', 0), label(lab),
         raw(f'buffer_load_dword {t0}, {t1}, {SRD_DBG}, s70 offen sc1'), raw('s_waitcnt vmcnt(0)'),
         valu('v_readfirstlane_b32', 's64', t0)]
    if level == 1:
        c += [nop(2), salu('s_lshr_b32', 's66', 's64', 1), salu('s_or_b32', 's64', 's64', 's66'), salu('s_and_b32', 's64', 's64', 0x11111111),
              salu('s_cmp_eq_u32', 's64', 0x11111111)]
    else:
        c += [nop(2), salu('s_cmp_eq_u32', 's64', 0x22222222)]
    c += [raw(f's_cbranch_scc1 {lab}_ok', 'branch'), salu('s_add_u32', 's65', 's65', 1), raw('s_sleep 2'),
          salu('s_cmp_lt_u32', 's65', 1 << 22), raw(f's_cbranch_scc1 {lab}', 'branch'), label(f'{lab}_ok')]
    return c


def frag_offsets(sidx):
    return [salu('s_lshl_b32', 's66', sidx, 10), salu('s_add_u32', 's66', 's66', 's68'),
            salu('s_mul_i32', 's64', sidx, 43), salu('s_lshr_b32', 's64', 's64', 7),
            salu('s_mul_i32', 's65', 's64', 3), salu('s_sub_u32', 's65', sidx, 's65'),
            salu('s_mul_i32', 's65', 's65', 16 * 2304), salu('s_lshl_b32', 's64', 's64', 6),
            salu('s_add_u32', 's67', 's69', 's65'), salu('s_add_u32', 's67', 's67', 's64')]


def build_k1():
    INK = OPT.get('inred', 1)
    head = []
    e = head.append
    common_prologue(e)
    head += q0_phase()
    e(salu('s_cmp_ge_u32', S_WAVE, 4))
    e(raw('s_cbranch_scc0 L_A', 'branch'))
    e(raw('s_branch L_P', 'branch'))

    names = [('IT', t) for t in range(-1, 64)]
    quota = {n: 0 for n in names}
    T0 = 0
    QE, QN, QC = OPT.get('qe', 9), OPT.get('qn', 9), OPT.get('qc', 9)
    def fill(ts, total, fixed):
        rest = [t for t in ts if t not in fixed]
        rem = total - sum(fixed.values())
        for i, t in enumerate(rest):
            quota[('IT', t)] = (rem * (i + 1)) // len(rest) - (rem * i) // len(rest)
        for t, v in fixed.items():
            quota[('IT', t)] = v
    if OPT.get('kal', 0):
        for t in range(0, 45): quota[('IT', t)] = 8
        for t in (2, 4, 6, 8, 10, 18, 23, 34, 39): quota[('IT', t)] = 16
    else:
        fill(range(0, 14), 150, {0: 8})
        fill(range(14, 30), 144, {15: QN, 16: QE, 28: QC, 29: QC})
        fill(range(30, 46), 138, {31: QN, 32: QE, 44: QC, 45: 0})
    start = {}
    c = 144
    for n in names:
        start[n] = c; c += quota[n]
    assert c == 576
    iv_of = {}
    for idx, n in enumerate(names):
        for fr in range(start[n], start[n] + quota[n]):
            iv_of[fr] = idx
    hdead = {1: ('IT', 13), 2: ('IT', 29), 3: ('IT', 45)}
    for hq in (1, 2): assert start[hdead[hq]] + quota[hdead[hq]] >= 144 * hq + 150
    front = {}

    NG = 576 * 3
    gaps = [[] for _ in range(NG + 1)]

    ZF = OPT.get('zone', 62)
    pref = [False] * (NG + 64)
    for n in names:
        if n[0] == 'IT':
            for g in range(start[n] * 3, start[n] * 3 + (quota[n] * 3 * ZF) // 100):
                pref[g] = True
        else:
            for g in range(start[n] * 3, (start[n] + quota[n]) * 3):
                pref[g] = True

    def chain(atoms, lo, hi, zone=True):
        n = len(atoms)
        Z = [g for g in range(lo, hi + 1) if pref[g]] if zone else []
        if len(Z) * 2 < n or not Z:
            Z = list(range(lo, hi + 1))
        for a, at in enumerate(atoms):
            g = Z[(a * (len(Z) - 1)) // max(n - 1, 1)]
            gaps[min(g, NG)].append(at)
    for k in range(18, 72):
        M = k // 2
        g0 = k * 24
        at = []
        if k % 2 == 0:
            at.append(x_read_odd(M))
            lw = [x_write(M + 1, i) for i in range(3)] if M + 1 < 36 else []
            ll = [x_load(M + 2, i) for i in range(3, 6)] if M + 2 < 36 else []
            while lw or ll:
                if ll: at.append(ll.pop(0))
                if lw: at.append(lw.pop(0))
        elif M + 1 < 36:
            ll = [x_load(M + 3, i) for i in range(3)] if M + 3 < 36 else [[], [], []]
            at += [x_write(M + 1, 3), x_read_even(M + 1, 0) + x_read_even(M + 1, 1), ll[0], x_write(M + 1, 4), ll[1], x_write(M + 1, 5),
                   x_read_even(M + 1, 2), ll[2]]
        if OPT.get('kal', 0) and any(start[n] == k * 8 and quota[n] for n in names):
            front[k * 8] = at
        else:
            chain(at, g0 + 1, g0 + 21)
        if k % 18 == 17:
            cv = []
            nn = 0
            for f in range(8):
                for qt in range(3):
                    o = q_handoff_tile(qt, f >> 1, f & 1, nn); nn += 1
                    cv += [o[:4], o[4:]]
            chain(cv, g0 + 6, g0 + 39, zone=False)
        if k in (52, 70):
            hr = [valu('v_and_b32', P.T0, ~15, P.vH0)] + h_read(P_PARK[0 if k == 52 else 1], P.T0, ('po', k))
            chain([hr[:4], hr[4:7], hr[7:10], hr[10:]], g0 + 8, g0 + 20)

    pslot = {}
    free = list(range(6))
    for u in range(36):
        if u == 13: free += [6, 7]
        pslot[u] = None
    seq = list(range(6))
    gA = G2('A', 0, [3, 2, 0, 1], lambda h, qt, i: A_PARK[h] + (qt * 4 + i) * 4, acc=8, F=32, PK=0, vT0=V(2), vT1=V(3), vS=V(4),
            slot_off=lambda u: (A_RING[u % 8] * 8192, A_RING[u % 8] * 8192), sstore='s74')
    gP = G2('P', 1, [0, 1, 2, 3], lambda h, qt, i: P_PARK[h] + (qt * 4 + i) * 4, acc=32, F=16, PK=0, vT0=V(6), vT1=V(7), vS=V(5),
            slot_off=lambda u: (WQ_BASE + pslot[u] * 8192, pslot[u] * 8192), sstore='s74')
    gA.PKS = [48, 52, 248]
    gP.PKS = [56, 60, 12]
    p_issue = {}
    fl = list(range(6))
    nxt = 0
    for u in range(5):
        pslot[u] = fl.pop(0); nxt += 1
    for sv in range(36):
        if sv >= 1:
            fl.append(pslot[sv - 1])
        if sv == 7:
            fl += [6, 7]
        lst = []
        while fl and nxt < 36 and len(lst) < 2:
            pslot[nxt] = fl.pop(0); lst.append(nxt); nxt += 1
        p_issue[sv] = lst

    w_issue = {}
    fl = [3]
    wn = 18
    for idx in range(len(names)):
        if idx == 1: fl += [0, 1, 2]
        for k in range(18, wn):
            if iv_of[k * 8 + 7] == idx - 1:
                fl.append(WSLOT[k])
        lst = []
        while wn < 72 and fl:
            WSLOT[wn] = fl.pop(0); lst.append(wn); wn += 1
        w_issue[idx] = lst

    pc = [label('L_P')]
    if OPT.get('prioP'): pc.append(salu('s_setprio', OPT['prioP']))
    pc.append(salu('s_mul_i32', 's54', S_W, 6144))
    pc.append(salu('s_add_u32', 's54', 's54', QT_BASE))
    pc.append(valu('v_lshlrev_b32', P.T0, 4, V(0)))
    pc.append(valu('v_add_u32', P.T0, 's54', P.T0))
    for i in range(2):
        for qt in range(3):
            pc.append(ds_write('ds_write_b128', P.T0, V(A.q(qt, i), 4), (qt * 2 + i) * 1024, tag='qt'))
    pc.append(wait(vm=[('K0', 0)], lg='qt'))
    pc.append(barrier())
    p_setup(pc.append)
    for i in range(6): pc.extend(x_load(9, i))
    for i in range(6): pc.extend(x_load(10, i))
    p_setup2(pc.append)
    vHl = V(8)
    published = set()
    pc.append(salu('s_mul_i32', 's75', 's37', 36864))
    pc.append(salu('s_mul_i32', 's55', S_W, 9216))
    pc.append(salu('s_add_u32', 's75', 's75', 's55'))
    pc.append(salu('s_sub_u32', 's75', 's75', 9 * 128))
    pc.append(valu('v_lshlrev_b32', V(203), 7, V(0)))
    pc.append(valu('v_mov_b32', V(204), 0x7fffff00))
    pc.append(valu('v_cmp_gt_u32', 'vcc', 9, V(0)))
    pc.append(valu('v_cndmask_b32', V(203), V(204), V(203), 'vcc'))
    vD = V(4)
    rd_next = 144
    for idx, n in enumerate(names):
        side = []
        need = []
        post = []
        lg = None
        t = n[1] if n[0] == 'IT' else None
        f0, q = start[n], quota[n]
        for k in w_issue[idx]:
            side += split_atoms(wq_dma(k))
        newpub = set()
        if idx + 1 < len(names):
            n2 = names[idx + 1]
            newpub = {fr // 8 for fr in range(start[n2], start[n2] + quota[n2])}
            need += [('W', k) for k in sorted(newpub)]
        if n in hdead.values():
            lg = 'hw'
        if n[0] == 'IT':
            if 0 <= t and t + 4 <= 63:
                side += split_atoms(k_dma(P.vKd, t + 4))
            if 2 <= t and t + 2 <= 63:
                side += split_atoms(v_dma(P.vVd, t + 2))
            if 4 <= t + 1 <= 63:
                need.append(('V', t + 1))
            if 4 <= t + 3 <= 63:
                need.append(('K', t + 3))
            if OPT.get('wot', 'p') == 'p' and t in range(3, 35, 4):
                side.append([salu('s_add_u32', 's75', 's75', 9 * 128), buf_load(V(204), V(203), SRD_WO, 's75', 0)])
            if t == -1:
                need += [('V0', 0), ('K0', 2), ('V0', 2)]
            if t == T0 - 1:
                for i in range(4): post.extend(x_write(9, i))
                post.extend(x_read_even(9, 0) + x_read_even(9, 1) + x_write(9, 4) + x_write(9, 5) + x_read_even(9, 2))
                for i in range(3): post.extend(x_load(11, i))
            if t == 45:
                for at in gaps[NG]: post.extend(at)
            if t == 47:
                wo_vd(post.append, vD, P.T0, V(12))
                g2_setup(post.append, 1, gP.vT0, gP.vT1, gP.vS, WQ_BASE, P.T0, V(12), 's74')
                post.append(valu('v_and_b32', vHl, ~15, P.vH0))
            if t == 50:
                post += h_read(P_PARK[2], vHl, ('po', t)); lg = 'all'
            if 54 <= t <= 58:
                post += gP.dma(t - 54, vD)
            if t == 59:
                need += [('U', 'P', 0), ('U', 'P', 1)]
            if t == 60:
                post += gA.dma(0, vD)
            if t in (61, 62, 63):
                v = t - 61
                if t == 61:
                    post += gP.start()
                at = []
                for u in p_issue[v]:
                    at += split_atoms(gP.dma(u, vD))
                for u in ([1], [2, 3], [4, 5])[v]: at += split_atoms(gA.dma(u, vD))
                post += gP.unit(v, at)
                need.append(('U', 'P', v + 2))
                if t == 63:
                    need += [('U', 'A', 0), ('U', 'A', 1)]
        boost = OPT.get('boost') and n[0] == 'IT' and t in (15, 16, 31, 32)
        if boost: pc.append(salu('s_setprio', 2))
        if q:
            while rd_next < min(f0 + 3, 576) and rd_next // 8 in published:
                pc.extend(p_wread(rd_next)); rd_next += 1
            tgt = {}
            if OPT.get('kal', 0):
                if OPT.get('fprio'): pc.append(salu('s_setprio', 2))
                for at in front.get(f0, []) + side: pc.extend(at)
                if OPT.get('fprio'): pc.append(salu('s_setprio', OPT.get('mprio', 0)))
            else:
                if side:
                    pc.extend(side.pop(0))
                ng = max(1, (q * 3 * ZF) // 100)
                for a, at in enumerate(side):
                    tgt.setdefault((a * ng) // len(side), []).append(at)
            for fr in range(f0, f0 + q):
                k, f = divmod(fr, 8)
                i, tt = f >> 1, f & 1
                pc.append(wait(lg=[('pf', fr)] + ([('xf', k)] if f == 0 else [])))
                rd = []
                if rd_next == fr + 3 and rd_next < 576 and rd_next // 8 in published:
                    rd = p_wread(rd_next); rd_next += 1
                for qt in range(3):
                    d = P.acc(qt, i, tt)
                    pc.append(mfma(d, P.F + (fr % 4) * 4, P.xf(k, qt), d if k % 18 else None))
                    if qt < len(rd): pc.append(rd[qt])
                    for at in gaps[fr * 3 + qt]:
                        pc.extend(at)
                    for at in tgt.get((fr - f0) * 3 + qt, []):
                        pc.extend(at)
                if OPT.get('pfine') == t and fr - f0 < 10: pc.extend(stamp(fr - f0 + 2))
        else:
            for at in side:
                pc.extend(at)
        pc.extend(post)
        if boost: pc.append(salu('s_setprio', 0))
        pc.append(wait(vm=need, lg=lg))
        pc.append(barrier())
        published |= newpub
        if OPT.get('novm') and n == ('IT', 0): novm0 = len(pc)
        if OPT.get('novm') and n == ('IT', 52):
            for x in pc[novm0:]:
                if x.kind in ('dma', 'vm'):
                    kk = 'kv' if x.tag and x.tag[0] in 'KV' else ('w' if x.tag and x.tag[0] == 'W' else 'x')
                    if OPT['novm'] == 'all' or kk in OPT['novm'].split('+'):
                        x.text = 's_nop 0'
        st = {('IT', -1): 3, ('IT', 0): 4, ('IT', 16): 5, ('IT', 32): 6, ('IT', 48): 7, ('IT', 63): 8}
        if OPT.get('stpro'):
            st = {('PRO', k): i + 1 for i, k in enumerate([0, 1, 3, 5, 7, 9, 11, 13, 15, 17])}; st[('HND', 0)] = 11
        if OPT.get('stit') is not None:
            st = {('IT', OPT['stit'] + i): i + 1 for i in range(11)}
        if 'stg' in OPT: st = {}
        if 'pfine' in OPT: st = {('IT', OPT['pfine'] - 1): 1}
        if n in st:
            pc.extend(stamp(st[n]))
    nost = OPT.get('stpro') or 'stit' in OPT or 'stg' in OPT or 'pfine' in OPT
    for g in range(33):
        v = g + 3
        at = []
        need = []
        for u in p_issue[v]:
            at += split_atoms(gP.dma(u, vD))
        if g == 0:
            at += split_atoms(gA.dma(6, vD))
        if g + 7 < 36:
            at += split_atoms(gA.dma(g + 7, vD))
        if v + 2 < 36:
            need.append(('U', 'P', v + 2))
        need.append(('U', 'A', g + 2 if g < 32 else 35))
        lg = None
        otag = None
        if g == 0:
            pc += h_read(P_PARK[3], vHl, 'po3')
            otag = lambda kb: ('po3', kb)
            hw = h_write(P_PARK[0], vHl, 'hw0'); at = [[x] for x in hw] + at; lg = 'hw0'
        if g == 2:
            hw = h_write(P_PARK[1], vHl, 'hw1'); at = [[x] for x in hw] + at; lg = 'hw1'
        if g == 5 and INK:
            rs = []; red_setup(rs.append, V(9), V(1)); at = [rs[i:i + 4] for i in range(0, len(rs), 4)] + at
        if g == 30 and INK:
            need.append(('st', 'P', 6))
        if g == 31 and INK:
            pc += signal('L_sig1', V(1), V(2))
        pc += gP.unit(v, at, otag)
        pc.append(wait(vm=need, lg=lg))
        pc.append(barrier())
        if 'stg' in OPT and 0 <= g - OPT['stg'] < 11: pc.extend(stamp(g - OPT['stg'] + 1))
    if not nost: pc.extend(stamp(9))
    if INK:
        pc += poll('L_poll1', 1, V(1), V(2))
        NF = 6
        lc = []
        for r in range(NF):
            pre = [salu('s_add_u32', 's71', S_W, 4 * r), salu('s_min_u32', 's71', 's71', 20)] + frag_offsets('s71') + \
                  [salu('s_mov_b32', f's{40 + r}', 's67')]
            ld, cp = reduce_frag(64 + 32 * r, 16, gP.vS, V(9), 's66', f's{40 + r}', V(1), V(2), ('r1', r))
            lc.append((pre + ld, cp))
        for r in range(NF):
            pc += lc[r][0]
        for r in range(NF):
            pc += lc[r][1]
        pc.append(wait(vm=('st', 'P', 8)))
        pc.append(barrier())
        if not nost: pc.extend(stamp(10))
        pc += signal('L_sig2', V(1), V(2))
        pc += [salu('s_cmp_ge_u32', S_W, 2), raw('s_cbranch_scc1 L_P_end', 'branch')]
        pc += poll('L_poll2p', 2, V(1), V(2))
        pc += [salu('s_add_u32', 's71', S_W, 25)] + frag_offsets('s71')
        ld, cp = reduce_frag(64, 16, gP.vS, V(9), 's66', 's67', V(1), V(2), 'r2')
        pc += ld + cp
        pc.append(label('L_P_end'))
    if not nost: pc.extend(stamp(11))
    pc.extend(stamp_out())
    pc.append(raw('s_endpgm', 'branch'))
    resolve_waits(head + pc)
    while hazards(head + pc):
        pass

    def osink(h):
        def sink(qt, i, buf):
            return [ds_write('ds_write_b128', A.vH, buf, (qt * 4 + i) * 1024, tag='ow')]
        return sink
    ag = AGen(osink)
    apro = [label('L_A')]
    e = apro.append
    if OPT.get('prioA', 1): e(salu('s_setprio', OPT.get('prioA', 1)))

    a_setup(e)
    e(salu('s_mov_b32', 's71', 0))
    e(salu('s_mul_i32', 's54', S_W, 6144))
    e(salu('s_add_u32', 's54', 's54', QT_BASE))
    e(valu('v_add_u32', A.T0, 's54', A.vO))
    e(wait(vm=[('K0', 0)]))
    e(barrier())
    for n in (0, 2):
        apro.extend(ag.read(n))
    for i in range(2):
        for qt in range(3):
            e(ds_read('ds_read_b128', V(A.q(qt, 2 + i), 4), A.T0, (qt * 2 + i) * 1024, tag='qt'))
    e(wait(lg='qt'))
    def bar(t):
        b = []
        if t == 0: b.append(wait(vm='all'))
        if t % 16 == 1: b.append(wait(lg='ow' if t > 1 else None))
        b.append(barrier())
        if t == 0: b += stamp(3)
        def cst(k):
            if not STAMPS: return []
            return [salu('s_cmp_eq_u32', 's71', OPT.get('sth', 3)), raw(f's_cbranch_scc0 L_cs{k}', 'branch')] + stamp(k) + [label(f'L_cs{k}')]
        if t % 16 == 5: b += cst(5)
        if t % 16 == 6: b = cst(6) + b + cst(7)
        return b
    apro.extend(ag.iteration(-1))
    apro.extend(ag.iteration(0, bar=bar(0))); apro.extend(stamp(4))
    bodies = []
    for h in range(4):
        b = []
        for j in range(1, 14):
            b.extend(ag.iteration(16 * h + j, bar=bar(16 * h + j)))
        b.append(salu('s_cmp_eq_u32', 's71', 3))
        b.append(raw('s_cbranch_scc1 L_A_tail', 'branch'))
        if h < 3:
            for j in (14, 15, 16):
                b.extend(ag.iteration(16 * h + j, bar=bar(16 * h + j)))
            b.append(salu('s_add_u32', 's71', 's71', 1))
            b.append(raw('s_branch L_A_loop', 'branch'))
        bodies.append(b)
    tail = [label('L_A_tail')]
    tail.extend(ag.iteration(62, bar=bar(62)))
    tail.extend(ag.iteration(63, bar=bar(63)))
    eo = epilogue_ops(osink(3), dst=lambda qt, i: A_PARK[3] + (qt * 4 + i) * 4)
    tail.extend(ag.iteration(64))
    tail.extend(eo)
    g2_setup(tail.append, 0, gA.vT0, gA.vT1, gA.vS, 0, A.T0, A.T1, 's74')
    tail.append(wait(lg='all'))
    tail.append(barrier())
    tail.extend(stamp(8))
    if OPT.get('prio2') is not None: tail.append(salu('s_setprio', OPT['prio2']))
    tail += gA.start()
    for g in range(36):
        at = []
        otag = None
        lg = None
        vmn = None
        if g == 1:
            at = [[x] for x in h_read(A_PARK[0], A.vH, 'ao0')]; lg = ('ao0', 3)
        if g == 3:
            tail += h_read(A_PARK[1], A.vH, 'ao1')
            otag = lambda kb: ('ao1', kb)
        if g == 5 and INK:
            rs = []; red_setup(rs.append, V(6), V(1)); at = [rs[i:i + 4] for i in range(0, len(rs), 4)]
        if g == 30 and INK:
            vmn = ('st', 'A', 6)
        tail += gA.unit(g, at, otag)
        if g <= 32:
            tail.append(wait(lg=lg, vm=vmn))
            tail.append(barrier())
    tail.extend(stamp(9))
    if INK:
        tail.append(wait(vm='all'))
        tail.append(barrier())
        tail.extend(stamp(10))
        tail += poll('L_poll2a', 2, V(1), V(7))
        tail += [salu('s_add_u32', 's71', S_W, 21)] + frag_offsets('s71')
        ld, cp = reduce_frag(64, 16, gA.vS, V(6), 's66', 's67', V(1), V(7), 'r2')
        tail += ld + cp
    tail.extend(stamp(11))
    tail.extend(stamp_out())
    tail.append(raw('s_endpgm', 'branch'))
    resolve_waits(head + apro + bodies[0] + bodies[1] + bodies[2] + bodies[3] + tail)
    body = fold(bodies)
    npre = len(bodies[3])
    while hazards(head + apro + body + body + body[:npre] + tail):
        pass
    rare = []
    for site, lab in rare_sites:
        rare += [label(f'TR_{site}'), raw(f's_call_b64 s[62:63], {lab}', 'branch'), raw(f's_branch RET_{site}', 'branch')]
    for var, lab in rare_variants.items():
        rc = rare_code(var, lab)
        while hazards(rc):
            pass
        rare += rc
    nb = lambda q: sum(1 for i in q if i.kind == 'barrier')
    na = nb(apro) + 3 * nb(body) + nb(body[:npre]) + nb(tail)
    assert na == nb(pc), (na, nb(pc))
    print(stats(apro, 'A pro'), file=sys.stderr); print(stats(body, 'A body'), file=sys.stderr)
    print(stats(tail, 'A tail'), file=sys.stderr); print(stats(pc, 'P'), file=sys.stderr); print(stats(rare, 'rare'), file=sys.stderr)
    lines = render(head) + render(apro) + ['.p2align 6', 'L_A_loop:'] + render(body) + render(rare) + render(tail) + ['.p2align 6'] + render(pc) + ['L_k1_end:']
    return lines

def build_k3_old():
    c = []
    e = c.append
    e(raw('s_cmp_ge_u32 s2, 1728')); e(raw('s_cbranch_scc0 L3_go')); e(raw('s_endpgm')); e(label('L3_go'))
    e(raw('s_load_dwordx2 s[4:5], s[0:1], 80'))
    e(raw('s_load_dwordx2 s[6:7], s[0:1], 96'))
    e(valu('v_lshrrev_b32', V(1), 6, V(0)))
    e(valu('v_readfirstlane_b32', 's16', V(1)))
    e(valu('v_and_b32', V(0), 63, V(0)))
    if OPT.get('k3x', 1):
        e(salu('s_and_b32', 's17', 's2', 7))
        e(salu('s_mul_i32', 's17', 's17', 216))
        e(salu('s_lshr_b32', 's18', 's2', 3))
        e(salu('s_add_u32', 's17', 's17', 's18'))
        e(salu('s_lshl_b32', 's17', 's17', 2))
    else:
        e(salu('s_lshl_b32', 's17', 's2', 2))
    e(salu('s_add_u32', 's17', 's17', 's16'))
    e(salu('s_mul_hi_u32', 's18', 's17', (2 ** 32 + 215) // 216))
    e(salu('s_mul_i32', 's19', 's18', 216))
    e(salu('s_sub_u32', 's19', 's17', 's19'))
    e(salu('s_mul_hi_u32', 's20', 's19', (2 ** 32 + 26) // 27))
    e(salu('s_mul_i32', 's21', 's20', 27))
    e(salu('s_sub_u32', 's21', 's19', 's21'))
    e(salu('s_mul_hi_u32', 's22', 's21', (2 ** 32 + 2) // 3))
    e(salu('s_mul_i32', 's23', 's22', 3))
    e(salu('s_sub_u32', 's23', 's21', 's23'))
    e(raw('s_waitcnt lgkmcnt(0)'))
    e(salu('s_mov_b32', 's8', 's6')); e(salu('s_mov_b32', 's9', 's7'))
    e(salu('s_mov_b32', 's10', PART_WS_OFF + 256 * 221184)); e(salu('s_mov_b32', 's11', 0x20000))
    e(salu('s_mov_b32', 's12', 's4')); e(salu('s_mov_b32', 's13', 's5'))
    e(salu('s_mov_b32', 's14', 16 * 192 * 1152 * 2)); e(salu('s_mov_b32', 's15', 0x20000))
    e(salu('s_mul_i32', 's24', 's18', 8 * 221184))
    e(salu('s_lshl_b32', 's25', 's19', 10))
    e(salu('s_add_u32', 's24', 's24', 's25'))
    e(salu('s_add_u32', 's24', 's24', PART_WS_OFF))
    e(valu('v_lshlrev_b32', V(1), 4, V(0)))
    for hg in range(8):
        e(buf_load(V(8 + 4 * hg, 4), V(1), 's[8:11]', 's24', 0, tag=('p', hg), pol=OPT.get('rpol', '').replace('+', ' ')))
        e(salu('s_add_u32', 's24', 's24', 221184))
    e(salu('s_and_b32', 's26', 's18', 15))
    e(salu('s_mul_i32', 's26', 's26', 192))
    e(salu('s_lshr_b32', 's27', 's20', 1))
    e(salu('s_mul_i32', 's27', 's27', 48))
    e(salu('s_add_u32', 's26', 's26', 's27'))
    e(salu('s_lshl_b32', 's27', 's23', 4))
    e(salu('s_add_u32', 's26', 's26', 's27'))
    e(salu('s_mul_i32', 's26', 's26', 2304))
    e(salu('s_lshr_b32', 's27', 's18', 4))
    e(salu('s_mul_i32', 's27', 's27', 1152))
    e(salu('s_add_u32', 's26', 's26', 's27'))
    e(salu('s_and_b32', 's27', 's20', 1))
    e(salu('s_mul_i32', 's27', 's27', 576))
    e(salu('s_add_u32', 's26', 's26', 's27'))
    e(salu('s_lshl_b32', 's27', 's22', 6))
    e(salu('s_add_u32', 's26', 's26', 's27'))
    e(valu('v_and_b32', V(2), 15, V(0)))
    e(valu('v_mul_u32_u24', V(2), 2304, V(2)))
    e(valu('v_lshrrev_b32', V(3), 4, V(0)))
    e(valu('v_lshl_add_u32', V(2), V(3), 3, V(2)))
    ACC = 40
    for hg in range(8):
        e(wait(vm=('p', hg)))
        for r in range(4):
            src = V(8 + 4 * hg + r)
            if hg == 0:
                e(valu('v_lshlrev_b32', V(ACC + 2 * r), 16, src))
                e(valu('v_and_b32', V(ACC + 2 * r + 1), 0xffff0000, src))
            else:
                e(valu('v_lshlrev_b32', V(4), 16, src))
                e(valu('v_and_b32', V(5), 0xffff0000, src))
                e(valu('v_add_f32', V(ACC + 2 * r), V(ACC + 2 * r), V(4)))
                e(valu('v_add_f32', V(ACC + 2 * r + 1), V(ACC + 2 * r + 1), V(5)))
    for r in range(4):
        e(valu('v_cvt_pk_bf16_f32', V(8 + r), V(ACC + 2 * r), V(ACC + 2 * r + 1)))
    e(buf_store(V(8, 2), V(2), 's[12:15]', 's26', 0))
    e(buf_store(V(10, 2), V(2), 's[12:15]', 's26', 32))
    e(raw('s_endpgm', 'branch'))
    resolve_waits(c)
    while hazards(c):
        pass
    return render(c)


def build_k3():
    c = []
    e = c.append
    e(raw('s_cmp_ge_u32 s2, 256')); e(raw('s_cbranch_scc0 L3_go')); e(raw('s_endpgm')); e(label('L3_go'))
    e(raw('s_load_dwordx2 s[4:5], s[0:1], 80'))
    e(raw('s_load_dwordx2 s[6:7], s[0:1], 96'))
    e(valu('v_lshrrev_b32', V(1), 6, V(0)))
    e(valu('v_readfirstlane_b32', 's22', V(1)))
    e(valu('v_and_b32', V(0), 63, V(0)))
    e(salu('s_and_b32', 's17', 's2', 7))
    e(salu('s_lshr_b32', 's19', 's2', 3))
    e(salu('s_lshl_b32', 's18', 's17', 2))
    e(salu('s_lshr_b32', 's20', 's19', 3))
    e(salu('s_add_u32', 's18', 's18', 's20'))
    e(salu('s_and_b32', 's20', 's19', 7))
    e(salu('s_mul_i32', 's24', 's18', 8 * 221184))
    e(salu('s_mul_i32', 's25', 's20', 27648))
    e(salu('s_add_u32', 's24', 's24', 's25'))
    e(salu('s_mul_i32', 's25', 's22', 3072))
    e(salu('s_add_u32', 's24', 's24', 's25'))
    if PART_WS_OFF: e(salu('s_add_u32', 's24', 's24', PART_WS_OFF))
    e(valu('v_lshlrev_b32', V(1), 4, V(0)))
    e(raw('s_waitcnt lgkmcnt(0)'))
    e(salu('s_mov_b32', 's8', 's6')); e(salu('s_mov_b32', 's9', 's7'))
    e(salu('s_mov_b32', 's10', PART_WS_OFF + 256 * 221184)); e(salu('s_mov_b32', 's11', 0x20000))
    LD = 16
    for qt in range(3):
        for hg in range(8):
            e(salu('s_add_u32', 's25', 's24', hg * 221184))
            e(buf_load(V(LD + (qt * 8 + hg) * 4, 4), V(1), 's[8:11]', 's25', qt * 1024, tag=('p', qt, hg), pol=OPT.get('rpol', '').replace('+', ' ')))
    e(salu('s_mov_b32', 's12', 's4')); e(salu('s_mov_b32', 's13', 's5'))
    e(salu('s_mov_b32', 's14', 16 * 192 * 1152 * 2)); e(salu('s_mov_b32', 's15', 0x20000))
    e(salu('s_and_b32', 's26', 's18', 15))
    e(salu('s_mul_i32', 's26', 's26', 192))
    e(salu('s_lshr_b32', 's27', 's20', 1))
    e(salu('s_mul_i32', 's27', 's27', 48))
    e(salu('s_add_u32', 's26', 's26', 's27'))
    e(salu('s_mul_i32', 's26', 's26', 2304))
    e(salu('s_lshr_b32', 's27', 's18', 4))
    e(salu('s_mul_i32', 's27', 's27', 1152))
    e(salu('s_add_u32', 's26', 's26', 's27'))
    e(salu('s_and_b32', 's27', 's20', 1))
    e(salu('s_mul_i32', 's27', 's27', 576))
    e(salu('s_add_u32', 's26', 's26', 's27'))
    e(salu('s_lshl_b32', 's27', 's22', 6))
    e(salu('s_add_u32', 's26', 's26', 's27'))
    e(valu('v_and_b32', V(2), 15, V(0)))
    e(valu('v_mul_u32_u24', V(2), 2304, V(2)))
    e(valu('v_lshrrev_b32', V(3), 4, V(0)))
    e(valu('v_lshl_add_u32', V(2), V(3), 3, V(2)))
    ACC = 8
    for qt in range(3):
        for hg in range(8):
            e(wait(vm=('p', qt, hg)))
            for r in range(4):
                src = V(LD + (qt * 8 + hg) * 4 + r)
                if hg == 0:
                    e(valu('v_lshlrev_b32', V(ACC + 2 * r), 16, src))
                    e(valu('v_and_b32', V(ACC + 2 * r + 1), 0xffff0000, src))
                else:
                    e(valu('v_lshlrev_b32', V(4), 16, src))
                    e(valu('v_and_b32', V(5), 0xffff0000, src))
                    e(valu('v_add_f32', V(ACC + 2 * r), V(ACC + 2 * r), V(4)))
                    e(valu('v_add_f32', V(ACC + 2 * r + 1), V(ACC + 2 * r + 1), V(5)))
        o = LD + qt * 32
        for r in range(4):
            e(valu('v_cvt_pk_bf16_f32', V(o + r), V(ACC + 2 * r), V(ACC + 2 * r + 1)))
        e(buf_store(V(o, 2), V(2), 's[12:15]', 's26', 0))
        e(buf_store(V(o + 2, 2), V(2), 's[12:15]', 's26', 32))
        e(salu('s_add_u32', 's26', 's26', 16 * 2304))
    e(raw('s_endpgm', 'branch'))
    resolve_waits(c)
    while hazards(c):
        pass
    return render(c)


def kd(name, vgpr, sgpr=102):
    return ['.p2align 6', f'.amdhsa_kernel {name}', f'  .amdhsa_next_free_vgpr {vgpr}', f'  .amdhsa_next_free_sgpr {sgpr}',
            f'  .amdhsa_accum_offset {(vgpr + 3) // 4 * 4}', '  .amdhsa_group_segment_fixed_size 0', '  .amdhsa_kernarg_size 104',
            '  .amdhsa_user_sgpr_count 2', '  .amdhsa_user_sgpr_kernarg_segment_ptr 1', '  .amdhsa_system_sgpr_workgroup_id_x 1',
            '.end_amdhsa_kernel']


def kern(name, lines):
    return [f'.globl {name}', '.p2align 8', f'.type {name},@function', f'{name}:'] + lines


if __name__ == '__main__':
    which = sys.argv[2] if len(sys.argv) > 2 else '123'
    STAMPS = 's' in which
    for kv in sys.argv[3:]:
        k, v = kv.split('='); OPT[k] = int(v) if v.lstrip('-').isdigit() else v
    out = []
    single = '3' not in which
    k1 = NAME + '_kernel' if single else 'k1_kernel'
    if single:
        out.append(f'; @launch grid=(256,1,1) block=(512,1,1) lds={LDS_BYTES}')
    else:
        OPT['inred'] = 0
        out.append(f'; @launch kernel=k1_kernel grid=(256,1,1) block=(512,1,1) lds={LDS_BYTES}')
        out.append('; @launch kernel=k3_kernel grid=(1728,1,1) block=(256,1,1) lds=0' if OPT.get('k3old') else '; @launch kernel=k3_kernel grid=(256,1,1) block=(576,1,1) lds=0')
    out += ['.amdgcn_target "amdgcn-amd-amdhsa--gfx950"', '.text']
    out += kern(k1, build_k1())
    if not single: out += kern('k3_kernel', build_k3_old() if OPT.get('k3old') else build_k3())
    out += ['.section .rodata,"a"'] + kd(k1, 256) + ([] if single else kd('k3_kernel', 48 if OPT.get('k3old') else 112, 32))
    open(sys.argv[1], 'w').write('\n'.join(out) + '\n')
```

```python
import sys, math
sys.path.insert(0, 'gen')
from asmlib import *

NAME = 'concat_heads__mha_block_cached__mha_block_cached__near_ridge'
CSCALE = math.log2(math.e) / math.sqrt(128.0)
THR = 1024.0
THR_LO = 2.0 ** -40
QT_BASE = 8 * 8192

KV_BASE = 0
WQ_BASE = 65536
NWQ = 4
WSLOT = {}
XB_BASE = WQ_BASE + NWQ * 8192
H_BASE = XB_BASE + 16384
LDS_BYTES = 163840

SRD_K, SRD_V, SRD_WQ, SRD_X, SRD_WS, SRD_WO = 's[8:11]', 's[12:15]', 's[16:19]', 's[20:23]', 's[24:27]', 's[28:31]'
S_W = 's50'
S_WAVE = 's39'
S_ID = 's51'

PART_WS_OFF = 0


STAMPS = False
OPT = {}
STAMP_OFF = 120 * 1024 * 1024
def stamp(k):
    if not STAMPS: return []
    assert k < 12
    return [raw(f's_memtime s[{76 + 2 * k}:{77 + 2 * k}]')]
def stamp_init():
    if not STAMPS: return []
    return [salu('s_mov_b32', f's{r}', 0) for r in range(76, 100)] + [raw('s_memrealtime s[100:101]')]
def stamp_out(t0=V(8, 4), a=V(1)):
    if not STAMPS: return []
    c = [raw('s_memrealtime s[52:53]'), raw('s_waitcnt vmcnt(0) lgkmcnt(0)'), salu('s_lshl_b32', 's54', 's2', 3), salu('s_add_u32', 's54', 's54', S_WAVE),
         salu('s_lshl_b32', 's54', 's54', 7), salu('s_add_u32', 's54', 's54', STAMP_OFF), salu('s_mov_b32', 's26', STAMP_OFF + 1024 * 1024),
         valu('v_mov_b32', a, 0), raw('s_mov_b64 exec, 1')]
    regs = list(range(76, 102)) + [52, 53]
    for k in range(7):
        for r in range(4):
            c.append(valu('v_mov_b32', V(t0.n + r), f's{regs[4 * k + r]}'))
        c.append(buf_store(t0, a, SRD_WS, 's54', 16 * k))
        c.append(nop(3))
    return c


PHYS = {7: 0, 1: 1, 2: 2, 4: 3, 3: 4, 5: 5, 6: 6, 0: 7}
def kslot(t): return t % 4
def vslot(t): return 4 + t % 4
def wslot0(k): return 8 + k % 6
XS = [4, 5, 6, 16, 17, 18, 19, 14, 15]
XBASE = 14 * 8192
def xslot(M, qt): return XS[(M % 3) * 3 + qt]
S_SET = 's3'


def common_prologue(e, nwg=256):
    e(raw(f's_cmp_ge_u32 s2, {nwg}'))
    e(raw('s_cbranch_scc0 L_go'))
    e(raw('s_endpgm'))
    e(label('L_go'))
    e(raw('s_load_dwordx2 s[4:5], s[0:1], 80'))
    e(raw('s_load_dwordx2 s[6:7], s[0:1], 96'))
    e(raw('s_load_dwordx2 s[72:73], s[0:1], 88'))
    e(salu('s_and_b32', 's32', 's2', 7))
    e(salu('s_lshr_b32', 's33', 's2', 3))
    if OPT.get('map', 0) == 1:
        e(salu('s_lshr_b32', 's34', 's32', 2))
        e(salu('s_lshl_b32', 's34', 's34', 4))
        e(salu('s_lshr_b32', 's35', 's33', 1))
        e(salu('s_add_u32', 's34', 's34', 's35'))
        e(salu('s_and_b32', 's35', 's32', 3))
        e(salu('s_lshl_b32', 's35', 's35', 1))
        e(salu('s_and_b32', 's33', 's33', 1))
        e(salu('s_add_u32', 's35', 's35', 's33'))
    elif OPT.get('map', 0) == 2:
        e(salu('s_lshr_b32', 's34', 's32', 1))
        e(salu('s_lshl_b32', 's34', 's34', 3))
        e(salu('s_lshr_b32', 's35', 's33', 2))
        e(salu('s_add_u32', 's34', 's34', 's35'))
        e(salu('s_and_b32', 's35', 's32', 1))
        e(salu('s_lshl_b32', 's35', 's35', 2))
        e(salu('s_and_b32', 's33', 's33', 3))
        e(salu('s_add_u32', 's35', 's35', 's33'))
    else:
        e(salu('s_lshl_b32', 's34', 's32', 2))
        e(salu('s_lshr_b32', 's35', 's33', 3))
        e(salu('s_add_u32', 's34', 's34', 's35'))
        e(salu('s_and_b32', 's35', 's33', 7))
    e(salu('s_lshr_b32', 's36', 's34', 4))
    e(salu('s_and_b32', 's37', 's34', 15))
    e(salu('s_lshl_b32', S_ID, 's34', 3))
    e(salu('s_add_u32', S_ID, S_ID, 's35'))
    e(salu('s_mul_i32', 's38', 's36', 40))
    e(salu('s_add_u32', 's52', 's0', 's38'))
    e(salu('s_addc_u32', 's53', 's1', 0))
    e(raw('s_load_dwordx4 s[40:43], s[52:53], 0'))
    e(raw('s_load_dwordx4 s[44:47], s[52:53], 16'))
    e(raw('s_load_dwordx2 s[48:49], s[52:53], 32'))
    e(valu('v_lshrrev_b32', V(1), 6, V(0)))
    e(valu('v_readfirstlane_b32', S_WAVE, V(1)))
    e(valu('v_and_b32', V(0), 63, V(0)))
    e(salu('s_and_b32', S_W, S_WAVE, 3))
    e(salu('s_lshr_b32', S_SET, S_WAVE, 2))
    e(salu('s_lshl_b32', 's58', S_SET, 9))
    e(salu('s_add_u32', 's58', 's58', 65536))
    e(salu('s_lshl_b32', 's62', S_W, 11))
    e(salu('s_lshl_b32', 's63', S_SET, 10))
    e(salu('s_add_u32', 's63', 's63', 's62'))
    e(salu('s_add_u32', 's62', 's62', 's58'))
    q_dma_addrs(e)
    e(raw('s_waitcnt lgkmcnt(0)'))
    e(salu('s_lshl_b32', 's54', 's35', 10))
    e(salu('s_add_u32', 's16', 's46', 's54')); e(salu('s_addc_u32', 's17', 's47', 0))
    e(salu('s_sub_u32', 's18', 576 * 8192, 's54')); e(salu('s_mov_b32', 's19', 0x20000))
    e(salu('s_mul_i32', 's54', 's37', 221184))
    e(salu('s_add_u32', 's20', 's40', 's54')); e(salu('s_addc_u32', 's21', 's41', 0))
    e(salu('s_mov_b32', 's22', 221184)); e(salu('s_mov_b32', 's23', 0x20000))
    for x in wq0_dma(0) + x0_dma(0) + wq0_dma(1) + wq0_dma(2) + x0_dma(1) + wq0_dma(3) + wq0_dma(4) + x0_dma(2) + wq0_dma(5): e(x)
    e(salu('s_lshl_b32', 's54', 's37', 3))
    e(salu('s_add_u32', 's54', 's54', 's35'))
    e(salu('s_lshl_b32', 's54', 's54', 19))
    e(salu('s_add_u32', 's8', 's42', 's54')); e(salu('s_addc_u32', 's9', 's43', 0))
    e(salu('s_mov_b32', 's10', 524288)); e(salu('s_mov_b32', 's11', 0x20000))
    e(salu('s_add_u32', 's12', 's44', 's54')); e(salu('s_addc_u32', 's13', 's45', 0))
    e(salu('s_mov_b32', 's14', 524288)); e(salu('s_mov_b32', 's15', 0x20000))
    e(salu('s_mov_b32', 's24', 's6')); e(salu('s_mov_b32', 's25', 's7'))
    e(salu('s_mov_b32', 's26', PART_WS_OFF + 256 * 221184)); e(salu('s_mov_b32', 's27', 0x20000))
    e(salu('s_mul_i32', 's54', 's35', 589824))
    e(salu('s_add_u32', 's28', 's48', 's54')); e(salu('s_addc_u32', 's29', 's49', 0))
    e(salu('s_mov_b32', 's30', 589824)); e(salu('s_mov_b32', 's31', 0x20000))
    if OPT.get('cpf', 1):
        e(raw('s_getpc_b64 s[52:53]'))
        e(label('L_cpf'))
        e(salu('s_lshr_b32', 's54', 's2', 3))
        e(salu('s_lshl_b32', 's54', 's54', 3))
        e(salu('s_add_u32', 's54', 's54', S_WAVE))
        e(salu('s_lshl_b32', 's54', 's54', 9))
        e(valu('v_and_b32', V(20), 3, V(0)))
        e(valu('v_lshlrev_b32', V(20), 7, V(20)))
        e(valu('v_add_u32', V(20), 's54', V(20)))
        e(valu('v_min_u32', V(20), 'L_k1_end-L_cpf-8', V(20)))
        e(Ins('global_load_dword v21, v20, s[52:53]', 'vm', rd=[20], wr=[21]))
    for x in stamp_init() + stamp(0): e(x)


CODE_BYTES = 90000


def wq0_dma(k):
    return [salu('s_add_u32', 'm0', 's63', wslot0(k) * 8192), salu('s_mov_b32', 's66', k * 262144), dma(A.vWd, SRD_WQ, 's66', 0, tag=('W0', k))]


def x0_dma(M):
    o = []
    for qt in range(3):
        o += [salu('s_add_u32', 'm0', 's63', xslot(M, qt) * 8192), salu('s_mov_b32', 's66', M * 128 + qt * 18432),
              dma(A.vXd, SRD_X, 's66', 0, tag=('X0', M))]
    return o


def kv0_dma(kind, t):
    if kind == 'K':
        assert kslot(t + 1) == kslot(t) + 1
        return [salu('s_add_u32', 'm0', 's68', kslot(t) * 8192), salu('s_add_u32', 's66', 's70', t * 8192),
                dma(A.vKd, SRD_K, 's66', 0, tag=('K0', t), pol=OPT.get('kvpol', 'nt').replace('+', ' ').strip()), dma(A.vKd, SRD_K, 's66', 1024, tag=('K0', t), pol=OPT.get('kvpol', 'nt').replace('+', ' ').strip())]
    assert vslot(t + 1) == vslot(t) + 1
    return [salu('s_add_u32', 'm0', 's69', vslot(t) * 8192), salu('s_add_u32', 's66', 's70', t * 8192),
            dma(A.vVd, SRD_V, 's66', 0, tag=('V0', t), pol=OPT.get('kvpol', 'nt').replace('+', ' ').strip()), dma(A.vVd, SRD_V, 's66', 2048, tag=('V0', t), pol=OPT.get('kvpol', 'nt').replace('+', ' ').strip())]


def q_dma_addrs(e):
    t0, t1 = A.T0, A.T1
    e(salu('s_and_b32', 's54', S_W, 1))
    e(valu('v_and_b32', t0, 3, V(0)))
    e(valu('v_xor_b32', t0, 's54', t0))
    e(valu('v_lshrrev_b32', t1, 4, V(0)))
    e(valu('v_lshl_add_u32', t0, t1, 2, t0))
    e(valu('v_lshlrev_b32', t0, 4, t0))
    e(valu('v_bfe_u32', t1, V(0), 2, 2))
    e(valu('v_lshl_add_u32', t0, t1, 13, t0))
    e(salu('s_lshl_b32', 's54', S_W, 16))
    e(salu('s_lshl_b32', 's55', S_SET, 15))
    e(salu('s_add_u32', 's54', 's54', 's55'))
    e(valu('v_add_u32', A.vWd, 's54', t0))
    e(salu('s_lshl_b32', 's54', S_SET, 2))
    e(valu('v_lshrrev_b32', t1, 4, V(0)))
    e(valu('v_add_u32', t1, 's54', t1))
    e(valu('v_and_b32', t0, 7, V(0)))
    e(valu('v_xor_b32', t0, t0, t1))
    e(valu('v_lshrrev_b32', t1, 3, V(0)))
    e(valu('v_mul_u32_u24', t1, 1152, t1))
    e(valu('v_lshl_add_u32', t0, t0, 4, t1))
    e(salu('s_mul_i32', 's54', S_W, 48 * 1152))
    e(salu('s_mul_i32', 's55', S_SET, 8 * 1152))
    e(salu('s_add_u32', 's54', 's54', 's55'))
    e(valu('v_add_u32', A.vXd, 's54', t0))


def q_rd_addrs(e):
    t0, t1 = A.T0, A.T1
    e(valu('v_and_b32', t0, 3, V(0)))
    e(valu('v_bfe_u32', t1, V(0), 4, 1))
    e(valu('v_xor_b32', t0, t0, t1))
    e(valu('v_bfe_u32', t1, V(0), 2, 2))
    e(valu('v_lshl_add_u32', t0, t1, 2, t0))
    e(valu('v_lshrrev_b32', t1, 4, V(0)))
    e(valu('v_lshl_add_u32', t0, t1, 7, t0))
    e(valu('v_lshlrev_b32', t0, 4, t0))
    e(valu('v_and_b32', t1, 1, V(0)))
    e(valu('v_lshl_add_u32', t0, t1, 3, t0))
    e(valu('v_add_u32', A.vW0, 's58', t0))
    e(valu('v_xor_b32', A.vW1, 8, A.vW0))
    e(valu('v_lshrrev_b32', t0, 4, V(0)))
    e(valu('v_bfe_u32', t1, V(0), 1, 3))
    e(valu('v_xor_b32', t0, t0, t1))
    e(valu('v_lshlrev_b32', t0, 4, t0))
    e(valu('v_and_b32', t1, 15, V(0)))
    e(valu('v_lshl_add_u32', t0, t1, 7, t0))
    e(salu('s_lshl_b32', 's54', S_W, 11))
    e(salu('s_add_u32', 's54', 's54', XBASE))
    e(valu('v_add_u32', A.vXr0, 's54', t0))
    e(valu('v_xor_b32', A.vXr1, 64, A.vXr0))
    e(valu('v_subrev_u32', A.vXr2, XBASE, A.vXr0))
    e(valu('v_subrev_u32', A.vXr3, XBASE, A.vXr1))


def q0_wread(n):
    if n >= 72: return []
    k, f = divmod(n, 4)
    i, t = f >> 1, f & 1
    buf = A.F + (n % 4) * 4
    va = A.vW0 if t == 0 else A.vW1
    off = (wslot0(k) - 8) * 8192 + i * 256
    return [ds_read('ds_read_b64_tr_b16', V(buf, 2), va, off, tag=('pf0', n)), ds_read('ds_read_b64_tr_b16', V(buf + 2, 2), va, off + 1024, tag=('pf0', n))]


def q0_xread(k):
    o = []
    for qt in range(3):
        a = xslot(k // 2, qt) * 8192
        va, off = ((A.vXr1 if k % 2 else A.vXr0), a - XBASE) if a >= XBASE else ((A.vXr3 if k % 2 else A.vXr2), a)
        o.append(ds_read('ds_read_b128', V(A.xf(k, qt), 4), va, off, tag=('xf0', k)))
    return o


def q_conv(i):
    ops = []
    for qt in range(3):
        tm = A.P[0] + qt * 4
        for t in range(2):
            a = A.o(qt, 2 * i + t)
            for r in range(4): ops.append(valu('v_mul_f32', V(a + r), 's59', V(a + r)))
            ops.append(valu('v_cvt_pk_bf16_f32', V(tm + 2 * t), V(a), V(a + 1)))
            ops.append(valu('v_cvt_pk_bf16_f32', V(tm + 2 * t + 1), V(a + 2), V(a + 3)))
        q = A.q(qt, i)
        for k in range(2):
            ops.append(valu('v_cndmask_b32', V(q + k), V(tm + k), V(tm + 2 + k), 's[64:65]'))
            ops.append(valu('v_cndmask_b32', V(q + 2 + k), V(tm + 2 + k), V(tm + k), 's[64:65]'))
    return ops


def q0_phase():
    c = []; e = c.append
    q_rd_addrs(e)
    kv_dma_addrs(e, A.vKd, A.vVd, A.T0, A.T1)
    e(salu('s_lshl_b32', 's70', S_SET, 13))
    e(salu('s_add_u32', 's68', 's56', 's70'))
    e(salu('s_add_u32', 's69', 's57', 's70'))
    e(salu('s_mov_b32', 's59', CSCALE))
    e(salu('s_mov_b32', 's64', 0xffff0000)); e(salu('s_mov_b32', 's65', 0xffff0000))
    a_setup(e)
    for r in range(12): e(valu('v_mov_b32', V(A.NM + r), float(OPT.get('nm0', 0))))
    e(salu('s_mov_b32', 's71', 0))
    e(salu('s_mov_b32', 's73', THR_LO))
    e(salu('s_mul_i32', 's54', S_W, 6144))
    e(salu('s_add_u32', 's54', 's54', QT_BASE))
    e(valu('v_add_u32', V(18), 's54', A.vO))
    e(wait(vm=[('W0', 0), ('X0', 0)]))
    e(barrier())
    c += stamp(1)
    c += q0_wread(0) + q0_wread(1) + q0_wread(2) + q0_xread(0)
    gaps = [[] for _ in range(72 * 3 + 1)]

    def chain(ops, lo, hi):
        for a, o in enumerate(ops): gaps[min(lo + (a * (hi - lo + 1)) // len(ops), 216)].append(o)
    wn = 6
    kvq = {OPT.get('kv0', 8): kv0_dma('K', 0), OPT.get('kv1', 14): kv0_dma('V', 0), OPT.get('kv2', 12): kv0_dma('K', 2), OPT.get('kv3', 16): kv0_dma('V', 2)}
    for k in range(18):
        g0 = (4 * k + 1) * 3
        ops = []
        if k < 17:
            for j, x in enumerate(q0_xread(k + 1)): gaps[g0 + 2 * j].append(x)
        while wn < 18 and wn - 6 <= k - 1:
            ops += wq0_dma(wn); wn += 1
        if k % 2 == 1 and (k - 1) // 2 + 3 <= 8: ops += x0_dma((k - 1) // 2 + 3)
        ops += kvq.get(k, [])
        if ops: chain(ops, g0, g0 + 10)
    chain(q_conv(0)[:16], 70 * 3 + 2, 215)
    for n in range(72):
        k, f = divmod(n, 4)
        if f == 1 and k < 17:
            c.append(wait(vm=[('W0', k + 1), ('X0', (k + 1) // 2)]))
            c.append(barrier())
        c.append(wait(lg=[('pf0', n)] + ([('xf0', k)] if f == 0 else [])))
        rd = q0_wread(n + 3)
        for qt in range(3):
            d = A.o(qt, f)
            c.append(mfma(d, A.F + (n % 4) * 4, A.xf(k, qt), d if k else None))
            if qt < len(rd): c.append(rd[qt])
            c += gaps[n * 3 + qt]
    c += stamp(2)
    c += q_conv(0)[16:] + q_conv(1)
    return c


QT_BASE = 8 * 8192


def kv_dma_addrs(e, vK, vV, t0, t1):
    e(salu('s_and_b32', 's54', S_W, 1))
    e(salu('s_lshl_b32', 's55', 's54', 1))
    e(valu('v_and_b32', t0, 3, V(0)))
    e(valu('v_xor_b32', t0, 's55', t0))
    e(valu('v_lshrrev_b32', t1, 4, V(0)))
    e(valu('v_lshl_add_u32', t0, t1, 2, t0))
    e(valu('v_lshlrev_b32', t0, 4, t0))
    e(valu('v_bfe_u32', t1, V(0), 2, 2))
    e(valu('v_lshl_add_u32', t0, t1, 8, t0))
    e(salu('s_lshl_b32', 's56', S_W, 11))
    e(salu('s_lshr_b32', 's57', S_W, 1))
    e(salu('s_lshl_b32', 's57', 's57', 2))
    e(salu('s_add_u32', 's57', 's57', 's54'))
    e(salu('s_lshl_b32', 's57', 's57', 10))
    e(valu('v_add_u32', vK, 's56', t0))
    e(valu('v_add_u32', vV, 's57', t0))


def k_dma(vK, t):
    if OPT.get('nokv') and t >= 4: return [Ins('s_nop 0', 'dma', tag=('K', t))]
    return [salu('s_add_u32', 'm0', 's56', KV_BASE + kslot(t) * 8192), salu('s_mov_b32', 's58', t * 8192),
            dma(vK, SRD_K, 's58', 0, tag=('K', t), pol=OPT.get('kvpol', 'nt').replace('+', ' ').strip()), dma(vK, SRD_K, 's58', 1024, tag=('K', t), pol=OPT.get('kvpol', 'nt').replace('+', ' ').strip())]


def v_dma(vV, t):
    if OPT.get('nokv') and t >= 4: return [Ins('s_nop 0', 'dma', tag=('V', t))]
    return [salu('s_add_u32', 'm0', 's57', KV_BASE + vslot(t) * 8192), salu('s_mov_b32', 's59', t * 8192),
            dma(vV, SRD_V, 's59', 0, tag=('V', t), pol=OPT.get('kvpol', 'nt').replace('+', ' ').strip()), dma(vV, SRD_V, 's59', 2048, tag=('V', t), pol=OPT.get('kvpol', 'nt').replace('+', ' ').strip())]


class A:
    vK, vV0, vV1, vH, vO = V(2), V(3), V(4), V(5), V(6)
    T0, T1 = V(1), V(7)
    E = 8
    TA, TB = 16, 17
    TS = 18
    L = 21
    LI = 24
    MX = 27
    NM = 28
    F = 40
    S = (56, 68)
    P = (80, 92)
    Q = 104
    O = 152
    X = 248
    vWd, vXd, vW0, vW1, vXr0, vXr1, vKd, vVd = V(8), V(9), V(10), V(11), V(12), V(13), V(14), V(15)
    vXr2, vXr3 = V(16), V(17)
    XF = 56
    @staticmethod
    def xf(k, qt): return A.XF + ((k % 2) * 3 + qt) * 4

    @staticmethod
    def q(qt, ks): return A.Q + (qt * 4 + ks) * 4
    @staticmethod
    def o(qt, dt): return A.O + (qt * 8 + dt) * 4
    @staticmethod
    def s(kt, qt): return A.S[kt] + qt * 4
    @staticmethod
    def p(par, qt): return A.P[par] + qt * 4
    @staticmethod
    def nm(qt): return A.NM + qt * 4


rare_variants = {}
rare_sites = []


def sm_groups(kt, par, site, variant, first, pending):
    g = []
    pend = list(pending)

    def E(q, i): return V(A.E + (q % 2) * 4 + i)
    def ex(q, i): return valu('v_exp_f32', E(q, i), V(A.s(kt, q) + i))
    def ad1(q): return valu('v_add_f32', V(A.TA), E(q, 0), E(q, 1))
    def cv1(q): return valu('v_cvt_pk_bf16_f32', V(A.p(par, q) + 2 * kt), E(q, 0), E(q, 1))
    def ad2(q): return valu('v_add_f32', V(A.TB), E(q, 2), E(q, 3))
    def cv2(q): return valu('v_cvt_pk_bf16_f32', V(A.p(par, q) + 2 * kt + 1), E(q, 2), E(q, 3))
    def ts(q): return valu('v_add_f32', V(A.TS + q), V(A.TA), V(A.TB))
    pend = pend + [None] * 3
    g = [[ex(0, 0)], [ex(0, 1)], [ex(0, 2)], [pend[0], pend[1]], [ex(0, 3)], [ad1(0), cv1(0)], [ex(1, 0)], [ad2(0), cv2(0)],
         [ex(1, 1)], [pend[2], ts(0)], [ex(1, 2)], [ad1(1)], [ex(1, 3)], [cv1(1)], [ex(2, 0)], [ad2(1), cv2(1)],
         [ex(2, 1)], [ts(1)], [ex(2, 2)], [ad1(2), cv1(2)], [ex(2, 3)], [ad2(2), ts(2)]]
    g = [[x for x in y if x is not None] for y in g]
    if variant is not None:
        g.append([valu('v_max3_f32', V(A.MX), V(A.TS), V(A.TS + 1), V(A.TS + 2)), valu('v_cmp_lt_f32', 'vcc', 's60', V(A.MX))])
        g.append([cv2(2), Ins(f's_cbranch_vccnz TR_{site}', 'branch', srd=['vcc']), label(f'RET_{site}')])
        if variant not in rare_variants:
            rare_variants[variant] = f'RARE_{len(rare_variants)}'
        if (site, rare_variants[variant]) not in rare_sites:
            rare_sites.append((site, rare_variants[variant]))
    else:
        g.append([cv2(2)])
        g.append([])
    if first:
        left = [valu('v_mov_b32', V(A.L + q), V(A.TS + q)) for q in range(3)]
    else:
        left = [valu('v_add_f32', V(A.L + q), V(A.L + q), V(A.TS + q)) for q in range(3)]
    g = [x for x in g]
    assert len(g) == 24
    return g, left


def xlane(op, r, tmp):
    return [valu('v_mov_b32', tmp, r), valu('v_permlane32_swap_b32', r, tmp), valu(op, r, r, tmp),
            valu('v_mov_b32', tmp, r), valu('v_permlane16_swap_b32', r, tmp), valu(op, r, r, tmp)]


def init_ops():
    ops = []
    for q in range(3):
        m = V(A.nm(q)); t = V(A.nm(q) + 1); s = A.s(0, q)
        ops.append(valu('v_max3_f32', m, V(s), V(s + 1), V(s + 2)))
        ops.append(valu('v_max_f32', m, m, V(s + 3)))
    xl = [xlane('v_max_f32', V(A.nm(q)), V(A.nm(q) + 1)) for q in range(3)]
    for k in range(6):
        for q in range(3):
            ops.append(xl[q][k])
    for q in range(3):
        ops.append(valu('v_ceil_f32', V(A.nm(q)), V(A.nm(q))))
    for q in range(3):
        ops.append(valu('v_sub_f32', V(A.nm(q)), 0, V(A.nm(q))))
    for q in range(3):
        s = A.s(0, q)
        for i in range(4):
            ops.append(valu('v_add_f32', V(s + i), V(A.nm(q)), V(s + i)))
    for q in range(3):
        for i in range(1, 4):
            ops.append(valu('v_mov_b32', V(A.nm(q) + i), V(A.nm(q))))
    return ops


def init_sb_ops():
    ops = []
    for q in range(3):
        s = A.s(1, q)
        for i in range(4):
            ops.append(valu('v_add_f32', V(s + i), V(A.nm(q)), V(s + i)))
    return ops


def linv_ops():
    ops = []
    for q in range(3):
        ops.append(valu('v_mov_b32', V(A.LI + q), V(A.L + q)))
    xl = [xlane('v_add_f32', V(A.LI + q), V(A.X + q)) for q in range(3)]
    for k in range(6):
        for q in range(3):
            ops.append(xl[q][k])
    for q in range(3):
        ops.append(valu('v_rcp_f32', V(A.LI + q), V(A.LI + q)))
    return ops


def epilogue_ops(sink, dst=None):
    ops = []
    n = 0
    for i in range(4):
        for qt in range(3):
            buf = A.X + (n % 2) * 4 if dst is None else dst(qt, i)
            n += 1
            for half in range(2):
                o = A.o(qt, 2 * i + half)
                for r in range(4):
                    ops.append(valu('v_mul_f32', V(o + r), V(A.LI + qt), V(o + r)))
                ops.append(valu('v_cvt_pk_bf16_f32', V(buf + 2 * half), V(o), V(o + 1)))
                ops.append(valu('v_cvt_pk_bf16_f32', V(buf + 2 * half + 1), V(o + 2), V(o + 3)))
            ops.extend(sink(qt, i, V(buf, 4)))
    return ops


def rare_code(variant, lab):
    kt, par, do_o, do_l, presc, adj = variant
    c = [label(lab), nop(16)]
    n = V(A.TA); f = V(A.TB); t = V(A.MX)
    for q in range(3):
        s = A.s(kt, q)
        c.append(valu('v_max3_f32', n, V(s), V(s + 1), V(s + 2)))
        c.append(valu('v_max_f32', n, n, V(s + 3)))
        c.extend(xlane('v_max_f32', n, t))
        c.append(valu('v_ceil_f32', n, n))
        if adj != 'init': c.append(valu('v_max_f32', n, 0, n))
        c.append(valu('v_sub_f32', f, 0, n))
        c.append(valu('v_exp_f32', f, f))
        for i in range(4):
            c.append(valu('v_sub_f32', V(s + i), V(s + i), n))
            if adj:
                so = A.s(1 - kt, q)
                c.append(valu('v_sub_f32', V(so + i), V(so + i), n))
            c.append(valu('v_sub_f32', V(A.nm(q) + i), V(A.nm(q) + i), n))
        if do_l:
            c.append(valu('v_mul_f32', V(A.L + q), f, V(A.L + q)))
        if do_o:
            for r in range(32):
                c.append(valu('v_mul_f32', V(A.o(q, 0) + r), f, V(A.o(q, 0) + r)))
        for (pp, off) in presc:
            r = V(A.p(pp, q) + off)
            lo, hi = V(A.E), V(A.E + 1)
            c.append(valu('v_lshlrev_b32', lo, 16, r))
            c.append(valu('v_and_b32', hi, 0xffff0000, r))
            c.append(valu('v_mul_f32', lo, f, lo))
            c.append(valu('v_mul_f32', hi, f, hi))
            c.append(valu('v_cvt_pk_bf16_f32', r, lo, hi))
        for i in range(4):
            c.append(valu('v_exp_f32', V(A.E + i), V(s + i)))
        c.append(valu('v_cvt_pk_bf16_f32', V(A.p(par, q) + 2 * kt), V(A.E), V(A.E + 1)))
        c.append(valu('v_cvt_pk_bf16_f32', V(A.p(par, q) + 2 * kt + 1), V(A.E + 2), V(A.E + 3)))
        c.append(valu('v_add_f32', V(A.E), V(A.E), V(A.E + 1)))
        c.append(valu('v_add_f32', V(A.E + 2), V(A.E + 2), V(A.E + 3)))
        c.append(valu('v_add_f32', V(A.TS + q), V(A.E), V(A.E + 2)))
    c.append(valu('v_exp_f32', V(A.E), V(A.s(1 - kt, 0))))
    c.append(nop(4))
    c.append(raw('s_setpc_b64 s[62:63]', 'branch'))
    return c


class AGen:
    def __init__(self, osink):
        self.pendL = []
        self.osink = osink

    @staticmethod
    def frag(nu):
        t, j = nu // 16 - 1, nu % 16
        if j % 2 == 0:
            return ('K', t + 1, j // 8, (j // 2) % 4) if t + 1 <= 63 else None
        tile, dt = (t - 1, 4 + (j - 1) // 2) if j < 8 else (t, (j - 9) // 2)
        return ('V', tile, dt, 0) if 0 <= tile <= 63 else None

    def read(self, nu):
        f = self.frag(nu)
        if f is None:
            return []
        kind, tile, a, b = f
        buf = A.F + (nu % 4) * 4
        if kind == 'K':
            return [ds_read('ds_read_b128', V(buf, 4), A.vK, KV_BASE + kslot(tile) * 8192 + a * 4096 + b * 256, tag=('f', nu))]
        va = A.vV0 if a % 2 == 0 else A.vV1
        off = KV_BASE + vslot(tile) * 8192 + (a >> 1) * 256
        return [ds_read('ds_read_b64_tr_b16', V(buf, 2), va, off, tag=('f', nu)),
                ds_read('ds_read_b64_tr_b16', V(buf + 2, 2), va, off + 4096, tag=('f', nu))]

    def iteration(self, t, more=None, bar=None):
        T = t + 1
        j16 = t % 16
        nu0 = 16 * (t + 1)
        has_qk = T <= 63
        newhead = has_qk and T % 16 == 0
        def loc(u):
            return f'p{u + 1}' if u <= 0 else (f't{u}' if u >= 62 else f'{u % 16}')
        pos = [dict(pre=[], m=None, w=[], rd=[], post=[]) for _ in range(48)]
        for m in range(48):
            j, qt = divmod(m, 3)
            f = self.frag(nu0 + j)
            if f is None:
                continue
            kind, tile, a, b = f
            fb = A.F + ((nu0 + j) % 4) * 4
            tags = [('f', nu0 + j)]
            if kind == 'K':
                d = A.s(a, qt)
                pos[m]['m'] = mfma(d, fb, A.q(qt, b), d if b else A.nm(qt))
                if newhead and (t >= 0 or b >= 2) and a == 0: tags.append(('q', T, b))
            else:
                d = A.o(qt, a)
                pos[m]['m'] = mfma(d, fb, A.p(tile % 2, qt), d if tile % 16 else None)
            if qt == 0:
                if m > 0 and pos[m - 1]['m'] is not None: pos[m - 1]['w'].append(wait(lg=tags))
                else: pos[m]['pre'].append(wait(lg=tags))
        for i in range(8):
            v = self.read(nu0 + 2 * i + 3)
            if v: pos[6 * i + 1]['rd'].append(v[1])
            pos[6 * i + 3]['rd'] += self.read(nu0 + 2 * i + 4)
            v = self.read(nu0 + 2 * i + 5)
            if v: pos[6 * i + 5]['rd'].append(v[0])
        if bar: pos[OPT.get('barpos', 6)]['w'] = list(bar) + pos[OPT.get('barpos', 6)]['w']
        extra = [[] for _ in range(48)]

        def spread(ops, lo, hi):
            n = len(ops)
            for k, o in enumerate(ops):
                extra[lo + (k * (hi - lo + 1)) // n].append(o)
        SH = 2

        def place(g, base):
            for k, ops in enumerate(g):
                gp = base + k - SH
                if k == 23 and ops and ops[-1].kind == 'label':
                    pos[base + 23]['br'] = ops[-2:]
                    ops = ops[:-2]
                if gp >= 0: pos[gp]['post'].extend(ops)
        if 0 <= t <= 63:
            par = t % 2
            var = (1, par, t % 16 != 0, True, ((par, 0), (par, 1)), True)
            g1, self.pendL = sm_groups(1, par, f'Y{loc(t)}', var, False, self.pendL)
            place(g1, 0)
        early = [[valu('v_exp_f32', V(A.E + i), V(A.s(1, 0) + i))] for i in range(SH)] if has_qk else []
        par = T % 2
        if newhead:
            var = (0, par, False, False, (), 'init')
            g0, self.pendL = sm_groups(0, par, f'X{loc(t)}', var, True, self.pendL)
            g0[22] += [valu('v_min3_f32', V(A.TA), V(A.TS), V(A.TS + 1), V(A.TS + 2)), valu('v_cmp_gt_f32', 's[64:65]', 's73', V(A.TA))]
            g0[23] = g0[23][:-2] + [salu('s_or_b64', 'vcc', 'vcc', 's[64:65]')] + g0[23][-2:]
            place(g0, 24)
            if t >= 0: spread(linv_ops(), 32, 45)
            for k, x in enumerate(early): pos[48 - SH + k]['post'].extend(x)
        elif has_qk:
            var = (0, par, True, True, tuple((t % 2, k) for k in range(4)), True)
            g0, self.pendL = sm_groups(0, par, f'X{loc(t)}', var, False, self.pendL)
            place(g0, 24)
            for k, x in enumerate(early): pos[48 - SH + k]['post'].extend(x)
        elif t == 63:
            spread(self.pendL + linv_ops(), 24, 40); self.pendL = []
        if j16 == 0 and 0 < t < 64:
            eo = epilogue_ops(self.osink(t // 16 - 1))
            half = len(eo) // 2
            spread(eo[:half], 0, 25)
            spread(eo[half:], 27, 45)
        if more: spread(more, 3, 23)
        if has_qk and T % 16 == 15:
            for ks in range(4):
                for qt in range(3):
                    pos[27 + 6 * ks + qt]['rd'].append(ds_read('ds_read_b128', V(A.q(qt, ks), 4), A.vH, (qt * 4 + ks) * 1024, tag=('q', T + 1, ks)))
        out = []
        for m in range(48):
            out.extend(pos[m]['pre'])
            if pos[m]['m'] is not None:
                out.append(pos[m]['m'])
            out += pos[m]['w'] + pos[m]['rd']
            if 'br' in pos[m]:
                out += extra[m] + pos[m]['br'] + pos[m]['post']
            else:
                out += pos[m]['post'] + extra[m]
        return out


def a_setup(e):
    t0, t1 = A.T0, A.T1
    e(valu('v_lshrrev_b32', t0, 4, V(0)))
    e(valu('v_bfe_u32', t1, V(0), 3, 1))
    e(valu('v_lshlrev_b32', t1, 1, t1))
    e(valu('v_xor_b32', t0, t0, t1))
    e(valu('v_and_b32', t1, 3, V(0)))
    e(valu('v_lshl_add_u32', t0, t1, 2, t0))
    e(valu('v_bfe_u32', t1, V(0), 2, 2))
    e(valu('v_lshl_add_u32', t0, t1, 6, t0))
    e(valu('v_lshlrev_b32', A.vK, 4, t0))
    e(valu('v_bfe_u32', t0, V(0), 1, 1))
    e(valu('v_bfe_u32', t1, V(0), 4, 1))
    e(valu('v_lshl_add_u32', t0, t1, 1, t0))
    e(valu('v_bfe_u32', t1, V(0), 2, 2))
    e(valu('v_lshl_add_u32', t0, t1, 2, t0))
    e(valu('v_lshrrev_b32', t1, 4, V(0)))
    e(valu('v_lshl_add_u32', t0, t1, 6, t0))
    e(valu('v_lshlrev_b32', t0, 4, t0))
    e(valu('v_and_b32', t1, 1, V(0)))
    e(valu('v_lshl_add_u32', A.vV0, t1, 3, t0))
    e(valu('v_xor_b32', A.vV1, 32, A.vV0))
    e(salu('s_mul_i32', 's54', S_W, 12288))
    e(salu('s_add_u32', 's54', 's54', H_BASE))
    e(valu('v_lshlrev_b32', t0, 4, V(0)))
    e(valu('v_add_u32', A.vH, 's54', t0))
    e(valu('v_mov_b32', A.vO, t0))
    e(salu('s_mov_b32', 's60', THR))


class P:
    vKd, vVd, vWd, vX, vW0, vW1, vH0, vH1, vBw, vBr = V(2), V(3), V(4), V(5), V(6), V(7), V(8), V(9), V(10), V(11)
    T0, T1 = V(1), V(12)
    PK = 12
    F = 16
    ACC = 32
    XF = 128
    X = 152
    vX1 = V(200)
    vBr1 = V(201)
    vBw2 = V(202)

    @staticmethod
    def acc(qt, i, t): return P.ACC + ((qt * 4 + i) * 2 + t) * 4
    @staticmethod
    def x(M, qt, j): return P.X + ((M % 2) * 6 + qt * 2 + j) * 4
    @staticmethod
    def xf(k, qt): return P.XF + ((k % 2) * 3 + qt) * 4


def p_setup(e):
    t0, t1 = P.T0, P.T1
    kv_dma_addrs(e, P.vKd, P.vVd, t0, t1)
    e(salu('s_and_b32', 's54', S_W, 1))
    e(valu('v_and_b32', t0, 3, V(0)))
    e(valu('v_xor_b32', t0, 's54', t0))
    e(valu('v_lshrrev_b32', t1, 4, V(0)))
    e(valu('v_lshl_add_u32', t0, t1, 2, t0))
    e(valu('v_lshlrev_b32', t0, 4, t0))
    e(valu('v_bfe_u32', t1, V(0), 2, 2))
    e(valu('v_lshl_add_u32', t0, t1, 13, t0))
    e(salu('s_lshl_b32', 's54', S_W, 16))
    e(valu('v_add_u32', P.vWd, 's54', t0))
    e(salu('s_and_b32', 's54', 's34', 3))
    e(salu('s_lshl_b32', 's54', 's54', 1))
    e(salu('s_add_u32', 's54', 's54', 's35'))
    if not OPT.get('rot'): e(salu('s_mov_b32', 's54', 0))
    e(salu('s_lshl_b32', 's54', 's54', 7))
    for m in range(9):
        e(salu('s_sub_u32', 's55', 's54', 1152))
        e(salu('s_cmp_ge_u32', 's54', 1152))
        e(salu('s_cselect_b32', f's{40 + m}', 's55', 's54'))
        e(salu('s_add_u32', 's54', f's{40 + m}', 128))
    e(salu('s_mul_i32', 's54', S_W, 48 * 1152))
    e(valu('v_and_b32', t0, 7, V(0)))
    e(valu('v_lshrrev_b32', t1, 3, V(0)))
    e(valu('v_mul_u32_u24', t1, 1152, t1))
    e(valu('v_lshl_add_u32', t0, t0, 4, t1))
    e(valu('v_add_u32', P.vX, 's54', t0))
    e(valu('v_xor_b32', t0, 32, P.vX))
    e(valu('v_add_u32', P.vX1, 8 * 1152, t0))


def p_setup2(e):
    t0, t1 = P.T0, P.T1
    e(salu('s_lshl_b32', 's54', S_W, 12))
    e(salu('s_add_u32', 's54', 's54', XB_BASE))
    e(valu('v_and_b32', t0, 3, V(0)))
    e(valu('v_lshrrev_b32', t1, 3, V(0)))
    e(valu('v_lshl_add_u32', t0, t1, 2, t0))
    e(valu('v_lshlrev_b32', t0, 4, t0))
    e(valu('v_bfe_u32', t1, V(0), 2, 1))
    e(valu('v_xor_b32', t1, 1, t1))
    e(valu('v_mul_u32_u24', t1, 1024 + 64, t1))
    e(valu('v_xor_b32', t0, t0, t1))
    e(valu('v_add_u32', P.vBw, 's54', t0))
    e(valu('v_and_b32', t1, 1024, t1))
    e(valu('v_add_u32', P.vBw2, P.vBw, t1))
    e(valu('v_bfe_u32', t0, V(0), 3, 1))
    e(valu('v_lshlrev_b32', t0, 1, t0))
    e(valu('v_lshrrev_b32', t1, 4, V(0)))
    e(valu('v_xor_b32', t0, t0, t1))
    e(valu('v_and_b32', t1, 15, V(0)))
    e(valu('v_lshl_add_u32', t0, t1, 2, t0))
    e(valu('v_lshlrev_b32', t0, 4, t0))
    e(valu('v_add_u32', P.vBr, 's54', t0))
    e(valu('v_xor_b32', P.vBr1, 64, P.vBr))
    e(valu('v_and_b32', t0, 3, V(0)))
    e(valu('v_bfe_u32', t1, V(0), 4, 1))
    e(valu('v_xor_b32', t0, t0, t1))
    e(valu('v_bfe_u32', t1, V(0), 2, 2))
    e(valu('v_lshl_add_u32', t0, t1, 2, t0))
    e(valu('v_lshrrev_b32', t1, 4, V(0)))
    e(valu('v_lshl_add_u32', t0, t1, 7, t0))
    e(valu('v_lshlrev_b32', t0, 4, t0))
    e(valu('v_and_b32', t1, 1, V(0)))
    e(valu('v_lshl_add_u32', t0, t1, 3, t0))
    e(valu('v_add_u32', P.vW0, WQ_BASE, t0))
    e(valu('v_xor_b32', P.vW1, 8, P.vW0))
    e(salu('s_mul_i32', 's54', S_W, 12288))
    e(salu('s_add_u32', 's54', 's54', H_BASE))
    e(valu('v_lshlrev_b32', t0, 4, V(0)))
    e(valu('v_bfe_u32', t1, V(0), 4, 1))
    e(valu('v_lshl_add_u32', t0, t1, 3, t0))
    e(valu('v_add_u32', P.vH0, 's54', t0))
    e(valu('v_xor_b32', P.vH1, 8, P.vH0))
    e(salu('s_mov_b32', 's61', CSCALE))


def wq_dma(k):
    h, j = divmod(k, 18)
    so = (j & 1) * 262144 + h * 256
    pol = OPT.get('wqpol', '')
    if OPT.get('rot') == 2 and h == 0:
        a66 = [salu('s_mov_b32', 's66', j * 262144)]
    else:
        a66 = [salu('s_lshl_b32', 's66', f's{40 + j // 2}', 12), salu('s_add_u32', 's66', 's66', so)]
    return [salu('s_add_u32', 'm0', 's56', WQ_BASE + WSLOT[k] * 8192)] + a66 + [dma(P.vWd, SRD_WQ, 's66', 0, tag=('W', k), pol=pol),
            salu('s_add_u32', 's67', 's66', 32768 - 1024), dma(P.vWd, SRD_WQ, 's67', 1024, tag=('W', k), pol=pol)]


def x_load(M, idx):
    qt, j = divmod(idx, 2)
    so = f's{40 + M % 9}'
    pre = []
    if M >= 11:
        pre.append(wait(lg=('xw', M - 2, idx)))
    if OPT.get('rot') == 2 and M < 9:
        pre.append(salu('s_mov_b32', 's64', M * 128 + qt * 18432))
        so = 's64'
    elif qt:
        pre.append(salu('s_add_u32', 's64', so, qt * 18432))
        so = 's64'
    return pre + [buf_load(V(P.x(M, qt, j), 4), P.vX1 if j else P.vX, SRD_X, so, 0, tag=('X', M, idx), pol=OPT.get('xpol', ''))]


def x_write(M, idx):
    qt, j = divmod(idx, 2)
    va, off = ((P.vBw, 0), (P.vBw, 2048), (P.vBw2, 1024))[qt]
    return [wait(vm=('X', M, idx)), ds_write('ds_write_b128', va, V(P.x(M, qt, j), 4), off + j * 512, tag=('xw', M, idx))]


def x_read_even(M, qt):
    return [ds_read('ds_read_b128', V(P.xf(0, qt), 4), P.vBr1, (1024, 3072, 3072)[qt], tag=('xf', 2 * M))]


def x_read_odd(M):
    return [ds_read('ds_read_b128', V(P.xf(1, qt), 4), P.vBr, (0, 2048, 1024)[qt], tag=('xf', 2 * M + 1)) for qt in range(3)]


def q_handoff_tile(qt, i, t, n):
    a = P.acc(qt, i, t)
    pk = P.PK + (n % 2) * 2
    ops = [valu('v_mul_f32', V(a + r), 's61', V(a + r)) for r in range(4)]
    ops.append(valu('v_cvt_pk_bf16_f32', V(pk), V(a), V(a + 1)))
    ops.append(valu('v_cvt_pk_bf16_f32', V(pk + 1), V(a + 2), V(a + 3)))
    ops.append(ds_write('ds_write_b64', P.vH0 if t == 0 else P.vH1, V(pk, 2), (qt * 4 + i) * 1024, tag='hw'))
    return ops


class G2:
    def __init__(self, name, cset, order, o, acc, F, PK, vT0, vT1, vS, slot_off, sstore):
        self.name, self.cset, self.order, self.o = name, cset, order, o
        self.ACC, self.F, self.PK, self.vT0, self.vT1, self.vS = acc, F, PK, vT0, vT1, vS
        self.slot_off = slot_off
        self.sstore = sstore
        self.fr = [(u, kb, nt) for u in range(36) for kb in range(4) for nt in range(2)]

    def acc(self, qt, nt): return self.ACC + (qt * 2 + nt) * 4

    def dma(self, u, vD):
        p, hi = divmod(u, 4)
        so = self.order[hi] * 128 * 1152 + self.cset * 576
        pol = OPT.get('wopol', '')
        return [salu('s_add_u32', 'm0', 's56', self.slot_off(u)[0]), salu('s_add_u32', 's66', f's{40 + p}', so),
                dma(vD, SRD_WO, 's66', 0, tag=('U', self.name, u), pol=pol),
                salu('s_add_u32', 's67', 's66', 18432 - 1024), dma(vD, SRD_WO, 's67', 1024, tag=('U', self.name, u), pol=pol)]

    def rd(self, n):
        if n >= len(self.fr):
            return []
        u, kb, nt = self.fr[n]
        buf = self.F + (n % 4) * 4
        va = self.vT0 if nt == 0 else self.vT1
        off = self.slot_off(u)[1] + kb * 2048
        return [ds_read('ds_read_b64_tr_b16', V(buf, 2), va, off, tag=('gf', n)),
                ds_read('ds_read_b64_tr_b16', V(buf + 2, 2), va, off + 1024, tag=('gf', n))]

    def start(self):
        return self.rd(0) + self.rd(1) + self.rd(2)

    def unit(self, u, atoms=(), otag=None):
        out = []
        q = list(atoms)
        if getattr(self, 'pend', None):
            q.insert(len(q) // 2, self.pend.pop(0))
        p, hi = divmod(u, 4)
        h = self.order[hi]
        for kb in range(4):
            for nt in range(2):
                n = u * 8 + kb * 2 + nt
                tags = [('gf', n)]
                if otag and nt == 0:
                    tags.append(otag(kb))
                out.append(wait(lg=tags))
                for qt in range(3):
                    d = self.acc(qt, nt)
                    out.append(mfma(d, self.F + (n % 4) * 4, self.o(h, qt, kb), None if (hi == 0 and kb == 0) else d))
                    if qt == 0:
                        out.extend(self.rd(n + 3))
                    elif q:
                        out.extend(q.pop(0))
        for x in q:
            out.extend(x)
        if hi == 3:
            sts = []
            for qt in range(3):
                pk = self.PKS[qt]
                for t2 in range(2):
                    a = self.acc(qt, t2)
                    out.append(valu('v_cvt_pk_bf16_f32', V(pk + 2 * t2), V(a), V(a + 1)))
                    out.append(valu('v_cvt_pk_bf16_f32', V(pk + 2 * t2 + 1), V(a + 2), V(a + 3)))
                st = [] if OPT.get('nopst') else [buf_store(V(pk, 4), self.vS, SRD_WS, self.sstore, qt * 1024, tag=('st', self.name, p), pol=OPT.get('ppol', 'sc1').replace('+', ' '))]
                if qt == 2:
                    st += [salu('s_add_u32', self.sstore, self.sstore, 3072), salu('s_sub_u32', 's55', self.sstore, 27648),
                           salu('s_cmp_ge_u32', self.sstore, 's75'), salu('s_cselect_b32', self.sstore, 's55', self.sstore)]
                sts.append(st)
            if p == 8 or OPT.get('stburst'):
                for st in sts:
                    out.extend(st)
            else:
                self.pend = sts
        return out


def g2_setup(e, cset, vT0, vT1, vS, base, t0, t1, sstore):
    e(valu('v_bfe_u32', t0, V(0), 1, 1))
    e(valu('v_bfe_u32', t1, V(0), 4, 1))
    e(valu('v_lshl_add_u32', t0, t1, 1, t0))
    e(valu('v_lshrrev_b32', t1, 2, V(0)))
    e(valu('v_lshl_add_u32', t0, t1, 2, t0))
    e(valu('v_lshlrev_b32', t0, 4, t0))
    e(valu('v_and_b32', t1, 1, V(0)))
    e(valu('v_lshl_add_u32', t0, t1, 3, t0))
    e(valu('v_add_u32', vT0, base, t0))
    e(valu('v_xor_b32', vT1, 32, vT0))
    e(valu('v_lshlrev_b32', vS, 4, V(0)))
    e(salu('s_mul_i32', sstore, S_ID, 221184))
    e(salu('s_mul_i32', 's54', S_W, 2 * 27648))
    e(salu('s_add_u32', sstore, sstore, 's54'))
    e(salu('s_add_u32', sstore, sstore, PART_WS_OFF + cset * 27648))
    e(salu('s_add_u32', 's75', sstore, 27648))
    e(salu('s_and_b32', 's54', 's34', 3 if OPT.get('prot', 1) else 0))
    e(salu('s_mul_i32', 's55', 's54', 2 * 3072))
    e(salu('s_add_u32', sstore, sstore, 's55'))
    if cset == 1:
        e(salu('s_lshl_b32', 's54', 's54', 7))
        for m in range(9):
            e(salu('s_sub_u32', 's55', 's54', 576))
            e(salu('s_cmp_ge_u32', 's54', 576))
            e(salu('s_cselect_b32', f's{40 + m}', 's55', 's54'))
            e(salu('s_add_u32', 's54', f's{40 + m}', 64))


def wo_vd(e, vD, t0, t1):
    e(valu('v_bfe_u32', t1, V(0), 4, 1))
    e(valu('v_lshlrev_b32', t1, 1, t1))
    e(valu('v_and_b32', t0, 3, V(0)))
    e(valu('v_xor_b32', t0, t0, t1))
    e(valu('v_lshlrev_b32', t0, 4, t0))
    e(valu('v_lshrrev_b32', t1, 2, V(0)))
    e(valu('v_mul_u32_u24', t1, 1152, t1))
    e(valu('v_add_u32', t0, t0, t1))
    e(salu('s_mul_i32', 's54', S_W, 32 * 1152))
    e(valu('v_add_u32', vD, 's54', t0))


A_RING = [0, 1, 2, 4, 3, 5, 6, 7]
P_PARK = {0: 208, 1: 160, 2: 112, 3: 64}
A_PARK = {3: 56, 2: A.Q, 0: 152, 1: 200}


def h_read(base, vaddr, tag):
    return [ds_read('ds_read_b128', V(base + (qt * 4 + i) * 4, 4), vaddr, (qt * 4 + i) * 1024, tag=(tag, i)) for i in range(4) for qt in range(3)]


def h_write(base, vaddr, tag):
    return [ds_write('ds_write_b128', vaddr, V(base + (qt * 4 + i) * 4, 4), (qt * 4 + i) * 1024, tag=tag) for i in range(4) for qt in range(3)]


def split_atoms(ops):
    at, cur = [], []
    for o in ops:
        cur.append(o)
        if o.kind in ('dma', 'vm'):
            at.append(cur); cur = []
    assert not cur
    return at


def p_wread(n):
    k, f = divmod(n, 8)
    i, t = f >> 1, f & 1
    buf = P.F + (n % 4) * 4
    va = P.vW0 if t == 0 else P.vW1
    off = WSLOT[k] * 8192 + i * 256
    return [ds_read('ds_read_b64_tr_b16', V(buf, 2), va, off, tag=('pf', n)),
            ds_read('ds_read_b64_tr_b16', V(buf + 2, 2), va, off + 1024, tag=('pf', n))]


def reduce_frag(ld, acc, vS, vO, s_src, s_dst, t0, t1, tagp):
    loads = []
    for hg in range(8):
        loads.append(salu('s_add_u32', 's64', s_src, hg * 221184))
        loads.append(buf_load(V(ld + 4 * hg, 4), vS, SRD_WS, 's64', 0, tag=(tagp, hg), pol='sc1'))
    comp = []
    for hg in range(8):
        comp.append(wait(vm=(tagp, hg)))
        for r in range(4):
            src = V(ld + 4 * hg + r)
            if hg == 0:
                comp.append(valu('v_lshlrev_b32', V(acc + 2 * r), 16, src))
                comp.append(valu('v_and_b32', V(acc + 2 * r + 1), 0xffff0000, src))
            else:
                comp.append(valu('v_lshlrev_b32', t0, 16, src))
                comp.append(valu('v_and_b32', t1, 0xffff0000, src))
                comp.append(valu('v_add_f32', V(acc + 2 * r), V(acc + 2 * r), t0))
                comp.append(valu('v_add_f32', V(acc + 2 * r + 1), V(acc + 2 * r + 1), t1))
    for r in range(4):
        comp.append(valu('v_cvt_pk_bf16_f32', V(ld + r), V(acc + 2 * r), V(acc + 2 * r + 1)))
    comp.append(buf_store(V(ld, 2), vO, SRD_OUT, s_dst, 0))
    comp.append(buf_store(V(ld + 2, 2), vO, SRD_OUT, s_dst, 32))
    return loads, comp


SRD_OUT, SRD_DBG = 's[8:11]', 's[12:15]'


def red_setup(e, vO, t0):
    e(salu('s_mov_b32', 's8', 's4')); e(salu('s_mov_b32', 's9', 's5'))
    e(salu('s_mov_b32', 's10', 16 * 192 * 1152 * 2)); e(salu('s_mov_b32', 's11', 0x20000))
    e(salu('s_mov_b32', 's12', 's72')); e(salu('s_mov_b32', 's13', 's73'))
    e(salu('s_mov_b32', 's14', 256)); e(salu('s_mov_b32', 's15', 0x20000))
    e(salu('s_and_b32', 's54', 's35', 3))
    e(salu('s_lshr_b32', 's55', 's35', 2))
    e(salu('s_mul_i32', 's68', 's34', 8 * 221184))
    e(salu('s_mul_i32', 's64', 's54', 2 * 27648))
    e(salu('s_add_u32', 's68', 's68', 's64'))
    e(salu('s_mul_i32', 's64', 's55', 27648))
    e(salu('s_add_u32', 's68', 's68', 's64'))
    if PART_WS_OFF: e(salu('s_add_u32', 's68', 's68', PART_WS_OFF))
    e(salu('s_mul_i32', 's69', 's37', 192 * 2304))
    e(salu('s_mul_i32', 's64', 's54', 48 * 2304))
    e(salu('s_add_u32', 's69', 's69', 's64'))
    e(salu('s_mul_i32', 's64', 's36', 1152))
    e(salu('s_add_u32', 's69', 's69', 's64'))
    e(salu('s_mul_i32', 's64', 's55', 576))
    e(salu('s_add_u32', 's69', 's69', 's64'))
    e(salu('s_lshl_b32', 's70', 's34', 2))
    e(valu('v_and_b32', vO, 15, V(0)))
    e(valu('v_mul_u32_u24', vO, 2304, vO))
    e(valu('v_lshrrev_b32', t0, 4, V(0)))
    e(valu('v_lshl_add_u32', vO, t0, 3, vO))


def signal(lab, t0, t1):
    return [salu('s_cmp_eq_u32', S_WAVE, 4), raw(f's_cbranch_scc0 {lab}', 'branch'),
            salu('s_lshl_b32', 's64', 's35', 2), salu('s_lshl_b32', 's64', 1, 's64'),
            valu('v_mov_b32', t0, 's64'), valu('v_mov_b32', t1, 0), raw('s_mov_b64 exec, 1'),
            Ins(f'buffer_atomic_add {t0}, {t1}, {SRD_DBG}, s70 offen sc1', 'salu', rd=[t0.n, t1.n]),
            raw('s_mov_b64 exec, -1'), label(lab)]


def poll(lab, level, t0, t1):
    c = [valu('v_mov_b32', t1, 0), salu('s_mov_b32', 's65', 0), label(lab),
         raw(f'buffer_load_dword {t0}, {t1}, {SRD_DBG}, s70 offen sc1'), raw('s_waitcnt vmcnt(0)'),
         valu('v_readfirstlane_b32', 's64', t0)]
    if level == 1:
        c += [nop(2), salu('s_lshr_b32', 's66', 's64', 1), salu('s_or_b32', 's64', 's64', 's66'), salu('s_and_b32', 's64', 's64', 0x11111111),
              salu('s_cmp_eq_u32', 's64', 0x11111111)]
    else:
        c += [nop(2), salu('s_cmp_eq_u32', 's64', 0x22222222)]
    c += [raw(f's_cbranch_scc1 {lab}_ok', 'branch'), salu('s_add_u32', 's65', 's65', 1), raw('s_sleep 2'),
          salu('s_cmp_lt_u32', 's65', 1 << 22), raw(f's_cbranch_scc1 {lab}', 'branch'), label(f'{lab}_ok')]
    return c


def frag_offsets(sidx):
    return [salu('s_lshl_b32', 's66', sidx, 10), salu('s_add_u32', 's66', 's66', 's68'),
            salu('s_mul_i32', 's64', sidx, 43), salu('s_lshr_b32', 's64', 's64', 7),
            salu('s_mul_i32', 's65', 's64', 3), salu('s_sub_u32', 's65', sidx, 's65'),
            salu('s_mul_i32', 's65', 's65', 16 * 2304), salu('s_lshl_b32', 's64', 's64', 6),
            salu('s_add_u32', 's67', 's69', 's65'), salu('s_add_u32', 's67', 's67', 's64')]


def build_k1():
    INK = OPT.get('inred', 1)
    head = []
    e = head.append
    common_prologue(e)
    head += q0_phase()
    e(salu('s_cmp_ge_u32', S_WAVE, 4))
    e(raw('s_cbranch_scc0 L_A', 'branch'))
    e(raw('s_branch L_P', 'branch'))

    names = [('IT', t) for t in range(-1, 64)]
    quota = {n: 0 for n in names}
    T0 = OPT.get('t0', 1)
    QE, QN, QC = OPT.get('qe', 9), OPT.get('qn', 9), OPT.get('qc', 9)
    def fill(ts, total, fixed):
        rest = [t for t in ts if t not in fixed]
        rem = total - sum(fixed.values())
        for i, t in enumerate(rest):
            quota[('IT', t)] = (rem * (i + 1)) // len(rest) - (rem * i) // len(rest)
        for t, v in fixed.items():
            quota[('IT', t)] = v
    if OPT.get('kal', 0):
        for t in range(0, 45): quota[('IT', t)] = 8
        for t in (2, 4, 6, 8, 10, 18, 23, 34, 39): quota[('IT', t)] = 16
    else:
        fill(range(T0, 14), 150, {T0: 8})
        fill(range(14, 30), 144, {15: QN, 16: QE, 28: QC, 29: QC})
        fill(range(30, 46), 138, {31: QN, 32: QE, 44: QC, 45: 0})
    start = {}
    c = 144
    for n in names:
        start[n] = c; c += quota[n]
    assert c == 576
    iv_of = {}
    for idx, n in enumerate(names):
        for fr in range(start[n], start[n] + quota[n]):
            iv_of[fr] = idx
    hdead = {1: ('IT', 13), 2: ('IT', 29), 3: ('IT', 45)}
    for hq in (1, 2): assert start[hdead[hq]] + quota[hdead[hq]] >= 144 * hq + 150
    front = {}

    NG = 576 * 3
    gaps = [[] for _ in range(NG + 1)]

    ZF = OPT.get('zone', 62)
    pref = [False] * (NG + 64)
    for n in names:
        if n[0] == 'IT':
            for g in range(start[n] * 3, start[n] * 3 + (quota[n] * 3 * ZF) // 100):
                pref[g] = True
        else:
            for g in range(start[n] * 3, (start[n] + quota[n]) * 3):
                pref[g] = True

    def chain(atoms, lo, hi, zone=True):
        n = len(atoms)
        Z = [g for g in range(lo, hi + 1) if pref[g]] if zone else []
        if len(Z) * 2 < n or not Z:
            Z = list(range(lo, hi + 1))
        for a, at in enumerate(atoms):
            g = Z[(a * (len(Z) - 1)) // max(n - 1, 1)]
            gaps[min(g, NG)].append(at)
    for k in range(18, 72):
        M = k // 2
        g0 = k * 24
        at = []
        if k % 2 == 0:
            at.append(x_read_odd(M))
            lw = [x_write(M + 1, i) for i in range(3)] if M + 1 < 36 else []
            ll = [x_load(M + 2, i) for i in range(3, 6)] if M + 2 < 36 else []
            while lw or ll:
                if ll: at.append(ll.pop(0))
                if lw: at.append(lw.pop(0))
        elif M + 1 < 36:
            ll = [x_load(M + 3, i) for i in range(3)] if M + 3 < 36 else [[], [], []]
            at += [x_write(M + 1, 3), x_read_even(M + 1, 0) + x_read_even(M + 1, 1), ll[0], x_write(M + 1, 4), ll[1], x_write(M + 1, 5),
                   x_read_even(M + 1, 2), ll[2]]
        if OPT.get('kal', 0) and any(start[n] == k * 8 and quota[n] for n in names):
            front[k * 8] = at
        else:
            chain(at, g0 + 1, g0 + 21)
        if k % 18 == 17:
            cv = []
            nn = 0
            for f in range(8):
                for qt in range(3):
                    o = q_handoff_tile(qt, f >> 1, f & 1, nn); nn += 1
                    cv += [o[:4], o[4:]]
            chain(cv, g0 + 6, g0 + 39, zone=False)
        if k in (52, 70):
            hr = [valu('v_and_b32', P.T0, ~15, P.vH0)] + h_read(P_PARK[0 if k == 52 else 1], P.T0, ('po', k))
            chain([hr[:4], hr[4:7], hr[7:10], hr[10:]], g0 + 8, g0 + 20)

    pslot = {}
    free = list(range(6))
    for u in range(36):
        if u == 13: free += [6, 7]
        pslot[u] = None
    seq = list(range(6))
    gA = G2('A', 0, [3, 2, 0, 1], lambda h, qt, i: A_PARK[h] + (qt * 4 + i) * 4, acc=8, F=32, PK=0, vT0=V(2), vT1=V(3), vS=V(4),
            slot_off=lambda u: (A_RING[u % 8] * 8192, A_RING[u % 8] * 8192), sstore='s74')
    gP = G2('P', 1, [0, 1, 2, 3], lambda h, qt, i: P_PARK[h] + (qt * 4 + i) * 4, acc=32, F=16, PK=0, vT0=V(6), vT1=V(7), vS=V(5),
            slot_off=lambda u: (WQ_BASE + pslot[u] * 8192, pslot[u] * 8192), sstore='s74')
    gA.PKS = [48, 52, 248]
    gP.PKS = [56, 60, 12]
    p_issue = {}
    fl = list(range(6))
    nxt = 0
    for u in range(5):
        pslot[u] = fl.pop(0); nxt += 1
    for sv in range(36):
        if sv >= 1:
            fl.append(pslot[sv - 1])
        if sv == 7:
            fl += [6, 7]
        lst = []
        while fl and nxt < 36 and len(lst) < 2:
            pslot[nxt] = fl.pop(0); lst.append(nxt); nxt += 1
        p_issue[sv] = lst

    w_issue = {}
    fl = [3]
    wn = 18
    for idx in range(len(names)):
        if idx == 1: fl += [0, 1, 2]
        for k in range(18, wn):
            if iv_of[k * 8 + 7] == idx - 1:
                fl.append(WSLOT[k])
        lst = []
        while wn < 72 and fl:
            WSLOT[wn] = fl.pop(0); lst.append(wn); wn += 1
        w_issue[idx] = lst

    pc = [label('L_P')]
    if OPT.get('prioP'): pc.append(salu('s_setprio', OPT['prioP']))
    for i in range(2):
        for qt in range(3):
            pc.append(ds_write('ds_write_b128', V(18), V(A.q(qt, i), 4), (qt * 2 + i) * 1024, tag='qt'))
    pc.append(wait(vm=[('K0', 0)], lg='qt'))
    pc.append(barrier())
    p_setup(pc.append)
    for i in range(6): pc.extend(x_load(9, i))
    for i in range(6): pc.extend(x_load(10, i))
    p_setup2(pc.append)
    vHl = V(8)
    published = set()
    pc.append(salu('s_mul_i32', 's75', 's37', 36864))
    pc.append(salu('s_mul_i32', 's55', S_W, 9216))
    pc.append(salu('s_add_u32', 's75', 's75', 's55'))
    pc.append(salu('s_sub_u32', 's75', 's75', 9 * 128))
    pc.append(valu('v_lshlrev_b32', V(203), 7, V(0)))
    pc.append(valu('v_mov_b32', V(204), 0x7fffff00))
    pc.append(valu('v_cmp_gt_u32', 'vcc', 9, V(0)))
    pc.append(valu('v_cndmask_b32', V(203), V(204), V(203), 'vcc'))
    vD = V(4)
    rd_next = 144
    for idx, n in enumerate(names):
        side = []
        need = []
        post = []
        lg = None
        t = n[1] if n[0] == 'IT' else None
        f0, q = start[n], quota[n]
        for k in w_issue[idx]:
            side += split_atoms(wq_dma(k))
        newpub = set()
        if idx + 1 < len(names):
            n2 = names[idx + 1]
            newpub = {fr // 8 for fr in range(start[n2], start[n2] + quota[n2])}
            need += [('W', k) for k in sorted(newpub)]
        if n in hdead.values():
            lg = 'hw'
        if n[0] == 'IT':
            if 0 <= t and t + 4 <= 63:
                side += split_atoms(k_dma(P.vKd, t + 4))
            if 2 <= t and t + 2 <= 63:
                side += split_atoms(v_dma(P.vVd, t + 2))
            if 4 <= t + 1 <= 63:
                need.append(('V', t + 1))
            if 4 <= t + 3 <= 63:
                need.append(('K', t + 3))
            if OPT.get('wot', 'p') == 'p' and t in range(3, 35, 4):
                side.append([salu('s_add_u32', 's75', 's75', 9 * 128), buf_load(V(204), V(203), SRD_WO, 's75', 0)])
            if t == -1:
                need += [('V0', 0), ('K0', 2), ('V0', 2)]
            if t == T0 - 1:
                for i in range(4): post.extend(x_write(9, i))
                post.extend(x_read_even(9, 0) + x_read_even(9, 1) + x_write(9, 4) + x_write(9, 5) + x_read_even(9, 2))
                for i in range(3): post.extend(x_load(11, i))
            if t == 45:
                for at in gaps[NG]: post.extend(at)
            if t == 47:
                wo_vd(post.append, vD, P.T0, V(12))
                g2_setup(post.append, 1, gP.vT0, gP.vT1, gP.vS, WQ_BASE, P.T0, V(12), 's74')
                post.append(valu('v_and_b32', vHl, ~15, P.vH0))
            if t == 50:
                post += h_read(P_PARK[2], vHl, ('po', t)); lg = 'all'
            if 54 <= t <= 58:
                post += gP.dma(t - 54, vD)
            if t == 59:
                need += [('U', 'P', 0), ('U', 'P', 1)]
            if t == 60:
                post += gA.dma(0, vD)
            if t in (61, 62, 63):
                v = t - 61
                if t == 61:
                    post += gP.start()
                at = []
                for u in p_issue[v]:
                    at += split_atoms(gP.dma(u, vD))
                for u in ([1], [2, 3], [4, 5])[v]: at += split_atoms(gA.dma(u, vD))
                post += gP.unit(v, at)
                need.append(('U', 'P', v + 2))
                if t == 63:
                    need += [('U', 'A', 0), ('U', 'A', 1)]
        boost = OPT.get('boost') and n[0] == 'IT' and t in (15, 16, 31, 32)
        if boost: pc.append(salu('s_setprio', 2))
        if q:
            while rd_next < min(f0 + 3, 576) and rd_next // 8 in published:
                pc.extend(p_wread(rd_next)); rd_next += 1
            tgt = {}
            if OPT.get('kal', 0):
                if OPT.get('fprio'): pc.append(salu('s_setprio', 2))
                for at in front.get(f0, []) + side: pc.extend(at)
                if OPT.get('fprio'): pc.append(salu('s_setprio', OPT.get('mprio', 0)))
            else:
                if side:
                    pc.extend(side.pop(0))
                ng = max(1, (q * 3 * ZF) // 100)
                for a, at in enumerate(side):
                    tgt.setdefault((a * ng) // len(side), []).append(at)
            for fr in range(f0, f0 + q):
                k, f = divmod(fr, 8)
                i, tt = f >> 1, f & 1
                pc.append(wait(lg=[('pf', fr)] + ([('xf', k)] if f == 0 else [])))
                rd = []
                if rd_next == fr + 3 and rd_next < 576 and rd_next // 8 in published:
                    rd = p_wread(rd_next); rd_next += 1
                for qt in range(3):
                    d = P.acc(qt, i, tt)
                    pc.append(mfma(d, P.F + (fr % 4) * 4, P.xf(k, qt), d if k % 18 else None))
                    if qt < len(rd): pc.append(rd[qt])
                    for at in gaps[fr * 3 + qt]:
                        pc.extend(at)
                    for at in tgt.get((fr - f0) * 3 + qt, []):
                        pc.extend(at)
                if OPT.get('pfine') == t and fr - f0 < 10: pc.extend(stamp(fr - f0 + 2))
        else:
            for at in side:
                pc.extend(at)
        pc.extend(post)
        if boost: pc.append(salu('s_setprio', 0))
        pc.append(wait(vm=need, lg=lg))
        pc.append(barrier())
        published |= newpub
        if OPT.get('novm') and n == ('IT', 0): novm0 = len(pc)
        if OPT.get('novm') and n == ('IT', 52):
            for x in pc[novm0:]:
                if x.kind in ('dma', 'vm'):
                    kk = 'kv' if x.tag and x.tag[0] in 'KV' else ('w' if x.tag and x.tag[0] == 'W' else 'x')
                    if OPT['novm'] == 'all' or kk in OPT['novm'].split('+'):
                        x.text = 's_nop 0'
        st = {('IT', -1): 3, ('IT', 0): 4, ('IT', 16): 5, ('IT', 32): 6, ('IT', 48): 7, ('IT', 63): 8}
        if OPT.get('stpro'):
            st = {('PRO', k): i + 1 for i, k in enumerate([0, 1, 3, 5, 7, 9, 11, 13, 15, 17])}; st[('HND', 0)] = 11
        if OPT.get('stit') is not None:
            st = {('IT', OPT['stit'] + i): i + 1 for i in range(11)}
        if 'stg' in OPT: st = {}
        if 'pfine' in OPT: st = {('IT', OPT['pfine'] - 1): 1}
        if n in st:
            pc.extend(stamp(st[n]))
    nost = OPT.get('stpro') or 'stit' in OPT or 'stg' in OPT or 'pfine' in OPT
    for g in range(33):
        v = g + 3
        at = []
        need = []
        for u in p_issue[v]:
            at += split_atoms(gP.dma(u, vD))
        if g == 0:
            at += split_atoms(gA.dma(6, vD))
        if g + 7 < 36:
            at += split_atoms(gA.dma(g + 7, vD))
        if v + 2 < 36:
            need.append(('U', 'P', v + 2))
        need.append(('U', 'A', g + 2 if g < 32 else 35))
        lg = None
        otag = None
        if g == 0:
            pc += h_read(P_PARK[3], vHl, 'po3')
            otag = lambda kb: ('po3', kb)
            hw = h_write(P_PARK[0], vHl, 'hw0'); at = [[x] for x in hw] + at; lg = 'hw0'
        if g == 2:
            hw = h_write(P_PARK[1], vHl, 'hw1'); at = [[x] for x in hw] + at; lg = 'hw1'
        if g == 5 and INK:
            rs = []; red_setup(rs.append, V(9), V(1)); at = [rs[i:i + 4] for i in range(0, len(rs), 4)] + at
        if g == 30 and INK:
            need.append(('st', 'P', 6))
        if g == 31 and INK:
            pc += signal('L_sig1', V(1), V(2))
        pc += gP.unit(v, at, otag)
        pc.append(wait(vm=need, lg=lg))
        pc.append(barrier())
        if 'stg' in OPT and 0 <= g - OPT['stg'] < 11: pc.extend(stamp(g - OPT['stg'] + 1))
    if not nost: pc.extend(stamp(9))
    if INK:
        pc += poll('L_poll1', 1, V(1), V(2))
        NF = 6
        lc = []
        for r in range(NF):
            pre = [salu('s_add_u32', 's71', S_W, 4 * r), salu('s_min_u32', 's71', 's71', 20)] + frag_offsets('s71') + \
                  [salu('s_mov_b32', f's{40 + r}', 's67')]
            ld, cp = reduce_frag(64 + 32 * r, 16, gP.vS, V(9), 's66', f's{40 + r}', V(1), V(2), ('r1', r))
            lc.append((pre + ld, cp))
        for r in range(NF):
            pc += lc[r][0]
        for r in range(NF):
            pc += lc[r][1]
        pc.append(wait(vm=('st', 'P', 8)))
        pc.append(barrier())
        if not nost: pc.extend(stamp(10))
        pc += signal('L_sig2', V(1), V(2))
        pc += [salu('s_cmp_ge_u32', S_W, 2), raw('s_cbranch_scc1 L_P_end', 'branch')]
        pc += poll('L_poll2p', 2, V(1), V(2))
        pc += [salu('s_add_u32', 's71', S_W, 25)] + frag_offsets('s71')
        ld, cp = reduce_frag(64, 16, gP.vS, V(9), 's66', 's67', V(1), V(2), 'r2')
        pc += ld + cp
        pc.append(label('L_P_end'))
    if not nost: pc.extend(stamp(11))
    pc.extend(stamp_out())
    pc.append(raw('s_endpgm', 'branch'))
    resolve_waits(head + pc)
    while hazards(head + pc):
        pass

    def osink(h):
        def sink(qt, i, buf):
            return [ds_write('ds_write_b128', A.vH, buf, (qt * 4 + i) * 1024, tag='ow')]
        return sink
    ag = AGen(osink)
    apro = [label('L_A')]
    e = apro.append
    if OPT.get('prioA', 1): e(salu('s_setprio', OPT.get('prioA', 1)))

    e(wait(vm=[('K0', 0)]))
    e(barrier())
    for n in (0, 2):
        apro.extend(ag.read(n))
    for i in range(2):
        for qt in range(3):
            e(ds_read('ds_read_b128', V(A.q(qt, 2 + i), 4), V(18), (qt * 2 + i) * 1024, tag=('q', 0, 2 + i)))
    def bar(t):
        b = []
        if t == 0: b.append(wait(vm='all'))
        if t % 16 == 1: b.append(wait(lg='ow' if t > 1 else None))
        b.append(barrier())
        if t == 0: b += stamp(3)
        def cst(k):
            if not STAMPS: return []
            return [salu('s_cmp_eq_u32', 's71', OPT.get('sth', 3)), raw(f's_cbranch_scc0 L_cs{k}', 'branch')] + stamp(k) + [label(f'L_cs{k}')]
        if t % 16 == 5: b += cst(5)
        if t % 16 == 6: b = cst(6) + b + cst(7)
        return b
    apro.extend(ag.iteration(-1))
    apro.extend(ag.iteration(0, bar=bar(0))); apro.extend(stamp(4))
    bodies = []
    for h in range(4):
        b = []
        for j in range(1, 14):
            b.extend(ag.iteration(16 * h + j, bar=bar(16 * h + j)))
        b.append(salu('s_cmp_eq_u32', 's71', 3))
        b.append(raw('s_cbranch_scc1 L_A_tail', 'branch'))
        if h < 3:
            for j in (14, 15, 16):
                b.extend(ag.iteration(16 * h + j, bar=bar(16 * h + j)))
            b.append(salu('s_add_u32', 's71', 's71', 1))
            b.append(raw('s_branch L_A_loop', 'branch'))
        bodies.append(b)
    tail = [label('L_A_tail')]
    tail.extend(ag.iteration(62, bar=bar(62)))
    tail.extend(ag.iteration(63, bar=bar(63)))
    eo = epilogue_ops(osink(3), dst=lambda qt, i: A_PARK[3] + (qt * 4 + i) * 4)
    tail.extend(ag.iteration(64))
    tail.extend(eo)
    g2_setup(tail.append, 0, gA.vT0, gA.vT1, gA.vS, 0, A.T0, A.T1, 's74')
    tail.append(wait(lg='all'))
    tail.append(barrier())
    tail.extend(stamp(8))
    if OPT.get('prio2') is not None: tail.append(salu('s_setprio', OPT['prio2']))
    tail += gA.start()
    for g in range(36):
        at = []
        otag = None
        lg = None
        vmn = None
        if g == 1:
            at = [[x] for x in h_read(A_PARK[0], A.vH, 'ao0')]; lg = ('ao0', 3)
        if g == 3:
            tail += h_read(A_PARK[1], A.vH, 'ao1')
            otag = lambda kb: ('ao1', kb)
        if g == 5 and INK:
            rs = []; red_setup(rs.append, V(6), V(1)); at = [rs[i:i + 4] for i in range(0, len(rs), 4)]
        if g == 30 and INK:
            vmn = ('st', 'A', 6)
        tail += gA.unit(g, at, otag)
        if g <= 32:
            tail.append(wait(lg=lg, vm=vmn))
            tail.append(barrier())
    tail.extend(stamp(9))
    if INK:
        tail.append(wait(vm='all'))
        tail.append(barrier())
        tail.extend(stamp(10))
        tail += poll('L_poll2a', 2, V(1), V(7))
        tail += [salu('s_add_u32', 's71', S_W, 21)] + frag_offsets('s71')
        ld, cp = reduce_frag(64, 16, gA.vS, V(6), 's66', 's67', V(1), V(7), 'r2')
        tail += ld + cp
    tail.extend(stamp(11))
    tail.extend(stamp_out())
    tail.append(raw('s_endpgm', 'branch'))
    resolve_waits(head + apro + bodies[0] + bodies[1] + bodies[2] + bodies[3] + tail)
    body = fold(bodies)
    npre = len(bodies[3])
    while hazards(head + apro + body + body + body[:npre] + tail):
        pass
    rare = []
    for site, lab in rare_sites:
        rare += [label(f'TR_{site}'), raw(f's_call_b64 s[62:63], {lab}', 'branch'), raw(f's_branch RET_{site}', 'branch')]
    for var, lab in rare_variants.items():
        rc = rare_code(var, lab)
        while hazards(rc):
            pass
        rare += rc
    nb = lambda q: sum(1 for i in q if i.kind == 'barrier')
    na = nb(apro) + 3 * nb(body) + nb(body[:npre]) + nb(tail)
    assert na == nb(pc), (na, nb(pc))
    print(stats(apro, 'A pro'), file=sys.stderr); print(stats(body, 'A body'), file=sys.stderr)
    print(stats(tail, 'A tail'), file=sys.stderr); print(stats(pc, 'P'), file=sys.stderr); print(stats(rare, 'rare'), file=sys.stderr)
    lines = render(head) + render(apro) + ['.p2align 6', 'L_A_loop:'] + render(body) + render(rare) + render(tail) + ['.p2align 6'] + render(pc) + ['L_k1_end:']
    return lines

def build_k3_old():
    c = []
    e = c.append
    e(raw('s_cmp_ge_u32 s2, 1728')); e(raw('s_cbranch_scc0 L3_go')); e(raw('s_endpgm')); e(label('L3_go'))
    e(raw('s_load_dwordx2 s[4:5], s[0:1], 80'))
    e(raw('s_load_dwordx2 s[6:7], s[0:1], 96'))
    e(valu('v_lshrrev_b32', V(1), 6, V(0)))
    e(valu('v_readfirstlane_b32', 's16', V(1)))
    e(valu('v_and_b32', V(0), 63, V(0)))
    if OPT.get('k3x', 1):
        e(salu('s_and_b32', 's17', 's2', 7))
        e(salu('s_mul_i32', 's17', 's17', 216))
        e(salu('s_lshr_b32', 's18', 's2', 3))
        e(salu('s_add_u32', 's17', 's17', 's18'))
        e(salu('s_lshl_b32', 's17', 's17', 2))
    else:
        e(salu('s_lshl_b32', 's17', 's2', 2))
    e(salu('s_add_u32', 's17', 's17', 's16'))
    e(salu('s_mul_hi_u32', 's18', 's17', (2 ** 32 + 215) // 216))
    e(salu('s_mul_i32', 's19', 's18', 216))
    e(salu('s_sub_u32', 's19', 's17', 's19'))
    e(salu('s_mul_hi_u32', 's20', 's19', (2 ** 32 + 26) // 27))
    e(salu('s_mul_i32', 's21', 's20', 27))
    e(salu('s_sub_u32', 's21', 's19', 's21'))
    e(salu('s_mul_hi_u32', 's22', 's21', (2 ** 32 + 2) // 3))
    e(salu('s_mul_i32', 's23', 's22', 3))
    e(salu('s_sub_u32', 's23', 's21', 's23'))
    e(raw('s_waitcnt lgkmcnt(0)'))
    e(salu('s_mov_b32', 's8', 's6')); e(salu('s_mov_b32', 's9', 's7'))
    e(salu('s_mov_b32', 's10', PART_WS_OFF + 256 * 221184)); e(salu('s_mov_b32', 's11', 0x20000))
    e(salu('s_mov_b32', 's12', 's4')); e(salu('s_mov_b32', 's13', 's5'))
    e(salu('s_mov_b32', 's14', 16 * 192 * 1152 * 2)); e(salu('s_mov_b32', 's15', 0x20000))
    e(salu('s_mul_i32', 's24', 's18', 8 * 221184))
    e(salu('s_lshl_b32', 's25', 's19', 10))
    e(salu('s_add_u32', 's24', 's24', 's25'))
    e(salu('s_add_u32', 's24', 's24', PART_WS_OFF))
    e(valu('v_lshlrev_b32', V(1), 4, V(0)))
    for hg in range(8):
        e(buf_load(V(8 + 4 * hg, 4), V(1), 's[8:11]', 's24', 0, tag=('p', hg), pol=OPT.get('rpol', '').replace('+', ' ')))
        e(salu('s_add_u32', 's24', 's24', 221184))
    e(salu('s_and_b32', 's26', 's18', 15))
    e(salu('s_mul_i32', 's26', 's26', 192))
    e(salu('s_lshr_b32', 's27', 's20', 1))
    e(salu('s_mul_i32', 's27', 's27', 48))
    e(salu('s_add_u32', 's26', 's26', 's27'))
    e(salu('s_lshl_b32', 's27', 's23', 4))
    e(salu('s_add_u32', 's26', 's26', 's27'))
    e(salu('s_mul_i32', 's26', 's26', 2304))
    e(salu('s_lshr_b32', 's27', 's18', 4))
    e(salu('s_mul_i32', 's27', 's27', 1152))
    e(salu('s_add_u32', 's26', 's26', 's27'))
    e(salu('s_and_b32', 's27', 's20', 1))
    e(salu('s_mul_i32', 's27', 's27', 576))
    e(salu('s_add_u32', 's26', 's26', 's27'))
    e(salu('s_lshl_b32', 's27', 's22', 6))
    e(salu('s_add_u32', 's26', 's26', 's27'))
    e(valu('v_and_b32', V(2), 15, V(0)))
    e(valu('v_mul_u32_u24', V(2), 2304, V(2)))
    e(valu('v_lshrrev_b32', V(3), 4, V(0)))
    e(valu('v_lshl_add_u32', V(2), V(3), 3, V(2)))
    ACC = 40
    for hg in range(8):
        e(wait(vm=('p', hg)))
        for r in range(4):
            src = V(8 + 4 * hg + r)
            if hg == 0:
                e(valu('v_lshlrev_b32', V(ACC + 2 * r), 16, src))
                e(valu('v_and_b32', V(ACC + 2 * r + 1), 0xffff0000, src))
            else:
                e(valu('v_lshlrev_b32', V(4), 16, src))
                e(valu('v_and_b32', V(5), 0xffff0000, src))
                e(valu('v_add_f32', V(ACC + 2 * r), V(ACC + 2 * r), V(4)))
                e(valu('v_add_f32', V(ACC + 2 * r + 1), V(ACC + 2 * r + 1), V(5)))
    for r in range(4):
        e(valu('v_cvt_pk_bf16_f32', V(8 + r), V(ACC + 2 * r), V(ACC + 2 * r + 1)))
    e(buf_store(V(8, 2), V(2), 's[12:15]', 's26', 0))
    e(buf_store(V(10, 2), V(2), 's[12:15]', 's26', 32))
    e(raw('s_endpgm', 'branch'))
    resolve_waits(c)
    while hazards(c):
        pass
    return render(c)


def build_k3():
    c = []
    e = c.append
    e(raw('s_cmp_ge_u32 s2, 256')); e(raw('s_cbranch_scc0 L3_go')); e(raw('s_endpgm')); e(label('L3_go'))
    e(raw('s_load_dwordx2 s[4:5], s[0:1], 80'))
    e(raw('s_load_dwordx2 s[6:7], s[0:1], 96'))
    e(valu('v_lshrrev_b32', V(1), 6, V(0)))
    e(valu('v_readfirstlane_b32', 's22', V(1)))
    e(valu('v_and_b32', V(0), 63, V(0)))
    e(salu('s_and_b32', 's17', 's2', 7))
    e(salu('s_lshr_b32', 's19', 's2', 3))
    e(salu('s_lshl_b32', 's18', 's17', 2))
    e(salu('s_lshr_b32', 's20', 's19', 3))
    e(salu('s_add_u32', 's18', 's18', 's20'))
    e(salu('s_and_b32', 's20', 's19', 7))
    e(salu('s_mul_i32', 's24', 's18', 8 * 221184))
    e(salu('s_mul_i32', 's25', 's20', 27648))
    e(salu('s_add_u32', 's24', 's24', 's25'))
    e(salu('s_mul_i32', 's25', 's22', 3072))
    e(salu('s_add_u32', 's24', 's24', 's25'))
    if PART_WS_OFF: e(salu('s_add_u32', 's24', 's24', PART_WS_OFF))
    e(valu('v_lshlrev_b32', V(1), 4, V(0)))
    e(raw('s_waitcnt lgkmcnt(0)'))
    e(salu('s_mov_b32', 's8', 's6')); e(salu('s_mov_b32', 's9', 's7'))
    e(salu('s_mov_b32', 's10', PART_WS_OFF + 256 * 221184)); e(salu('s_mov_b32', 's11', 0x20000))
    LD = 16
    for qt in range(3):
        for hg in range(8):
            e(salu('s_add_u32', 's25', 's24', hg * 221184))
            e(buf_load(V(LD + (qt * 8 + hg) * 4, 4), V(1), 's[8:11]', 's25', qt * 1024, tag=('p', qt, hg), pol=OPT.get('rpol', '').replace('+', ' ')))
    e(salu('s_mov_b32', 's12', 's4')); e(salu('s_mov_b32', 's13', 's5'))
    e(salu('s_mov_b32', 's14', 16 * 192 * 1152 * 2)); e(salu('s_mov_b32', 's15', 0x20000))
    e(salu('s_and_b32', 's26', 's18', 15))
    e(salu('s_mul_i32', 's26', 's26', 192))
    e(salu('s_lshr_b32', 's27', 's20', 1))
    e(salu('s_mul_i32', 's27', 's27', 48))
    e(salu('s_add_u32', 's26', 's26', 's27'))
    e(salu('s_mul_i32', 's26', 's26', 2304))
    e(salu('s_lshr_b32', 's27', 's18', 4))
    e(salu('s_mul_i32', 's27', 's27', 1152))
    e(salu('s_add_u32', 's26', 's26', 's27'))
    e(salu('s_and_b32', 's27', 's20', 1))
    e(salu('s_mul_i32', 's27', 's27', 576))
    e(salu('s_add_u32', 's26', 's26', 's27'))
    e(salu('s_lshl_b32', 's27', 's22', 6))
    e(salu('s_add_u32', 's26', 's26', 's27'))
    e(valu('v_and_b32', V(2), 15, V(0)))
    e(valu('v_mul_u32_u24', V(2), 2304, V(2)))
    e(valu('v_lshrrev_b32', V(3), 4, V(0)))
    e(valu('v_lshl_add_u32', V(2), V(3), 3, V(2)))
    ACC = 8
    for qt in range(3):
        for hg in range(8):
            e(wait(vm=('p', qt, hg)))
            for r in range(4):
                src = V(LD + (qt * 8 + hg) * 4 + r)
                if hg == 0:
                    e(valu('v_lshlrev_b32', V(ACC + 2 * r), 16, src))
                    e(valu('v_and_b32', V(ACC + 2 * r + 1), 0xffff0000, src))
                else:
                    e(valu('v_lshlrev_b32', V(4), 16, src))
                    e(valu('v_and_b32', V(5), 0xffff0000, src))
                    e(valu('v_add_f32', V(ACC + 2 * r), V(ACC + 2 * r), V(4)))
                    e(valu('v_add_f32', V(ACC + 2 * r + 1), V(ACC + 2 * r + 1), V(5)))
        o = LD + qt * 32
        for r in range(4):
            e(valu('v_cvt_pk_bf16_f32', V(o + r), V(ACC + 2 * r), V(ACC + 2 * r + 1)))
        e(buf_store(V(o, 2), V(2), 's[12:15]', 's26', 0))
        e(buf_store(V(o + 2, 2), V(2), 's[12:15]', 's26', 32))
        e(salu('s_add_u32', 's26', 's26', 16 * 2304))
    e(raw('s_endpgm', 'branch'))
    resolve_waits(c)
    while hazards(c):
        pass
    return render(c)


def kd(name, vgpr, sgpr=102):
    return ['.p2align 6', f'.amdhsa_kernel {name}', f'  .amdhsa_next_free_vgpr {vgpr}', f'  .amdhsa_next_free_sgpr {sgpr}',
            f'  .amdhsa_accum_offset {(vgpr + 3) // 4 * 4}', '  .amdhsa_group_segment_fixed_size 0', '  .amdhsa_kernarg_size 104',
            '  .amdhsa_user_sgpr_count 2', '  .amdhsa_user_sgpr_kernarg_segment_ptr 1', '  .amdhsa_system_sgpr_workgroup_id_x 1',
            '.end_amdhsa_kernel']


def kern(name, lines):
    return [f'.globl {name}', '.p2align 8', f'.type {name},@function', f'{name}:'] + lines


if __name__ == '__main__':
    which = sys.argv[2] if len(sys.argv) > 2 else '123'
    STAMPS = 's' in which
    for kv in sys.argv[3:]:
        k, v = kv.split('='); OPT[k] = int(v) if v.lstrip('-').isdigit() else v
    out = []
    single = '3' not in which
    k1 = NAME + '_kernel' if single else 'k1_kernel'
    if single:
        out.append(f'; @launch grid=(256,1,1) block=(512,1,1) lds={LDS_BYTES}')
    else:
        OPT['inred'] = 0
        out.append(f'; @launch kernel=k1_kernel grid=(256,1,1) block=(512,1,1) lds={LDS_BYTES}')
        out.append('; @launch kernel=k3_kernel grid=(1728,1,1) block=(256,1,1) lds=0' if OPT.get('k3old') else '; @launch kernel=k3_kernel grid=(256,1,1) block=(576,1,1) lds=0')
    out += ['.amdgcn_target "amdgcn-amd-amdhsa--gfx950"', '.text']
    out += kern(k1, build_k1())
    if not single: out += kern('k3_kernel', build_k3_old() if OPT.get('k3old') else build_k3())
    out += ['.section .rodata,"a"'] + kd(k1, 256) + ([] if single else kd('k3_kernel', 48 if OPT.get('k3old') else 112, 32))
    open(sys.argv[1], 'w').write('\n'.join(out) + '\n')
```

```python
import sys, math
sys.path.insert(0, 'gen')
from asmlib import *

NAME = 'concat_heads__mha_block_cached__mha_block_cached__near_ridge'
CSCALE = math.log2(math.e) / math.sqrt(128.0)
THR = 1024.0

KV_BASE = 0
WQ_BASE = 65536
NWQ = 4
WSLOT = {}
XB_BASE = WQ_BASE + NWQ * 8192
H_BASE = XB_BASE + 16384
LDS_BYTES = 163840

SRD_K, SRD_V, SRD_WQ, SRD_X, SRD_WS, SRD_WO = 's[8:11]', 's[12:15]', 's[16:19]', 's[20:23]', 's[24:27]', 's[28:31]'
S_W = 's50'
S_WAVE = 's39'
S_ID = 's51'

PART_WS_OFF = 0


STAMPS = False
OPT = {}
STAMP_OFF = 120 * 1024 * 1024
def stamp(k):
    if not STAMPS: return []
    assert k < 12
    return [raw(f's_memtime s[{76 + 2 * k}:{77 + 2 * k}]')]
def stamp_init():
    if not STAMPS: return []
    return [salu('s_mov_b32', f's{r}', 0) for r in range(76, 100)] + [raw('s_memrealtime s[100:101]')]
def stamp_out(t0=V(8, 4), a=V(1)):
    if not STAMPS: return []
    c = [raw('s_memrealtime s[52:53]'), raw('s_waitcnt vmcnt(0) lgkmcnt(0)'), salu('s_lshl_b32', 's54', 's2', 3), salu('s_add_u32', 's54', 's54', S_WAVE),
         salu('s_lshl_b32', 's54', 's54', 7), salu('s_add_u32', 's54', 's54', STAMP_OFF), salu('s_mov_b32', 's26', STAMP_OFF + 1024 * 1024),
         valu('v_mov_b32', a, 0), raw('s_mov_b64 exec, 1')]
    regs = list(range(76, 102)) + [52, 53]
    for k in range(7):
        for r in range(4):
            c.append(valu('v_mov_b32', V(t0.n + r), f's{regs[4 * k + r]}'))
        c.append(buf_store(t0, a, SRD_WS, 's54', 16 * k))
        c.append(nop(3))
    return c


PHYS = {7: 0, 1: 1, 2: 2, 4: 3, 3: 4, 5: 5, 6: 6, 0: 7}
def dbg_out():
    if not OPT.get('dbg'): return []
    c = [raw('s_memtime s[92:93]'), raw('s_memrealtime s[94:95]'), raw('s_waitcnt vmcnt(0) lgkmcnt(0)'),
         salu('s_cmp_eq_u32', S_WAVE, 0), raw('s_cbranch_scc0 L_dbg_skip', 'branch'),
         salu('s_cmp_lt_u32', 's2', 8), raw('s_cbranch_scc0 L_dbg_skip', 'branch'),
         salu('s_sub_u32', 's92', 's92', 's96'), salu('s_sub_u32', 's94', 's94', 's98'),
         salu('s_mov_b32', 's12', 's72'), salu('s_mov_b32', 's13', 's73'), salu('s_mov_b32', 's14', 256), salu('s_mov_b32', 's15', 0x20000),
         salu('s_lshl_b32', 's54', 's2', 3), valu('v_mov_b32', V(8), 's92'), valu('v_mov_b32', V(9), 's94'), valu('v_mov_b32', V(1), 0),
         buf_store(V(8, 2), V(1), 's[12:15]', 's54', 0), label('L_dbg_skip')]
    return c


def kslot(t): return t % 4
def vslot(t): return 4 + t % 4
def wslot0(k): return 8 + k % 6
XS = [4, 5, 6, 16, 17, 18, 19, 14, 15]
XBASE = 14 * 8192
def xslot(M, qt): return XS[(M % 3) * 3 + qt]
S_SET = 's3'


def common_prologue(e, nwg=256):
    e(raw(f's_cmp_ge_u32 s2, {nwg}'))
    e(raw('s_cbranch_scc0 L_go'))
    e(raw('s_endpgm'))
    e(label('L_go'))
    e(raw('s_load_dwordx2 s[4:5], s[0:1], 80'))
    if OPT.get('dbg'): e(raw('s_memtime s[96:97]')); e(raw('s_memrealtime s[98:99]'))
    e(raw('s_load_dwordx2 s[6:7], s[0:1], 96'))
    e(raw('s_load_dwordx2 s[72:73], s[0:1], 88'))
    e(salu('s_and_b32', 's32', 's2', 7))
    e(salu('s_lshr_b32', 's33', 's2', 3))
    if OPT.get('map', 0) == 1:
        e(salu('s_lshr_b32', 's34', 's32', 2))
        e(salu('s_lshl_b32', 's34', 's34', 4))
        e(salu('s_lshr_b32', 's35', 's33', 1))
        e(salu('s_add_u32', 's34', 's34', 's35'))
        e(salu('s_and_b32', 's35', 's32', 3))
        e(salu('s_lshl_b32', 's35', 's35', 1))
        e(salu('s_and_b32', 's33', 's33', 1))
        e(salu('s_add_u32', 's35', 's35', 's33'))
    elif OPT.get('map', 0) == 2:
        e(salu('s_lshr_b32', 's34', 's32', 1))
        e(salu('s_lshl_b32', 's34', 's34', 3))
        e(salu('s_lshr_b32', 's35', 's33', 2))
        e(salu('s_add_u32', 's34', 's34', 's35'))
        e(salu('s_and_b32', 's35', 's32', 1))
        e(salu('s_lshl_b32', 's35', 's35', 2))
        e(salu('s_and_b32', 's33', 's33', 3))
        e(salu('s_add_u32', 's35', 's35', 's33'))
    else:
        e(salu('s_lshl_b32', 's34', 's32', 2))
        e(salu('s_lshr_b32', 's35', 's33', 3))
        e(salu('s_add_u32', 's34', 's34', 's35'))
        e(salu('s_and_b32', 's35', 's33', 7))
    e(salu('s_lshr_b32', 's36', 's34', 4))
    e(salu('s_and_b32', 's37', 's34', 15))
    e(salu('s_lshl_b32', S_ID, 's34', 3))
    e(salu('s_add_u32', S_ID, S_ID, 's35'))
    e(salu('s_mul_i32', 's38', 's36', 40))
    e(salu('s_add_u32', 's52', 's0', 's38'))
    e(salu('s_addc_u32', 's53', 's1', 0))
    e(raw('s_load_dwordx4 s[40:43], s[52:53], 0'))
    e(raw('s_load_dwordx4 s[44:47], s[52:53], 16'))
    e(raw('s_load_dwordx2 s[48:49], s[52:53], 32'))
    e(valu('v_lshrrev_b32', V(1), 6, V(0)))
    e(valu('v_readfirstlane_b32', S_WAVE, V(1)))
    e(valu('v_and_b32', V(0), 63, V(0)))
    e(salu('s_and_b32', S_W, S_WAVE, 3))
    e(salu('s_lshr_b32', S_SET, S_WAVE, 2))
    e(salu('s_lshl_b32', 's58', S_SET, 9))
    e(salu('s_add_u32', 's58', 's58', 65536))
    e(salu('s_lshl_b32', 's62', S_W, 11))
    e(salu('s_lshl_b32', 's63', S_SET, 10))
    e(salu('s_add_u32', 's63', 's63', 's62'))
    e(salu('s_add_u32', 's62', 's62', 's58'))
    q_dma_addrs(e)
    e(raw('s_waitcnt lgkmcnt(0)'))
    e(salu('s_lshl_b32', 's54', 's35', 10))
    e(salu('s_add_u32', 's16', 's46', 's54')); e(salu('s_addc_u32', 's17', 's47', 0))
    e(salu('s_sub_u32', 's18', 576 * 8192, 's54')); e(salu('s_mov_b32', 's19', 0x20000))
    e(salu('s_mul_i32', 's54', 's37', 221184))
    e(salu('s_add_u32', 's20', 's40', 's54')); e(salu('s_addc_u32', 's21', 's41', 0))
    e(salu('s_mov_b32', 's22', 221184)); e(salu('s_mov_b32', 's23', 0x20000))
    for x in wq0_dma(0) + x0_dma(0) + wq0_dma(1) + wq0_dma(2) + x0_dma(1) + wq0_dma(3) + wq0_dma(4) + x0_dma(2) + wq0_dma(5): e(x)
    e(salu('s_lshl_b32', 's54', 's37', 3))
    e(salu('s_add_u32', 's54', 's54', 's35'))
    e(salu('s_lshl_b32', 's54', 's54', 19))
    e(salu('s_add_u32', 's8', 's42', 's54')); e(salu('s_addc_u32', 's9', 's43', 0))
    e(salu('s_mov_b32', 's10', 524288)); e(salu('s_mov_b32', 's11', 0x20000))
    e(salu('s_add_u32', 's12', 's44', 's54')); e(salu('s_addc_u32', 's13', 's45', 0))
    e(salu('s_mov_b32', 's14', 524288)); e(salu('s_mov_b32', 's15', 0x20000))
    e(salu('s_mov_b32', 's24', 's6')); e(salu('s_mov_b32', 's25', 's7'))
    e(salu('s_mov_b32', 's26', PART_WS_OFF + 256 * 221184)); e(salu('s_mov_b32', 's27', 0x20000))
    e(salu('s_mul_i32', 's54', 's35', 589824))
    e(salu('s_add_u32', 's28', 's48', 's54')); e(salu('s_addc_u32', 's29', 's49', 0))
    e(salu('s_mov_b32', 's30', 589824)); e(salu('s_mov_b32', 's31', 0x20000))
    if OPT.get('cpf', 1):
        e(raw('s_getpc_b64 s[52:53]'))
        e(label('L_cpf'))
        e(salu('s_lshr_b32', 's54', 's2', 3))
        e(salu('s_lshl_b32', 's54', 's54', 3))
        e(salu('s_add_u32', 's54', 's54', S_WAVE))
        e(salu('s_lshl_b32', 's54', 's54', 9))
        e(valu('v_and_b32', V(20), 3, V(0)))
        e(valu('v_lshlrev_b32', V(20), 7, V(20)))
        e(valu('v_add_u32', V(20), 's54', V(20)))
        e(valu('v_min_u32', V(20), 'L_k1_end-L_cpf-8', V(20)))
        e(Ins('global_load_dword v21, v20, s[52:53]', 'vm', rd=[20], wr=[21]))
    for x in stamp_init() + stamp(0): e(x)


CODE_BYTES = 90000


def wq0_dma(k):
    return [salu('s_add_u32', 'm0', 's63', wslot0(k) * 8192), salu('s_mov_b32', 's66', k * 262144), dma(A.vWd, SRD_WQ, 's66', 0, tag=('W0', k))]


def x0_dma(M):
    o = []
    for qt in range(3):
        o += [salu('s_add_u32', 'm0', 's63', xslot(M, qt) * 8192), salu('s_mov_b32', 's66', M * 128 + qt * 18432),
              dma(A.vXd, SRD_X, 's66', 0, tag=('X0', M))]
    return o


def kv0_dma(kind, t):
    if kind == 'K':
        assert kslot(t + 1) == kslot(t) + 1
        return [salu('s_add_u32', 'm0', 's68', kslot(t) * 8192), salu('s_add_u32', 's66', 's70', t * 8192),
                dma(A.vKd, SRD_K, 's66', 0, tag=('K0', t), pol='nt'), dma(A.vKd, SRD_K, 's66', 1024, tag=('K0', t), pol='nt')]
    assert vslot(t + 1) == vslot(t) + 1
    return [salu('s_add_u32', 'm0', 's69', vslot(t) * 8192), salu('s_add_u32', 's66', 's70', t * 8192),
            dma(A.vVd, SRD_V, 's66', 0, tag=('V0', t), pol='nt'), dma(A.vVd, SRD_V, 's66', 2048, tag=('V0', t), pol='nt')]


def q_dma_addrs(e):
    t0, t1 = A.T0, A.T1
    e(salu('s_and_b32', 's54', S_W, 1))
    e(valu('v_and_b32', t0, 3, V(0)))
    e(valu('v_xor_b32', t0, 's54', t0))
    e(valu('v_lshrrev_b32', t1, 4, V(0)))
    e(valu('v_lshl_add_u32', t0, t1, 2, t0))
    e(valu('v_lshlrev_b32', t0, 4, t0))
    e(valu('v_bfe_u32', t1, V(0), 2, 2))
    e(valu('v_lshl_add_u32', t0, t1, 13, t0))
    e(salu('s_lshl_b32', 's54', S_W, 16))
    e(salu('s_lshl_b32', 's55', S_SET, 15))
    e(salu('s_add_u32', 's54', 's54', 's55'))
    e(valu('v_add_u32', A.vWd, 's54', t0))
    e(salu('s_lshl_b32', 's54', S_SET, 2))
    e(valu('v_lshrrev_b32', t1, 4, V(0)))
    e(valu('v_add_u32', t1, 's54', t1))
    e(valu('v_and_b32', t0, 7, V(0)))
    e(valu('v_xor_b32', t0, t0, t1))
    e(valu('v_lshrrev_b32', t1, 3, V(0)))
    e(valu('v_mul_u32_u24', t1, 1152, t1))
    e(valu('v_lshl_add_u32', t0, t0, 4, t1))
    e(salu('s_mul_i32', 's54', S_W, 48 * 1152))
    e(salu('s_mul_i32', 's55', S_SET, 8 * 1152))
    e(salu('s_add_u32', 's54', 's54', 's55'))
    e(valu('v_add_u32', A.vXd, 's54', t0))


def q_rd_addrs(e):
    t0, t1 = A.T0, A.T1
    e(valu('v_and_b32', t0, 3, V(0)))
    e(valu('v_bfe_u32', t1, V(0), 4, 1))
    e(valu('v_xor_b32', t0, t0, t1))
    e(valu('v_bfe_u32', t1, V(0), 2, 2))
    e(valu('v_lshl_add_u32', t0, t1, 2, t0))
    e(valu('v_lshrrev_b32', t1, 4, V(0)))
    e(valu('v_lshl_add_u32', t0, t1, 7, t0))
    e(valu('v_lshlrev_b32', t0, 4, t0))
    e(valu('v_and_b32', t1, 1, V(0)))
    e(valu('v_lshl_add_u32', t0, t1, 3, t0))
    e(valu('v_add_u32', A.vW0, 's58', t0))
    e(valu('v_xor_b32', A.vW1, 8, A.vW0))
    e(valu('v_lshrrev_b32', t0, 4, V(0)))
    e(valu('v_bfe_u32', t1, V(0), 1, 3))
    e(valu('v_xor_b32', t0, t0, t1))
    e(valu('v_lshlrev_b32', t0, 4, t0))
    e(valu('v_and_b32', t1, 15, V(0)))
    e(valu('v_lshl_add_u32', t0, t1, 7, t0))
    e(salu('s_lshl_b32', 's54', S_W, 11))
    e(salu('s_add_u32', 's54', 's54', XBASE))
    e(valu('v_add_u32', A.vXr0, 's54', t0))
    e(valu('v_xor_b32', A.vXr1, 64, A.vXr0))
    e(valu('v_subrev_u32', A.vXr2, XBASE, A.vXr0))
    e(valu('v_subrev_u32', A.vXr3, XBASE, A.vXr1))


def q0_wread(n):
    if n >= 72: return []
    k, f = divmod(n, 4)
    i, t = f >> 1, f & 1
    buf = A.F + (n % 4) * 4
    va = A.vW0 if t == 0 else A.vW1
    off = (wslot0(k) - 8) * 8192 + i * 256
    return [ds_read('ds_read_b64_tr_b16', V(buf, 2), va, off, tag=('pf0', n)), ds_read('ds_read_b64_tr_b16', V(buf + 2, 2), va, off + 1024, tag=('pf0', n))]


def q0_xread(k):
    o = []
    for qt in range(3):
        a = xslot(k // 2, qt) * 8192
        va, off = ((A.vXr1 if k % 2 else A.vXr0), a - XBASE) if a >= XBASE else ((A.vXr3 if k % 2 else A.vXr2), a)
        o.append(ds_read('ds_read_b128', V(A.xf(k, qt), 4), va, off, tag=('xf0', k)))
    return o


def q_conv(i):
    ops = []
    for qt in range(3):
        tm = A.P[0] + qt * 4
        for t in range(2):
            a = A.o(qt, 2 * i + t)
            for r in range(4): ops.append(valu('v_mul_f32', V(a + r), 's59', V(a + r)))
            ops.append(valu('v_cvt_pk_bf16_f32', V(tm + 2 * t), V(a), V(a + 1)))
            ops.append(valu('v_cvt_pk_bf16_f32', V(tm + 2 * t + 1), V(a + 2), V(a + 3)))
        q = A.q(qt, i)
        for k in range(2):
            ops.append(valu('v_cndmask_b32', V(q + k), V(tm + k), V(tm + 2 + k), 's[64:65]'))
            ops.append(valu('v_cndmask_b32', V(q + 2 + k), V(tm + 2 + k), V(tm + k), 's[64:65]'))
    return ops


def q0_phase():
    c = []; e = c.append
    q_rd_addrs(e)
    kv_dma_addrs(e, A.vKd, A.vVd, A.T0, A.T1)
    e(salu('s_lshl_b32', 's70', S_SET, 13))
    e(salu('s_add_u32', 's68', 's56', 's70'))
    e(salu('s_add_u32', 's69', 's57', 's70'))
    e(salu('s_mov_b32', 's59', CSCALE))
    e(salu('s_mov_b32', 's64', 0xffff0000)); e(salu('s_mov_b32', 's65', 0xffff0000))
    e(wait(vm=[('W0', 0), ('X0', 0)]))
    e(barrier())
    c += stamp(1)
    c += q0_wread(0) + q0_wread(1) + q0_wread(2) + q0_xread(0)
    gaps = [[] for _ in range(72 * 3 + 1)]

    def chain(ops, lo, hi):
        for a, o in enumerate(ops): gaps[min(lo + (a * (hi - lo + 1)) // len(ops), 216)].append(o)
    wn = 6
    kvq = {OPT.get('kv0', 8): kv0_dma('K', 0), OPT.get('kv1', 14): kv0_dma('V', 0), OPT.get('kv2', 12): kv0_dma('K', 2), OPT.get('kv3', 16): kv0_dma('V', 2)}
    for k in range(18):
        g0 = (4 * k + 1) * 3
        ops = []
        if k < 17:
            for j, x in enumerate(q0_xread(k + 1)): gaps[g0 + 2 * j].append(x)
        while wn < 18 and wn - 6 <= k - 1:
            ops += wq0_dma(wn); wn += 1
        if k % 2 == 1 and (k - 1) // 2 + 3 <= 8: ops += x0_dma((k - 1) // 2 + 3)
        ops += kvq.get(k, [])
        if ops: chain(ops, g0, g0 + 10)
    for n in range(72):
        k, f = divmod(n, 4)
        if f == 1 and k < 17:
            c.append(wait(vm=[('W0', k + 1), ('X0', (k + 1) // 2)]))
            c.append(barrier())
        c.append(wait(lg=[('pf0', n)] + ([('xf0', k)] if f == 0 else [])))
        rd = q0_wread(n + 3)
        for qt in range(3):
            d = A.o(qt, f)
            c.append(mfma(d, A.F + (n % 4) * 4, A.xf(k, qt), d if k else None))
            if qt < len(rd): c.append(rd[qt])
            c += gaps[n * 3 + qt]
    c += stamp(2)
    c += q_conv(0) + q_conv(1)
    return c


QT_BASE = 8 * 8192


def kv_dma_addrs(e, vK, vV, t0, t1):
    e(salu('s_and_b32', 's54', S_W, 1))
    e(salu('s_lshl_b32', 's55', 's54', 1))
    e(valu('v_and_b32', t0, 3, V(0)))
    e(valu('v_xor_b32', t0, 's55', t0))
    e(valu('v_lshrrev_b32', t1, 4, V(0)))
    e(valu('v_lshl_add_u32', t0, t1, 2, t0))
    e(valu('v_lshlrev_b32', t0, 4, t0))
    e(valu('v_bfe_u32', t1, V(0), 2, 2))
    e(valu('v_lshl_add_u32', t0, t1, 8, t0))
    e(salu('s_lshl_b32', 's56', S_W, 11))
    e(salu('s_lshr_b32', 's57', S_W, 1))
    e(salu('s_lshl_b32', 's57', 's57', 2))
    e(salu('s_add_u32', 's57', 's57', 's54'))
    e(salu('s_lshl_b32', 's57', 's57', 10))
    e(valu('v_add_u32', vK, 's56', t0))
    e(valu('v_add_u32', vV, 's57', t0))


def k_dma(vK, t):
    if OPT.get('nokv') and t >= 4: return [Ins('s_nop 0', 'dma', tag=('K', t))]
    return [salu('s_add_u32', 'm0', 's56', KV_BASE + kslot(t) * 8192), salu('s_mov_b32', 's58', t * 8192),
            dma(vK, SRD_K, 's58', 0, tag=('K', t), pol='nt'), dma(vK, SRD_K, 's58', 1024, tag=('K', t), pol='nt')]


def v_dma(vV, t):
    if OPT.get('nokv') and t >= 4: return [Ins('s_nop 0', 'dma', tag=('V', t))]
    return [salu('s_add_u32', 'm0', 's57', KV_BASE + vslot(t) * 8192), salu('s_mov_b32', 's59', t * 8192),
            dma(vV, SRD_V, 's59', 0, tag=('V', t), pol='nt'), dma(vV, SRD_V, 's59', 2048, tag=('V', t), pol='nt')]


class A:
    vK, vV0, vV1, vH, vO = V(2), V(3), V(4), V(5), V(6)
    T0, T1 = V(1), V(7)
    E = 8
    TA, TB = 16, 17
    TS = 18
    L = 21
    LI = 24
    MX = 27
    NM = 28
    F = 40
    S = (56, 68)
    P = (80, 92)
    Q = 104
    O = 152
    X = 248
    vWd, vXd, vW0, vW1, vXr0, vXr1, vKd, vVd = V(8), V(9), V(10), V(11), V(12), V(13), V(14), V(15)
    vXr2, vXr3 = V(16), V(17)
    XF = 56
    @staticmethod
    def xf(k, qt): return A.XF + ((k % 2) * 3 + qt) * 4

    @staticmethod
    def q(qt, ks): return A.Q + (qt * 4 + ks) * 4
    @staticmethod
    def o(qt, dt): return A.O + (qt * 8 + dt) * 4
    @staticmethod
    def s(kt, qt): return A.S[kt] + qt * 4
    @staticmethod
    def p(par, qt): return A.P[par] + qt * 4
    @staticmethod
    def nm(qt): return A.NM + qt * 4


rare_variants = {}
rare_sites = []


def sm_groups(kt, par, site, variant, first, pending):
    g = []
    pend = list(pending)

    def E(q, i): return V(A.E + (q % 2) * 4 + i)
    def ex(q, i): return valu('v_exp_f32', E(q, i), V(A.s(kt, q) + i))
    def ad1(q): return valu('v_add_f32', V(A.TA), E(q, 0), E(q, 1))
    def cv1(q): return valu('v_cvt_pk_bf16_f32', V(A.p(par, q) + 2 * kt), E(q, 0), E(q, 1))
    def ad2(q): return valu('v_add_f32', V(A.TB), E(q, 2), E(q, 3))
    def cv2(q): return valu('v_cvt_pk_bf16_f32', V(A.p(par, q) + 2 * kt + 1), E(q, 2), E(q, 3))
    def ts(q): return valu('v_add_f32', V(A.TS + q), V(A.TA), V(A.TB))
    pend = pend + [None] * 3
    g = [[ex(0, 0)], [ex(0, 1)], [ex(0, 2)], [pend[0], pend[1]], [ex(0, 3)], [ad1(0), cv1(0)], [ex(1, 0)], [ad2(0), cv2(0)],
         [ex(1, 1)], [pend[2], ts(0)], [ex(1, 2)], [ad1(1)], [ex(1, 3)], [cv1(1)], [ex(2, 0)], [ad2(1), cv2(1)],
         [ex(2, 1)], [ts(1)], [ex(2, 2)], [ad1(2), cv1(2)], [ex(2, 3)], [ad2(2), ts(2)]]
    g = [[x for x in y if x is not None] for y in g]
    if variant is not None:
        g.append([valu('v_max3_f32', V(A.MX), V(A.TS), V(A.TS + 1), V(A.TS + 2)), valu('v_cmp_lt_f32', 'vcc', 's60', V(A.MX))])
        g.append([cv2(2), Ins(f's_cbranch_vccnz TR_{site}', 'branch', srd=['vcc']), label(f'RET_{site}')])
        if variant not in rare_variants:
            rare_variants[variant] = f'RARE_{len(rare_variants)}'
        if (site, rare_variants[variant]) not in rare_sites:
            rare_sites.append((site, rare_variants[variant]))
    else:
        g.append([cv2(2)])
        g.append([])
    if first:
        left = [valu('v_mov_b32', V(A.L + q), V(A.TS + q)) for q in range(3)]
    else:
        left = [valu('v_add_f32', V(A.L + q), V(A.L + q), V(A.TS + q)) for q in range(3)]
    g = [x for x in g]
    assert len(g) == 24
    return g, left


def xlane(op, r, tmp):
    return [valu('v_mov_b32', tmp, r), valu('v_permlane32_swap_b32', r, tmp), valu(op, r, r, tmp),
            valu('v_mov_b32', tmp, r), valu('v_permlane16_swap_b32', r, tmp), valu(op, r, r, tmp)]


def init_ops():
    ops = []
    for q in range(3):
        m = V(A.nm(q)); t = V(A.nm(q) + 1); s = A.s(0, q)
        ops.append(valu('v_max3_f32', m, V(s), V(s + 1), V(s + 2)))
        ops.append(valu('v_max_f32', m, m, V(s + 3)))
    xl = [xlane('v_max_f32', V(A.nm(q)), V(A.nm(q) + 1)) for q in range(3)]
    for k in range(6):
        for q in range(3):
            ops.append(xl[q][k])
    for q in range(3):
        ops.append(valu('v_ceil_f32', V(A.nm(q)), V(A.nm(q))))
    for q in range(3):
        ops.append(valu('v_sub_f32', V(A.nm(q)), 0, V(A.nm(q))))
    for q in range(3):
        s = A.s(0, q)
        for i in range(4):
            ops.append(valu('v_add_f32', V(s + i), V(A.nm(q)), V(s + i)))
    for q in range(3):
        for i in range(1, 4):
            ops.append(valu('v_mov_b32', V(A.nm(q) + i), V(A.nm(q))))
    return ops


def init_sb_ops():
    ops = []
    for q in range(3):
        s = A.s(1, q)
        for i in range(4):
            ops.append(valu('v_add_f32', V(s + i), V(A.nm(q)), V(s + i)))
    return ops


def linv_ops():
    ops = []
    for q in range(3):
        ops.append(valu('v_mov_b32', V(A.LI + q), V(A.L + q)))
    xl = [xlane('v_add_f32', V(A.LI + q), V(A.X + q)) for q in range(3)]
    for k in range(6):
        for q in range(3):
            ops.append(xl[q][k])
    for q in range(3):
        ops.append(valu('v_rcp_f32', V(A.LI + q), V(A.LI + q)))
    return ops


def epilogue_ops(sink, dst=None):
    ops = []
    n = 0
    for i in range(4):
        for qt in range(3):
            buf = A.X + (n % 2) * 4 if dst is None else dst(qt, i)
            n += 1
            for half in range(2):
                o = A.o(qt, 2 * i + half)
                for r in range(4):
                    ops.append(valu('v_mul_f32', V(o + r), V(A.LI + qt), V(o + r)))
                ops.append(valu('v_cvt_pk_bf16_f32', V(buf + 2 * half), V(o), V(o + 1)))
                ops.append(valu('v_cvt_pk_bf16_f32', V(buf + 2 * half + 1), V(o + 2), V(o + 3)))
            ops.extend(sink(qt, i, V(buf, 4)))
    return ops


def rare_code(variant, lab):
    kt, par, do_o, do_l, presc, adj = variant
    c = [label(lab), nop(16)]
    n = V(A.TA); f = V(A.TB); t = V(A.MX)
    for q in range(3):
        s = A.s(kt, q)
        c.append(valu('v_max3_f32', n, V(s), V(s + 1), V(s + 2)))
        c.append(valu('v_max_f32', n, n, V(s + 3)))
        c.extend(xlane('v_max_f32', n, t))
        c.append(valu('v_ceil_f32', n, n))
        c.append(valu('v_max_f32', n, 0, n))
        c.append(valu('v_sub_f32', f, 0, n))
        c.append(valu('v_exp_f32', f, f))
        for i in range(4):
            c.append(valu('v_sub_f32', V(s + i), V(s + i), n))
            if adj:
                so = A.s(1 - kt, q)
                c.append(valu('v_sub_f32', V(so + i), V(so + i), n))
            c.append(valu('v_sub_f32', V(A.nm(q) + i), V(A.nm(q) + i), n))
        if do_l:
            c.append(valu('v_mul_f32', V(A.L + q), f, V(A.L + q)))
        if do_o:
            for r in range(32):
                c.append(valu('v_mul_f32', V(A.o(q, 0) + r), f, V(A.o(q, 0) + r)))
        for (pp, off) in presc:
            r = V(A.p(pp, q) + off)
            lo, hi = V(A.E), V(A.E + 1)
            c.append(valu('v_lshlrev_b32', lo, 16, r))
            c.append(valu('v_and_b32', hi, 0xffff0000, r))
            c.append(valu('v_mul_f32', lo, f, lo))
            c.append(valu('v_mul_f32', hi, f, hi))
            c.append(valu('v_cvt_pk_bf16_f32', r, lo, hi))
        for i in range(4):
            c.append(valu('v_exp_f32', V(A.E + i), V(s + i)))
        c.append(valu('v_cvt_pk_bf16_f32', V(A.p(par, q) + 2 * kt), V(A.E), V(A.E + 1)))
        c.append(valu('v_cvt_pk_bf16_f32', V(A.p(par, q) + 2 * kt + 1), V(A.E + 2), V(A.E + 3)))
        c.append(valu('v_add_f32', V(A.E), V(A.E), V(A.E + 1)))
        c.append(valu('v_add_f32', V(A.E + 2), V(A.E + 2), V(A.E + 3)))
        c.append(valu('v_add_f32', V(A.TS + q), V(A.E), V(A.E + 2)))
    c.append(valu('v_exp_f32', V(A.E), V(A.s(1 - kt, 0))))
    c.append(nop(4))
    c.append(raw('s_setpc_b64 s[62:63]', 'branch'))
    return c


class AGen:
    def __init__(self, osink):
        self.pendL = []
        self.osink = osink

    @staticmethod
    def frag(nu):
        t, j = nu // 16 - 1, nu % 16
        if j % 2 == 0:
            return ('K', t + 1, j // 8, (j // 2) % 4) if t + 1 <= 63 else None
        tile, dt = (t - 1, 4 + (j - 1) // 2) if j < 8 else (t, (j - 9) // 2)
        return ('V', tile, dt, 0) if 0 <= tile <= 63 else None

    def read(self, nu):
        f = self.frag(nu)
        if f is None:
            return []
        kind, tile, a, b = f
        buf = A.F + (nu % 4) * 4
        if kind == 'K':
            return [ds_read('ds_read_b128', V(buf, 4), A.vK, KV_BASE + kslot(tile) * 8192 + a * 4096 + b * 256, tag=('f', nu))]
        va = A.vV0 if a % 2 == 0 else A.vV1
        off = KV_BASE + vslot(tile) * 8192 + (a >> 1) * 256
        return [ds_read('ds_read_b64_tr_b16', V(buf, 2), va, off, tag=('f', nu)),
                ds_read('ds_read_b64_tr_b16', V(buf + 2, 2), va, off + 4096, tag=('f', nu))]

    def iteration(self, t, more=None, bar=None):
        T = t + 1
        j16 = t % 16
        nu0 = 16 * (t + 1)
        has_qk = T <= 63
        newhead = has_qk and T % 16 == 0
        def loc(u):
            return f'p{u + 1}' if u <= 0 else (f't{u}' if u >= 62 else f'{u % 16}')
        pos = [dict(pre=[], m=None, w=[], rd=[], post=[]) for _ in range(48)]
        for m in range(48):
            j, qt = divmod(m, 3)
            f = self.frag(nu0 + j)
            if f is None:
                continue
            kind, tile, a, b = f
            fb = A.F + ((nu0 + j) % 4) * 4
            tags = [('f', nu0 + j)]
            if kind == 'K':
                d = A.s(a, qt)
                pos[m]['m'] = mfma(d, fb, A.q(qt, b), d if b else (None if newhead else A.nm(qt)))
                if newhead and t >= 0 and a == 0: tags.append(('q', T, b))
            else:
                d = A.o(qt, a)
                pos[m]['m'] = mfma(d, fb, A.p(tile % 2, qt), d if tile % 16 else None)
            if qt == 0:
                if m > 0 and pos[m - 1]['m'] is not None: pos[m - 1]['w'].append(wait(lg=tags))
                else: pos[m]['pre'].append(wait(lg=tags))
        for i in range(8):
            v = self.read(nu0 + 2 * i + 3)
            if v: pos[6 * i + 1]['rd'].append(v[1])
            pos[6 * i + 3]['rd'] += self.read(nu0 + 2 * i + 4)
            v = self.read(nu0 + 2 * i + 5)
            if v: pos[6 * i + 5]['rd'].append(v[0])
        if bar: pos[OPT.get('barpos', 6)]['w'] = list(bar) + pos[OPT.get('barpos', 6)]['w']
        extra = [[] for _ in range(48)]

        def spread(ops, lo, hi):
            n = len(ops)
            for k, o in enumerate(ops):
                extra[lo + (k * (hi - lo + 1)) // n].append(o)
        SH = 2

        def place(g, base):
            for k, ops in enumerate(g):
                gp = base + k - SH
                if k == 23 and ops and ops[-1].kind == 'label':
                    pos[base + 23]['br'] = ops[-2:]
                    ops = ops[:-2]
                if gp >= 0: pos[gp]['post'].extend(ops)
        if 0 <= t <= 63:
            par = t % 2
            var = (1, par, t % 16 != 0, True, ((par, 0), (par, 1)), t % 16 != 15)
            g1, self.pendL = sm_groups(1, par, f'Y{loc(t)}', var, False, self.pendL)
            place(g1, 0)
        early = [[valu('v_exp_f32', V(A.E + i), V(A.s(1, 0) + i))] for i in range(SH)] if has_qk else []
        par = T % 2
        if newhead:
            pre = list(self.pendL)
            if t >= 0: pre += linv_ops()
            spread(pre + init_ops(), 24, 35)
            g0, self.pendL = sm_groups(0, par, None, None, True, [])
            for k, g in enumerate(g0): extra[36 + k // 2].extend(g)
            extra[47].extend(init_sb_ops())
            for x in early: extra[47].extend(x)
        elif has_qk:
            var = (0, par, True, True, tuple((t % 2, k) for k in range(4)), True)
            g0, self.pendL = sm_groups(0, par, f'X{loc(t)}', var, False, self.pendL)
            place(g0, 24)
            for k, x in enumerate(early): pos[48 - SH + k]['post'].extend(x)
        elif t == 63:
            spread(self.pendL + linv_ops(), 24, 40); self.pendL = []
        if j16 == 0 and 0 < t < 64:
            eo = epilogue_ops(self.osink(t // 16 - 1))
            half = len(eo) // 2
            spread(eo[:half], 0, 25)
            spread(eo[half:], 27, 45)
        if more: spread(more, 3, 23)
        if has_qk and T % 16 == 15:
            for ks in range(4):
                for qt in range(3):
                    pos[27 + 6 * ks + qt]['rd'].append(ds_read('ds_read_b128', V(A.q(qt, ks), 4), A.vH, (qt * 4 + ks) * 1024, tag=('q', T + 1, ks)))
        out = []
        for m in range(48):
            out.extend(pos[m]['pre'])
            if pos[m]['m'] is not None:
                out.append(pos[m]['m'])
            out += pos[m]['w'] + pos[m]['rd']
            if 'br' in pos[m]:
                out += extra[m] + pos[m]['br'] + pos[m]['post']
            else:
                out += pos[m]['post'] + extra[m]
        return out


def a_setup(e):
    t0, t1 = A.T0, A.T1
    e(valu('v_lshrrev_b32', t0, 4, V(0)))
    e(valu('v_bfe_u32', t1, V(0), 3, 1))
    e(valu('v_lshlrev_b32', t1, 1, t1))
    e(valu('v_xor_b32', t0, t0, t1))
    e(valu('v_and_b32', t1, 3, V(0)))
    e(valu('v_lshl_add_u32', t0, t1, 2, t0))
    e(valu('v_bfe_u32', t1, V(0), 2, 2))
    e(valu('v_lshl_add_u32', t0, t1, 6, t0))
    e(valu('v_lshlrev_b32', A.vK, 4, t0))
    e(valu('v_bfe_u32', t0, V(0), 1, 1))
    e(valu('v_bfe_u32', t1, V(0), 4, 1))
    e(valu('v_lshl_add_u32', t0, t1, 1, t0))
    e(valu('v_bfe_u32', t1, V(0), 2, 2))
    e(valu('v_lshl_add_u32', t0, t1, 2, t0))
    e(valu('v_lshrrev_b32', t1, 4, V(0)))
    e(valu('v_lshl_add_u32', t0, t1, 6, t0))
    e(valu('v_lshlrev_b32', t0, 4, t0))
    e(valu('v_and_b32', t1, 1, V(0)))
    e(valu('v_lshl_add_u32', A.vV0, t1, 3, t0))
    e(valu('v_xor_b32', A.vV1, 32, A.vV0))
    e(salu('s_mul_i32', 's54', S_W, 12288))
    e(salu('s_add_u32', 's54', 's54', H_BASE))
    e(valu('v_lshlrev_b32', t0, 4, V(0)))
    e(valu('v_add_u32', A.vH, 's54', t0))
    e(valu('v_mov_b32', A.vO, t0))
    e(salu('s_mov_b32', 's60', THR))


class P:
    vKd, vVd, vWd, vX, vW0, vW1, vH0, vH1, vBw, vBr = V(2), V(3), V(4), V(5), V(6), V(7), V(8), V(9), V(10), V(11)
    T0, T1 = V(1), V(12)
    PK = 12
    F = 16
    ACC = 32
    XF = 128
    X = 152
    vX1 = V(200)
    vBr1 = V(201)
    vBw2 = V(202)

    @staticmethod
    def acc(qt, i, t): return P.ACC + ((qt * 4 + i) * 2 + t) * 4
    @staticmethod
    def x(M, qt, j): return P.X + ((M % 2) * 6 + qt * 2 + j) * 4
    @staticmethod
    def xf(k, qt): return P.XF + ((k % 2) * 3 + qt) * 4


def p_setup(e):
    t0, t1 = P.T0, P.T1
    kv_dma_addrs(e, P.vKd, P.vVd, t0, t1)
    e(salu('s_and_b32', 's54', S_W, 1))
    e(valu('v_and_b32', t0, 3, V(0)))
    e(valu('v_xor_b32', t0, 's54', t0))
    e(valu('v_lshrrev_b32', t1, 4, V(0)))
    e(valu('v_lshl_add_u32', t0, t1, 2, t0))
    e(valu('v_lshlrev_b32', t0, 4, t0))
    e(valu('v_bfe_u32', t1, V(0), 2, 2))
    e(valu('v_lshl_add_u32', t0, t1, 13, t0))
    e(salu('s_lshl_b32', 's54', S_W, 16))
    e(valu('v_add_u32', P.vWd, 's54', t0))
    e(salu('s_and_b32', 's54', 's34', 3))
    e(salu('s_lshl_b32', 's54', 's54', 1))
    e(salu('s_add_u32', 's54', 's54', 's35'))
    if not OPT.get('rot'): e(salu('s_mov_b32', 's54', 0))
    e(salu('s_lshl_b32', 's54', 's54', 7))
    for m in range(9):
        e(salu('s_sub_u32', 's55', 's54', 1152))
        e(salu('s_cmp_ge_u32', 's54', 1152))
        e(salu('s_cselect_b32', f's{40 + m}', 's55', 's54'))
        e(salu('s_add_u32', 's54', f's{40 + m}', 128))
    e(salu('s_mul_i32', 's54', S_W, 48 * 1152))
    e(valu('v_and_b32', t0, 7, V(0)))
    e(valu('v_lshrrev_b32', t1, 3, V(0)))
    e(valu('v_mul_u32_u24', t1, 1152, t1))
    e(valu('v_lshl_add_u32', t0, t0, 4, t1))
    e(valu('v_add_u32', P.vX, 's54', t0))
    e(valu('v_xor_b32', t0, 32, P.vX))
    e(valu('v_add_u32', P.vX1, 8 * 1152, t0))


def p_setup2(e):
    t0, t1 = P.T0, P.T1
    e(salu('s_lshl_b32', 's54', S_W, 12))
    e(salu('s_add_u32', 's54', 's54', XB_BASE))
    e(valu('v_and_b32', t0, 3, V(0)))
    e(valu('v_lshrrev_b32', t1, 3, V(0)))
    e(valu('v_lshl_add_u32', t0, t1, 2, t0))
    e(valu('v_lshlrev_b32', t0, 4, t0))
    e(valu('v_bfe_u32', t1, V(0), 2, 1))
    e(valu('v_xor_b32', t1, 1, t1))
    e(valu('v_mul_u32_u24', t1, 1024 + 64, t1))
    e(valu('v_xor_b32', t0, t0, t1))
    e(valu('v_add_u32', P.vBw, 's54', t0))
    e(valu('v_and_b32', t1, 1024, t1))
    e(valu('v_add_u32', P.vBw2, P.vBw, t1))
    e(valu('v_bfe_u32', t0, V(0), 3, 1))
    e(valu('v_lshlrev_b32', t0, 1, t0))
    e(valu('v_lshrrev_b32', t1, 4, V(0)))
    e(valu('v_xor_b32', t0, t0, t1))
    e(valu('v_and_b32', t1, 15, V(0)))
    e(valu('v_lshl_add_u32', t0, t1, 2, t0))
    e(valu('v_lshlrev_b32', t0, 4, t0))
    e(valu('v_add_u32', P.vBr, 's54', t0))
    e(valu('v_xor_b32', P.vBr1, 64, P.vBr))
    e(valu('v_and_b32', t0, 3, V(0)))
    e(valu('v_bfe_u32', t1, V(0), 4, 1))
    e(valu('v_xor_b32', t0, t0, t1))
    e(valu('v_bfe_u32', t1, V(0), 2, 2))
    e(valu('v_lshl_add_u32', t0, t1, 2, t0))
    e(valu('v_lshrrev_b32', t1, 4, V(0)))
    e(valu('v_lshl_add_u32', t0, t1, 7, t0))
    e(valu('v_lshlrev_b32', t0, 4, t0))
    e(valu('v_and_b32', t1, 1, V(0)))
    e(valu('v_lshl_add_u32', t0, t1, 3, t0))
    e(valu('v_add_u32', P.vW0, WQ_BASE, t0))
    e(valu('v_xor_b32', P.vW1, 8, P.vW0))
    e(salu('s_mul_i32', 's54', S_W, 12288))
    e(salu('s_add_u32', 's54', 's54', H_BASE))
    e(valu('v_lshlrev_b32', t0, 4, V(0)))
    e(valu('v_bfe_u32', t1, V(0), 4, 1))
    e(valu('v_lshl_add_u32', t0, t1, 3, t0))
    e(valu('v_add_u32', P.vH0, 's54', t0))
    e(valu('v_xor_b32', P.vH1, 8, P.vH0))
    e(salu('s_mov_b32', 's61', CSCALE))


def wq_dma(k):
    h, j = divmod(k, 18)
    so = (j & 1) * 262144 + h * 256
    pol = OPT.get('wqpol', '')
    if OPT.get('rot') == 2 and h == 0:
        a66 = [salu('s_mov_b32', 's66', j * 262144)]
    else:
        a66 = [salu('s_lshl_b32', 's66', f's{40 + j // 2}', 12), salu('s_add_u32', 's66', 's66', so)]
    return [salu('s_add_u32', 'm0', 's56', WQ_BASE + WSLOT[k] * 8192)] + a66 + [dma(P.vWd, SRD_WQ, 's66', 0, tag=('W', k), pol=pol),
            salu('s_add_u32', 's67', 's66', 32768 - 1024), dma(P.vWd, SRD_WQ, 's67', 1024, tag=('W', k), pol=pol)]


def x_load(M, idx):
    qt, j = divmod(idx, 2)
    so = f's{40 + M % 9}'
    pre = []
    if M >= 11:
        pre.append(wait(lg=('xw', M - 2, idx)))
    if OPT.get('rot') == 2 and M < 9:
        pre.append(salu('s_mov_b32', 's64', M * 128 + qt * 18432))
        so = 's64'
    elif qt:
        pre.append(salu('s_add_u32', 's64', so, qt * 18432))
        so = 's64'
    return pre + [buf_load(V(P.x(M, qt, j), 4), P.vX1 if j else P.vX, SRD_X, so, 0, tag=('X', M, idx), pol=OPT.get('xpol', ''))]


def x_write(M, idx):
    qt, j = divmod(idx, 2)
    va, off = ((P.vBw, 0), (P.vBw, 2048), (P.vBw2, 1024))[qt]
    return [wait(vm=('X', M, idx)), ds_write('ds_write_b128', va, V(P.x(M, qt, j), 4), off + j * 512, tag=('xw', M, idx))]


def x_read_even(M, qt):
    return [ds_read('ds_read_b128', V(P.xf(0, qt), 4), P.vBr1, (1024, 3072, 3072)[qt], tag=('xf', 2 * M))]


def x_read_odd(M):
    return [ds_read('ds_read_b128', V(P.xf(1, qt), 4), P.vBr, (0, 2048, 1024)[qt], tag=('xf', 2 * M + 1)) for qt in range(3)]


def q_handoff_tile(qt, i, t, n):
    a = P.acc(qt, i, t)
    pk = P.PK + (n % 2) * 2
    ops = [valu('v_mul_f32', V(a + r), 's61', V(a + r)) for r in range(4)]
    ops.append(valu('v_cvt_pk_bf16_f32', V(pk), V(a), V(a + 1)))
    ops.append(valu('v_cvt_pk_bf16_f32', V(pk + 1), V(a + 2), V(a + 3)))
    ops.append(ds_write('ds_write_b64', P.vH0 if t == 0 else P.vH1, V(pk, 2), (qt * 4 + i) * 1024, tag='hw'))
    return ops


class G2:
    def __init__(self, name, cset, order, o, acc, F, PK, vT0, vT1, vS, slot_off, sstore):
        self.name, self.cset, self.order, self.o = name, cset, order, o
        self.ACC, self.F, self.PK, self.vT0, self.vT1, self.vS = acc, F, PK, vT0, vT1, vS
        self.slot_off = slot_off
        self.sstore = sstore
        self.fr = [(u, kb, nt) for u in range(36) for kb in range(4) for nt in range(2)]

    def acc(self, qt, nt): return self.ACC + (qt * 2 + nt) * 4

    def dma(self, u, vD):
        p, hi = divmod(u, 4)
        so = self.order[hi] * 128 * 1152 + self.cset * 576
        pol = OPT.get('wopol', '')
        return [salu('s_add_u32', 'm0', 's56', self.slot_off(u)[0]), salu('s_add_u32', 's66', f's{40 + p}', so),
                dma(vD, SRD_WO, 's66', 0, tag=('U', self.name, u), pol=pol),
                salu('s_add_u32', 's67', 's66', 18432 - 1024), dma(vD, SRD_WO, 's67', 1024, tag=('U', self.name, u), pol=pol)]

    def rd(self, n):
        if n >= len(self.fr):
            return []
        u, kb, nt = self.fr[n]
        buf = self.F + (n % 4) * 4
        va = self.vT0 if nt == 0 else self.vT1
        off = self.slot_off(u)[1] + kb * 2048
        return [ds_read('ds_read_b64_tr_b16', V(buf, 2), va, off, tag=('gf', n)),
                ds_read('ds_read_b64_tr_b16', V(buf + 2, 2), va, off + 1024, tag=('gf', n))]

    def start(self):
        return self.rd(0) + self.rd(1) + self.rd(2)

    def unit(self, u, atoms=(), otag=None):
        out = []
        q = list(atoms)
        if getattr(self, 'pend', None):
            q.insert(len(q) // 2, self.pend.pop(0))
        p, hi = divmod(u, 4)
        h = self.order[hi]
        for kb in range(4):
            for nt in range(2):
                n = u * 8 + kb * 2 + nt
                tags = [('gf', n)]
                if otag and nt == 0:
                    tags.append(otag(kb))
                out.append(wait(lg=tags))
                for qt in range(3):
                    d = self.acc(qt, nt)
                    out.append(mfma(d, self.F + (n % 4) * 4, self.o(h, qt, kb), None if (hi == 0 and kb == 0) else d))
                    if qt == 0:
                        out.extend(self.rd(n + 3))
                    elif q:
                        out.extend(q.pop(0))
        for x in q:
            out.extend(x)
        if hi == 3:
            sts = []
            for qt in range(3):
                pk = self.PKS[qt]
                for t2 in range(2):
                    a = self.acc(qt, t2)
                    out.append(valu('v_cvt_pk_bf16_f32', V(pk + 2 * t2), V(a), V(a + 1)))
                    out.append(valu('v_cvt_pk_bf16_f32', V(pk + 2 * t2 + 1), V(a + 2), V(a + 3)))
                st = [] if OPT.get('nopst') else [buf_store(V(pk, 4), self.vS, SRD_WS, self.sstore, qt * 1024, tag=('st', self.name, p), pol=OPT.get('ppol', 'sc1').replace('+', ' '))]
                if qt == 2:
                    st += [salu('s_add_u32', self.sstore, self.sstore, 3072), salu('s_sub_u32', 's55', self.sstore, 27648),
                           salu('s_cmp_ge_u32', self.sstore, 's75'), salu('s_cselect_b32', self.sstore, 's55', self.sstore)]
                sts.append(st)
            if p == 8 or OPT.get('stburst'):
                for st in sts:
                    out.extend(st)
            else:
                self.pend = sts
        return out


def g2_setup(e, cset, vT0, vT1, vS, base, t0, t1, sstore):
    e(valu('v_bfe_u32', t0, V(0), 1, 1))
    e(valu('v_bfe_u32', t1, V(0), 4, 1))
    e(valu('v_lshl_add_u32', t0, t1, 1, t0))
    e(valu('v_lshrrev_b32', t1, 2, V(0)))
    e(valu('v_lshl_add_u32', t0, t1, 2, t0))
    e(valu('v_lshlrev_b32', t0, 4, t0))
    e(valu('v_and_b32', t1, 1, V(0)))
    e(valu('v_lshl_add_u32', t0, t1, 3, t0))
    e(valu('v_add_u32', vT0, base, t0))
    e(valu('v_xor_b32', vT1, 32, vT0))
    e(valu('v_lshlrev_b32', vS, 4, V(0)))
    e(salu('s_mul_i32', sstore, S_ID, 221184))
    e(salu('s_mul_i32', 's54', S_W, 2 * 27648))
    e(salu('s_add_u32', sstore, sstore, 's54'))
    e(salu('s_add_u32', sstore, sstore, PART_WS_OFF + cset * 27648))
    e(salu('s_add_u32', 's75', sstore, 27648))
    e(salu('s_and_b32', 's54', 's34', 3 if OPT.get('prot', 1) else 0))
    e(salu('s_mul_i32', 's55', 's54', 2 * 3072))
    e(salu('s_add_u32', sstore, sstore, 's55'))
    if cset == 1:
        e(salu('s_lshl_b32', 's54', 's54', 7))
        for m in range(9):
            e(salu('s_sub_u32', 's55', 's54', 576))
            e(salu('s_cmp_ge_u32', 's54', 576))
            e(salu('s_cselect_b32', f's{40 + m}', 's55', 's54'))
            e(salu('s_add_u32', 's54', f's{40 + m}', 64))


def wo_vd(e, vD, t0, t1):
    e(valu('v_bfe_u32', t1, V(0), 4, 1))
    e(valu('v_lshlrev_b32', t1, 1, t1))
    e(valu('v_and_b32', t0, 3, V(0)))
    e(valu('v_xor_b32', t0, t0, t1))
    e(valu('v_lshlrev_b32', t0, 4, t0))
    e(valu('v_lshrrev_b32', t1, 2, V(0)))
    e(valu('v_mul_u32_u24', t1, 1152, t1))
    e(valu('v_add_u32', t0, t0, t1))
    e(salu('s_mul_i32', 's54', S_W, 32 * 1152))
    e(valu('v_add_u32', vD, 's54', t0))


A_RING = [0, 1, 2, 4, 3, 5, 6, 7]
P_PARK = {0: 208, 1: 160, 2: 112, 3: 64}
A_PARK = {3: 56, 2: A.Q, 0: 152, 1: 200}


def h_read(base, vaddr, tag):
    return [ds_read('ds_read_b128', V(base + (qt * 4 + i) * 4, 4), vaddr, (qt * 4 + i) * 1024, tag=(tag, i)) for i in range(4) for qt in range(3)]


def h_write(base, vaddr, tag):
    return [ds_write('ds_write_b128', vaddr, V(base + (qt * 4 + i) * 4, 4), (qt * 4 + i) * 1024, tag=tag) for i in range(4) for qt in range(3)]


def split_atoms(ops):
    at, cur = [], []
    for o in ops:
        cur.append(o)
        if o.kind in ('dma', 'vm'):
            at.append(cur); cur = []
    assert not cur
    return at


def p_wread(n):
    k, f = divmod(n, 8)
    i, t = f >> 1, f & 1
    buf = P.F + (n % 4) * 4
    va = P.vW0 if t == 0 else P.vW1
    off = WSLOT[k] * 8192 + i * 256
    return [ds_read('ds_read_b64_tr_b16', V(buf, 2), va, off, tag=('pf', n)),
            ds_read('ds_read_b64_tr_b16', V(buf + 2, 2), va, off + 1024, tag=('pf', n))]


def reduce_frag(ld, acc, vS, vO, s_src, s_dst, t0, t1, tagp):
    loads = []
    for hg in range(8):
        loads.append(salu('s_add_u32', 's64', s_src, hg * 221184))
        loads.append(buf_load(V(ld + 4 * hg, 4), vS, SRD_WS, 's64', 0, tag=(tagp, hg), pol='sc1'))
    comp = []
    for hg in range(8):
        comp.append(wait(vm=(tagp, hg)))
        for r in range(4):
            src = V(ld + 4 * hg + r)
            if hg == 0:
                comp.append(valu('v_lshlrev_b32', V(acc + 2 * r), 16, src))
                comp.append(valu('v_and_b32', V(acc + 2 * r + 1), 0xffff0000, src))
            else:
                comp.append(valu('v_lshlrev_b32', t0, 16, src))
                comp.append(valu('v_and_b32', t1, 0xffff0000, src))
                comp.append(valu('v_add_f32', V(acc + 2 * r), V(acc + 2 * r), t0))
                comp.append(valu('v_add_f32', V(acc + 2 * r + 1), V(acc + 2 * r + 1), t1))
    for r in range(4):
        comp.append(valu('v_cvt_pk_bf16_f32', V(ld + r), V(acc + 2 * r), V(acc + 2 * r + 1)))
    comp.append(buf_store(V(ld, 2), vO, SRD_OUT, s_dst, 0))
    comp.append(buf_store(V(ld + 2, 2), vO, SRD_OUT, s_dst, 32))
    return loads, comp


SRD_OUT, SRD_DBG = 's[8:11]', 's[12:15]'


def red_setup(e, vO, t0):
    e(salu('s_mov_b32', 's8', 's4')); e(salu('s_mov_b32', 's9', 's5'))
    e(salu('s_mov_b32', 's10', 16 * 192 * 1152 * 2)); e(salu('s_mov_b32', 's11', 0x20000))
    e(salu('s_mov_b32', 's12', 's72')); e(salu('s_mov_b32', 's13', 's73'))
    e(salu('s_mov_b32', 's14', 256)); e(salu('s_mov_b32', 's15', 0x20000))
    e(salu('s_and_b32', 's54', 's35', 3))
    e(salu('s_lshr_b32', 's55', 's35', 2))
    e(salu('s_mul_i32', 's68', 's34', 8 * 221184))
    e(salu('s_mul_i32', 's64', 's54', 2 * 27648))
    e(salu('s_add_u32', 's68', 's68', 's64'))
    e(salu('s_mul_i32', 's64', 's55', 27648))
    e(salu('s_add_u32', 's68', 's68', 's64'))
    if PART_WS_OFF: e(salu('s_add_u32', 's68', 's68', PART_WS_OFF))
    e(salu('s_mul_i32', 's69', 's37', 192 * 2304))
    e(salu('s_mul_i32', 's64', 's54', 48 * 2304))
    e(salu('s_add_u32', 's69', 's69', 's64'))
    e(salu('s_mul_i32', 's64', 's36', 1152))
    e(salu('s_add_u32', 's69', 's69', 's64'))
    e(salu('s_mul_i32', 's64', 's55', 576))
    e(salu('s_add_u32', 's69', 's69', 's64'))
    e(salu('s_lshl_b32', 's70', 's34', 2))
    e(valu('v_and_b32', vO, 15, V(0)))
    e(valu('v_mul_u32_u24', vO, 2304, vO))
    e(valu('v_lshrrev_b32', t0, 4, V(0)))
    e(valu('v_lshl_add_u32', vO, t0, 3, vO))


def signal(lab, t0, t1):
    return [salu('s_cmp_eq_u32', S_WAVE, 4), raw(f's_cbranch_scc0 {lab}', 'branch'),
            salu('s_lshl_b32', 's64', 's35', 2), salu('s_lshl_b32', 's64', 1, 's64'),
            valu('v_mov_b32', t0, 's64'), valu('v_mov_b32', t1, 0), raw('s_mov_b64 exec, 1'),
            Ins(f'buffer_atomic_add {t0}, {t1}, {SRD_DBG}, s70 offen sc1', 'salu', rd=[t0.n, t1.n]),
            raw('s_mov_b64 exec, -1'), label(lab)]


def poll(lab, level, t0, t1):
    c = [valu('v_mov_b32', t1, 0), salu('s_mov_b32', 's65', 0), label(lab),
         raw(f'buffer_load_dword {t0}, {t1}, {SRD_DBG}, s70 offen sc1'), raw('s_waitcnt vmcnt(0)'),
         valu('v_readfirstlane_b32', 's64', t0)]
    if level == 1:
        c += [nop(2), salu('s_lshr_b32', 's66', 's64', 1), salu('s_or_b32', 's64', 's64', 's66'), salu('s_and_b32', 's64', 's64', 0x11111111),
              salu('s_cmp_eq_u32', 's64', 0x11111111)]
    else:
        c += [nop(2), salu('s_cmp_eq_u32', 's64', 0x22222222)]
    c += [raw(f's_cbranch_scc1 {lab}_ok', 'branch'), salu('s_add_u32', 's65', 's65', 1), raw('s_sleep 2'),
          salu('s_cmp_lt_u32', 's65', 1 << 22), raw(f's_cbranch_scc1 {lab}', 'branch'), label(f'{lab}_ok')]
    return c


def frag_offsets(sidx):
    return [salu('s_lshl_b32', 's66', sidx, 10), salu('s_add_u32', 's66', 's66', 's68'),
            salu('s_mul_i32', 's64', sidx, 43), salu('s_lshr_b32', 's64', 's64', 7),
            salu('s_mul_i32', 's65', 's64', 3), salu('s_sub_u32', 's65', sidx, 's65'),
            salu('s_mul_i32', 's65', 's65', 16 * 2304), salu('s_lshl_b32', 's64', 's64', 6),
            salu('s_add_u32', 's67', 's69', 's65'), salu('s_add_u32', 's67', 's67', 's64')]


def build_k1():
    INK = OPT.get('inred', 1)
    head = []
    e = head.append
    common_prologue(e)
    head += q0_phase()
    e(salu('s_cmp_ge_u32', S_WAVE, 4))
    e(raw('s_cbranch_scc0 L_A', 'branch'))
    e(raw('s_branch L_P', 'branch'))

    names = [('IT', t) for t in range(-1, 64)]
    quota = {n: 0 for n in names}
    T0 = 0
    QE, QN, QC = OPT.get('qe', 9), OPT.get('qn', 9), OPT.get('qc', 9)
    def fill(ts, total, fixed):
        rest = [t for t in ts if t not in fixed]
        rem = total - sum(fixed.values())
        for i, t in enumerate(rest):
            quota[('IT', t)] = (rem * (i + 1)) // len(rest) - (rem * i) // len(rest)
        for t, v in fixed.items():
            quota[('IT', t)] = v
    if OPT.get('kal', 0):
        for t in range(0, 45): quota[('IT', t)] = 8
        for t in (2, 4, 6, 8, 10, 18, 23, 34, 39): quota[('IT', t)] = 16
    else:
        fill(range(0, 14), 150, {0: 8})
        fill(range(14, 30), 144, {15: QN, 16: QE, 28: QC, 29: QC})
        fill(range(30, 46), 138, {31: QN, 32: QE, 44: QC, 45: 0})
    start = {}
    c = 144
    for n in names:
        start[n] = c; c += quota[n]
    assert c == 576
    iv_of = {}
    for idx, n in enumerate(names):
        for fr in range(start[n], start[n] + quota[n]):
            iv_of[fr] = idx
    hdead = {1: ('IT', 13), 2: ('IT', 29), 3: ('IT', 45)}
    for hq in (1, 2): assert start[hdead[hq]] + quota[hdead[hq]] >= 144 * hq + 150
    front = {}

    NG = 576 * 3
    gaps = [[] for _ in range(NG + 1)]

    ZF = OPT.get('zone', 62)
    pref = [False] * (NG + 64)
    for n in names:
        if n[0] == 'IT':
            for g in range(start[n] * 3, start[n] * 3 + (quota[n] * 3 * ZF) // 100):
                pref[g] = True
        else:
            for g in range(start[n] * 3, (start[n] + quota[n]) * 3):
                pref[g] = True

    def chain(atoms, lo, hi, zone=True):
        n = len(atoms)
        Z = [g for g in range(lo, hi + 1) if pref[g]] if zone else []
        if len(Z) * 2 < n or not Z:
            Z = list(range(lo, hi + 1))
        for a, at in enumerate(atoms):
            g = Z[(a * (len(Z) - 1)) // max(n - 1, 1)]
            gaps[min(g, NG)].append(at)
    for k in range(18, 72):
        M = k // 2
        g0 = k * 24
        at = []
        if k % 2 == 0:
            at.append(x_read_odd(M))
            lw = [x_write(M + 1, i) for i in range(3)] if M + 1 < 36 else []
            ll = [x_load(M + 2, i) for i in range(3, 6)] if M + 2 < 36 else []
            while lw or ll:
                if ll: at.append(ll.pop(0))
                if lw: at.append(lw.pop(0))
        elif M + 1 < 36:
            ll = [x_load(M + 3, i) for i in range(3)] if M + 3 < 36 else [[], [], []]
            at += [x_write(M + 1, 3), x_read_even(M + 1, 0) + x_read_even(M + 1, 1), ll[0], x_write(M + 1, 4), ll[1], x_write(M + 1, 5),
                   x_read_even(M + 1, 2), ll[2]]
        if OPT.get('kal', 0) and any(start[n] == k * 8 and quota[n] for n in names):
            front[k * 8] = at
        else:
            chain(at, g0 + 1, g0 + 21)
        if k % 18 == 17:
            cv = []
            nn = 0
            for f in range(8):
                for qt in range(3):
                    o = q_handoff_tile(qt, f >> 1, f & 1, nn); nn += 1
                    cv += [o[:4], o[4:]]
            chain(cv, g0 + 6, g0 + 39, zone=False)
        if k in (52, 70):
            hr = [valu('v_and_b32', P.T0, ~15, P.vH0)] + h_read(P_PARK[0 if k == 52 else 1], P.T0, ('po', k))
            chain([hr[:4], hr[4:7], hr[7:10], hr[10:]], g0 + 8, g0 + 20)

    pslot = {}
    free = list(range(6))
    for u in range(36):
        if u == 13: free += [6, 7]
        pslot[u] = None
    seq = list(range(6))
    gA = G2('A', 0, [3, 2, 0, 1], lambda h, qt, i: A_PARK[h] + (qt * 4 + i) * 4, acc=8, F=32, PK=0, vT0=V(2), vT1=V(3), vS=V(4),
            slot_off=lambda u: (A_RING[u % 8] * 8192, A_RING[u % 8] * 8192), sstore='s74')
    gP = G2('P', 1, [0, 1, 2, 3], lambda h, qt, i: P_PARK[h] + (qt * 4 + i) * 4, acc=32, F=16, PK=0, vT0=V(6), vT1=V(7), vS=V(5),
            slot_off=lambda u: (WQ_BASE + pslot[u] * 8192, pslot[u] * 8192), sstore='s74')
    gA.PKS = [48, 52, 248]
    gP.PKS = [56, 60, 12]
    p_issue = {}
    fl = list(range(6))
    nxt = 0
    for u in range(5):
        pslot[u] = fl.pop(0); nxt += 1
    for sv in range(36):
        if sv >= 1:
            fl.append(pslot[sv - 1])
        if sv == 7:
            fl += [6, 7]
        lst = []
        while fl and nxt < 36 and len(lst) < 2:
            pslot[nxt] = fl.pop(0); lst.append(nxt); nxt += 1
        p_issue[sv] = lst

    w_issue = {}
    fl = [3]
    wn = 18
    for idx in range(len(names)):
        if idx == 1: fl += [0, 1, 2]
        for k in range(18, wn):
            if iv_of[k * 8 + 7] == idx - 1:
                fl.append(WSLOT[k])
        lst = []
        while wn < 72 and fl:
            WSLOT[wn] = fl.pop(0); lst.append(wn); wn += 1
        w_issue[idx] = lst

    pc = [label('L_P')]
    if OPT.get('prioP'): pc.append(salu('s_setprio', OPT['prioP']))
    pc.append(salu('s_mul_i32', 's54', S_W, 6144))
    pc.append(salu('s_add_u32', 's54', 's54', QT_BASE))
    pc.append(valu('v_lshlrev_b32', P.T0, 4, V(0)))
    pc.append(valu('v_add_u32', P.T0, 's54', P.T0))
    for i in range(2):
        for qt in range(3):
            pc.append(ds_write('ds_write_b128', P.T0, V(A.q(qt, i), 4), (qt * 2 + i) * 1024, tag='qt'))
    pc.append(wait(vm=[('K0', 0)], lg='qt'))
    pc.append(barrier())
    p_setup(pc.append)
    for i in range(6): pc.extend(x_load(9, i))
    for i in range(6): pc.extend(x_load(10, i))
    p_setup2(pc.append)
    vHl = V(8)
    published = set()
    pc.append(salu('s_mul_i32', 's75', 's37', 36864))
    pc.append(salu('s_mul_i32', 's55', S_W, 9216))
    pc.append(salu('s_add_u32', 's75', 's75', 's55'))
    pc.append(salu('s_sub_u32', 's75', 's75', 9 * 128))
    pc.append(valu('v_lshlrev_b32', V(203), 7, V(0)))
    pc.append(valu('v_mov_b32', V(204), 0x7fffff00))
    pc.append(valu('v_cmp_gt_u32', 'vcc', 9, V(0)))
    pc.append(valu('v_cndmask_b32', V(203), V(204), V(203), 'vcc'))
    vD = V(4)
    rd_next = 144
    for idx, n in enumerate(names):
        side = []
        need = []
        post = []
        lg = None
        t = n[1] if n[0] == 'IT' else None
        f0, q = start[n], quota[n]
        for k in w_issue[idx]:
            side += split_atoms(wq_dma(k))
        newpub = set()
        if idx + 1 < len(names):
            n2 = names[idx + 1]
            newpub = {fr // 8 for fr in range(start[n2], start[n2] + quota[n2])}
            need += [('W', k) for k in sorted(newpub)]
        if n in hdead.values():
            lg = 'hw'
        if n[0] == 'IT':
            if 0 <= t and t + 4 <= 63:
                side += split_atoms(k_dma(P.vKd, t + 4))
            if 2 <= t and t + 2 <= 63:
                side += split_atoms(v_dma(P.vVd, t + 2))
            if 4 <= t + 1 <= 63:
                need.append(('V', t + 1))
            if 4 <= t + 3 <= 63:
                need.append(('K', t + 3))
            if OPT.get('wot', 'p') == 'p' and t in range(3, 35, 4):
                side.append([salu('s_add_u32', 's75', 's75', 9 * 128), buf_load(V(204), V(203), SRD_WO, 's75', 0)])
            if t == -1:
                need += [('V0', 0), ('K0', 2), ('V0', 2)]
            if t == T0 - 1:
                for i in range(4): post.extend(x_write(9, i))
                post.extend(x_read_even(9, 0) + x_read_even(9, 1) + x_write(9, 4) + x_write(9, 5) + x_read_even(9, 2))
                for i in range(3): post.extend(x_load(11, i))
            if t == 45:
                for at in gaps[NG]: post.extend(at)
            if t == 47:
                wo_vd(post.append, vD, P.T0, V(12))
                g2_setup(post.append, 1, gP.vT0, gP.vT1, gP.vS, WQ_BASE, P.T0, V(12), 's74')
                post.append(valu('v_and_b32', vHl, ~15, P.vH0))
            if t == 50:
                post += h_read(P_PARK[2], vHl, ('po', t)); lg = 'all'
            if 54 <= t <= 58:
                post += gP.dma(t - 54, vD)
            if t == 59:
                need += [('U', 'P', 0), ('U', 'P', 1)]
            if t == 60:
                post += gA.dma(0, vD)
            if t in (61, 62, 63):
                v = t - 61
                if t == 61:
                    post += gP.start()
                at = []
                for u in p_issue[v]:
                    at += split_atoms(gP.dma(u, vD))
                for u in ([1], [2, 3], [4, 5])[v]: at += split_atoms(gA.dma(u, vD))
                post += gP.unit(v, at)
                need.append(('U', 'P', v + 2))
                if t == 63:
                    need += [('U', 'A', 0), ('U', 'A', 1)]
        boost = OPT.get('boost') and n[0] == 'IT' and t in (15, 16, 31, 32)
        if boost: pc.append(salu('s_setprio', 2))
        if q:
            while rd_next < min(f0 + 3, 576) and rd_next // 8 in published:
                pc.extend(p_wread(rd_next)); rd_next += 1
            tgt = {}
            if OPT.get('kal', 0):
                if OPT.get('fprio'): pc.append(salu('s_setprio', 2))
                for at in front.get(f0, []) + side: pc.extend(at)
                if OPT.get('fprio'): pc.append(salu('s_setprio', OPT.get('mprio', 0)))
            else:
                if side:
                    pc.extend(side.pop(0))
                ng = max(1, (q * 3 * ZF) // 100)
                for a, at in enumerate(side):
                    tgt.setdefault((a * ng) // len(side), []).append(at)
            for fr in range(f0, f0 + q):
                k, f = divmod(fr, 8)
                i, tt = f >> 1, f & 1
                pc.append(wait(lg=[('pf', fr)] + ([('xf', k)] if f == 0 else [])))
                rd = []
                if rd_next == fr + 3 and rd_next < 576 and rd_next // 8 in published:
                    rd = p_wread(rd_next); rd_next += 1
                for qt in range(3):
                    d = P.acc(qt, i, tt)
                    pc.append(mfma(d, P.F + (fr % 4) * 4, P.xf(k, qt), d if k % 18 else None))
                    if qt < len(rd): pc.append(rd[qt])
                    for at in gaps[fr * 3 + qt]:
                        pc.extend(at)
                    for at in tgt.get((fr - f0) * 3 + qt, []):
                        pc.extend(at)
                if OPT.get('pfine') == t and fr - f0 < 10: pc.extend(stamp(fr - f0 + 2))
        else:
            for at in side:
                pc.extend(at)
        pc.extend(post)
        if boost: pc.append(salu('s_setprio', 0))
        pc.append(wait(vm=need, lg=lg))
        pc.append(barrier())
        published |= newpub
        if OPT.get('novm') and n == ('IT', 0): novm0 = len(pc)
        if OPT.get('novm') and n == ('IT', 52):
            for x in pc[novm0:]:
                if x.kind in ('dma', 'vm'):
                    kk = 'kv' if x.tag and x.tag[0] in 'KV' else ('w' if x.tag and x.tag[0] == 'W' else 'x')
                    if OPT['novm'] == 'all' or kk in OPT['novm'].split('+'):
                        x.text = 's_nop 0'
        st = {('IT', -1): 3, ('IT', 0): 4, ('IT', 16): 5, ('IT', 32): 6, ('IT', 48): 7, ('IT', 63): 8}
        if OPT.get('stpro'):
            st = {('PRO', k): i + 1 for i, k in enumerate([0, 1, 3, 5, 7, 9, 11, 13, 15, 17])}; st[('HND', 0)] = 11
        if OPT.get('stit') is not None:
            st = {('IT', OPT['stit'] + i): i + 1 for i in range(11)}
        if 'stg' in OPT: st = {}
        if 'pfine' in OPT: st = {('IT', OPT['pfine'] - 1): 1}
        if n in st:
            pc.extend(stamp(st[n]))
    nost = OPT.get('stpro') or 'stit' in OPT or 'stg' in OPT or 'pfine' in OPT
    for g in range(33):
        v = g + 3
        at = []
        need = []
        for u in p_issue[v]:
            at += split_atoms(gP.dma(u, vD))
        if g == 0:
            at += split_atoms(gA.dma(6, vD))
        if g + 7 < 36:
            at += split_atoms(gA.dma(g + 7, vD))
        if v + 2 < 36:
            need.append(('U', 'P', v + 2))
        need.append(('U', 'A', g + 2 if g < 32 else 35))
        lg = None
        otag = None
        if g == 0:
            pc += h_read(P_PARK[3], vHl, 'po3')
            otag = lambda kb: ('po3', kb)
            hw = h_write(P_PARK[0], vHl, 'hw0'); at = [[x] for x in hw] + at; lg = 'hw0'
        if g == 2:
            hw = h_write(P_PARK[1], vHl, 'hw1'); at = [[x] for x in hw] + at; lg = 'hw1'
        if g == 5 and INK:
            rs = []; red_setup(rs.append, V(9), V(1)); at = [rs[i:i + 4] for i in range(0, len(rs), 4)] + at
        if g == 30 and INK:
            need.append(('st', 'P', 6))
        if g == 31 and INK:
            pc += signal('L_sig1', V(1), V(2))
        pc += gP.unit(v, at, otag)
        pc.append(wait(vm=need, lg=lg))
        pc.append(barrier())
        if 'stg' in OPT and 0 <= g - OPT['stg'] < 11: pc.extend(stamp(g - OPT['stg'] + 1))
    if not nost: pc.extend(stamp(9))
    if INK:
        pc += poll('L_poll1', 1, V(1), V(2))
        NF = 6
        lc = []
        for r in range(NF):
            pre = [salu('s_add_u32', 's71', S_W, 4 * r), salu('s_min_u32', 's71', 's71', 20)] + frag_offsets('s71') + \
                  [salu('s_mov_b32', f's{40 + r}', 's67')]
            ld, cp = reduce_frag(64 + 32 * r, 16, gP.vS, V(9), 's66', f's{40 + r}', V(1), V(2), ('r1', r))
            lc.append((pre + ld, cp))
        for r in range(NF):
            pc += lc[r][0]
        for r in range(NF):
            pc += lc[r][1]
        pc.append(wait(vm=('st', 'P', 8)))
        pc.append(barrier())
        if not nost: pc.extend(stamp(10))
        pc += signal('L_sig2', V(1), V(2))
        pc += [salu('s_cmp_ge_u32', S_W, 2), raw('s_cbranch_scc1 L_P_end', 'branch')]
        pc += poll('L_poll2p', 2, V(1), V(2))
        pc += [salu('s_add_u32', 's71', S_W, 25)] + frag_offsets('s71')
        ld, cp = reduce_frag(64, 16, gP.vS, V(9), 's66', 's67', V(1), V(2), 'r2')
        pc += ld + cp
        pc.append(label('L_P_end'))
    if not nost: pc.extend(stamp(11))
    pc.extend(stamp_out())
    pc.append(raw('s_endpgm', 'branch'))
    resolve_waits(head + pc)
    while hazards(head + pc):
        pass

    def osink(h):
        def sink(qt, i, buf):
            return [ds_write('ds_write_b128', A.vH, buf, (qt * 4 + i) * 1024, tag='ow')]
        return sink
    ag = AGen(osink)
    apro = [label('L_A')]
    e = apro.append
    if OPT.get('prioA', 1): e(salu('s_setprio', OPT.get('prioA', 1)))

    a_setup(e)
    e(salu('s_mov_b32', 's71', 0))
    e(salu('s_mul_i32', 's54', S_W, 6144))
    e(salu('s_add_u32', 's54', 's54', QT_BASE))
    e(valu('v_add_u32', A.T0, 's54', A.vO))
    e(wait(vm=[('K0', 0)]))
    e(barrier())
    for n in (0, 2):
        apro.extend(ag.read(n))
    for i in range(2):
        for qt in range(3):
            e(ds_read('ds_read_b128', V(A.q(qt, 2 + i), 4), A.T0, (qt * 2 + i) * 1024, tag='qt'))
    e(wait(lg='qt'))
    def bar(t):
        b = []
        if t == 0: b.append(wait(vm='all'))
        if t % 16 == 1: b.append(wait(lg='ow' if t > 1 else None))
        b.append(barrier())
        if t == 0: b += stamp(3)
        def cst(k):
            if not STAMPS: return []
            return [salu('s_cmp_eq_u32', 's71', OPT.get('sth', 3)), raw(f's_cbranch_scc0 L_cs{k}', 'branch')] + stamp(k) + [label(f'L_cs{k}')]
        if t % 16 == 5: b += cst(5)
        if t % 16 == 6: b = cst(6) + b + cst(7)
        return b
    apro.extend(ag.iteration(-1))
    apro.extend(ag.iteration(0, bar=bar(0))); apro.extend(stamp(4))
    bodies = []
    for h in range(4):
        b = []
        for j in range(1, 14):
            b.extend(ag.iteration(16 * h + j, bar=bar(16 * h + j)))
        b.append(salu('s_cmp_eq_u32', 's71', 3))
        b.append(raw('s_cbranch_scc1 L_A_tail', 'branch'))
        if h < 3:
            for j in (14, 15, 16):
                b.extend(ag.iteration(16 * h + j, bar=bar(16 * h + j)))
            b.append(salu('s_add_u32', 's71', 's71', 1))
            b.append(raw('s_branch L_A_loop', 'branch'))
        bodies.append(b)
    tail = [label('L_A_tail')]
    tail.extend(ag.iteration(62, bar=bar(62)))
    tail.extend(ag.iteration(63, bar=bar(63)))
    eo = epilogue_ops(osink(3), dst=lambda qt, i: A_PARK[3] + (qt * 4 + i) * 4)
    tail.extend(ag.iteration(64))
    tail.extend(eo)
    g2_setup(tail.append, 0, gA.vT0, gA.vT1, gA.vS, 0, A.T0, A.T1, 's74')
    tail.append(wait(lg='all'))
    tail.append(barrier())
    tail.extend(stamp(8))
    if OPT.get('prio2') is not None: tail.append(salu('s_setprio', OPT['prio2']))
    tail += gA.start()
    for g in range(36):
        at = []
        otag = None
        lg = None
        vmn = None
        if g == 1:
            at = [[x] for x in h_read(A_PARK[0], A.vH, 'ao0')]; lg = ('ao0', 3)
        if g == 3:
            tail += h_read(A_PARK[1], A.vH, 'ao1')
            otag = lambda kb: ('ao1', kb)
        if g == 5 and INK:
            rs = []; red_setup(rs.append, V(6), V(1)); at = [rs[i:i + 4] for i in range(0, len(rs), 4)]
        if g == 30 and INK:
            vmn = ('st', 'A', 6)
        tail += gA.unit(g, at, otag)
        if g <= 32:
            tail.append(wait(lg=lg, vm=vmn))
            tail.append(barrier())
    tail.extend(stamp(9))
    if INK:
        tail.append(wait(vm='all'))
        tail.append(barrier())
        tail.extend(stamp(10))
        tail += poll('L_poll2a', 2, V(1), V(7))
        tail += [salu('s_add_u32', 's71', S_W, 21)] + frag_offsets('s71')
        ld, cp = reduce_frag(64, 16, gA.vS, V(6), 's66', 's67', V(1), V(7), 'r2')
        tail += ld + cp
    tail.extend(stamp(11))
    tail.extend(stamp_out())
    tail.extend(dbg_out())
    tail.append(raw('s_endpgm', 'branch'))
    resolve_waits(head + apro + bodies[0] + bodies[1] + bodies[2] + bodies[3] + tail)
    body = fold(bodies)
    npre = len(bodies[3])
    while hazards(head + apro + body + body + body[:npre] + tail):
        pass
    rare = []
    for site, lab in rare_sites:
        rare += [label(f'TR_{site}'), raw(f's_call_b64 s[62:63], {lab}', 'branch'), raw(f's_branch RET_{site}', 'branch')]
    for var, lab in rare_variants.items():
        rc = rare_code(var, lab)
        while hazards(rc):
            pass
        rare += rc
    nb = lambda q: sum(1 for i in q if i.kind == 'barrier')
    na = nb(apro) + 3 * nb(body) + nb(body[:npre]) + nb(tail)
    assert na == nb(pc), (na, nb(pc))
    print(stats(apro, 'A pro'), file=sys.stderr); print(stats(body, 'A body'), file=sys.stderr)
    print(stats(tail, 'A tail'), file=sys.stderr); print(stats(pc, 'P'), file=sys.stderr); print(stats(rare, 'rare'), file=sys.stderr)
    lines = render(head) + render(apro) + ['.p2align 6', 'L_A_loop:'] + render(body) + render(rare) + render(tail) + ['.p2align 6'] + render(pc) + ['L_k1_end:']
    return lines

def build_k3_old():
    c = []
    e = c.append
    e(raw('s_cmp_ge_u32 s2, 1728')); e(raw('s_cbranch_scc0 L3_go')); e(raw('s_endpgm')); e(label('L3_go'))
    e(raw('s_load_dwordx2 s[4:5], s[0:1], 80'))
    e(raw('s_load_dwordx2 s[6:7], s[0:1], 96'))
    e(valu('v_lshrrev_b32', V(1), 6, V(0)))
    e(valu('v_readfirstlane_b32', 's16', V(1)))
    e(valu('v_and_b32', V(0), 63, V(0)))
    if OPT.get('k3x', 1):
        e(salu('s_and_b32', 's17', 's2', 7))
        e(salu('s_mul_i32', 's17', 's17', 216))
        e(salu('s_lshr_b32', 's18', 's2', 3))
        e(salu('s_add_u32', 's17', 's17', 's18'))
        e(salu('s_lshl_b32', 's17', 's17', 2))
    else:
        e(salu('s_lshl_b32', 's17', 's2', 2))
    e(salu('s_add_u32', 's17', 's17', 's16'))
    e(salu('s_mul_hi_u32', 's18', 's17', (2 ** 32 + 215) // 216))
    e(salu('s_mul_i32', 's19', 's18', 216))
    e(salu('s_sub_u32', 's19', 's17', 's19'))
    e(salu('s_mul_hi_u32', 's20', 's19', (2 ** 32 + 26) // 27))
    e(salu('s_mul_i32', 's21', 's20', 27))
    e(salu('s_sub_u32', 's21', 's19', 's21'))
    e(salu('s_mul_hi_u32', 's22', 's21', (2 ** 32 + 2) // 3))
    e(salu('s_mul_i32', 's23', 's22', 3))
    e(salu('s_sub_u32', 's23', 's21', 's23'))
    e(raw('s_waitcnt lgkmcnt(0)'))
    e(salu('s_mov_b32', 's8', 's6')); e(salu('s_mov_b32', 's9', 's7'))
    e(salu('s_mov_b32', 's10', PART_WS_OFF + 256 * 221184)); e(salu('s_mov_b32', 's11', 0x20000))
    e(salu('s_mov_b32', 's12', 's4')); e(salu('s_mov_b32', 's13', 's5'))
    e(salu('s_mov_b32', 's14', 16 * 192 * 1152 * 2)); e(salu('s_mov_b32', 's15', 0x20000))
    e(salu('s_mul_i32', 's24', 's18', 8 * 221184))
    e(salu('s_lshl_b32', 's25', 's19', 10))
    e(salu('s_add_u32', 's24', 's24', 's25'))
    e(salu('s_add_u32', 's24', 's24', PART_WS_OFF))
    e(valu('v_lshlrev_b32', V(1), 4, V(0)))
    for hg in range(8):
        e(buf_load(V(8 + 4 * hg, 4), V(1), 's[8:11]', 's24', 0, tag=('p', hg), pol=OPT.get('rpol', '').replace('+', ' ')))
        e(salu('s_add_u32', 's24', 's24', 221184))
    e(salu('s_and_b32', 's26', 's18', 15))
    e(salu('s_mul_i32', 's26', 's26', 192))
    e(salu('s_lshr_b32', 's27', 's20', 1))
    e(salu('s_mul_i32', 's27', 's27', 48))
    e(salu('s_add_u32', 's26', 's26', 's27'))
    e(salu('s_lshl_b32', 's27', 's23', 4))
    e(salu('s_add_u32', 's26', 's26', 's27'))
    e(salu('s_mul_i32', 's26', 's26', 2304))
    e(salu('s_lshr_b32', 's27', 's18', 4))
    e(salu('s_mul_i32', 's27', 's27', 1152))
    e(salu('s_add_u32', 's26', 's26', 's27'))
    e(salu('s_and_b32', 's27', 's20', 1))
    e(salu('s_mul_i32', 's27', 's27', 576))
    e(salu('s_add_u32', 's26', 's26', 's27'))
    e(salu('s_lshl_b32', 's27', 's22', 6))
    e(salu('s_add_u32', 's26', 's26', 's27'))
    e(valu('v_and_b32', V(2), 15, V(0)))
    e(valu('v_mul_u32_u24', V(2), 2304, V(2)))
    e(valu('v_lshrrev_b32', V(3), 4, V(0)))
    e(valu('v_lshl_add_u32', V(2), V(3), 3, V(2)))
    ACC = 40
    for hg in range(8):
        e(wait(vm=('p', hg)))
        for r in range(4):
            src = V(8 + 4 * hg + r)
            if hg == 0:
                e(valu('v_lshlrev_b32', V(ACC + 2 * r), 16, src))
                e(valu('v_and_b32', V(ACC + 2 * r + 1), 0xffff0000, src))
            else:
                e(valu('v_lshlrev_b32', V(4), 16, src))
                e(valu('v_and_b32', V(5), 0xffff0000, src))
                e(valu('v_add_f32', V(ACC + 2 * r), V(ACC + 2 * r), V(4)))
                e(valu('v_add_f32', V(ACC + 2 * r + 1), V(ACC + 2 * r + 1), V(5)))
    for r in range(4):
        e(valu('v_cvt_pk_bf16_f32', V(8 + r), V(ACC + 2 * r), V(ACC + 2 * r + 1)))
    e(buf_store(V(8, 2), V(2), 's[12:15]', 's26', 0))
    e(buf_store(V(10, 2), V(2), 's[12:15]', 's26', 32))
    e(raw('s_endpgm', 'branch'))
    resolve_waits(c)
    while hazards(c):
        pass
    return render(c)


def build_k3():
    c = []
    e = c.append
    e(raw('s_cmp_ge_u32 s2, 256')); e(raw('s_cbranch_scc0 L3_go')); e(raw('s_endpgm')); e(label('L3_go'))
    e(raw('s_load_dwordx2 s[4:5], s[0:1], 80'))
    e(raw('s_load_dwordx2 s[6:7], s[0:1], 96'))
    e(valu('v_lshrrev_b32', V(1), 6, V(0)))
    e(valu('v_readfirstlane_b32', 's22', V(1)))
    e(valu('v_and_b32', V(0), 63, V(0)))
    e(salu('s_and_b32', 's17', 's2', 7))
    e(salu('s_lshr_b32', 's19', 's2', 3))
    e(salu('s_lshl_b32', 's18', 's17', 2))
    e(salu('s_lshr_b32', 's20', 's19', 3))
    e(salu('s_add_u32', 's18', 's18', 's20'))
    e(salu('s_and_b32', 's20', 's19', 7))
    e(salu('s_mul_i32', 's24', 's18', 8 * 221184))
    e(salu('s_mul_i32', 's25', 's20', 27648))
    e(salu('s_add_u32', 's24', 's24', 's25'))
    e(salu('s_mul_i32', 's25', 's22', 3072))
    e(salu('s_add_u32', 's24', 's24', 's25'))
    if PART_WS_OFF: e(salu('s_add_u32', 's24', 's24', PART_WS_OFF))
    e(valu('v_lshlrev_b32', V(1), 4, V(0)))
    e(raw('s_waitcnt lgkmcnt(0)'))
    e(salu('s_mov_b32', 's8', 's6')); e(salu('s_mov_b32', 's9', 's7'))
    e(salu('s_mov_b32', 's10', PART_WS_OFF + 256 * 221184)); e(salu('s_mov_b32', 's11', 0x20000))
    LD = 16
    for qt in range(3):
        for hg in range(8):
            e(salu('s_add_u32', 's25', 's24', hg * 221184))
            e(buf_load(V(LD + (qt * 8 + hg) * 4, 4), V(1), 's[8:11]', 's25', qt * 1024, tag=('p', qt, hg), pol=OPT.get('rpol', '').replace('+', ' ')))
    e(salu('s_mov_b32', 's12', 's4')); e(salu('s_mov_b32', 's13', 's5'))
    e(salu('s_mov_b32', 's14', 16 * 192 * 1152 * 2)); e(salu('s_mov_b32', 's15', 0x20000))
    e(salu('s_and_b32', 's26', 's18', 15))
    e(salu('s_mul_i32', 's26', 's26', 192))
    e(salu('s_lshr_b32', 's27', 's20', 1))
    e(salu('s_mul_i32', 's27', 's27', 48))
    e(salu('s_add_u32', 's26', 's26', 's27'))
    e(salu('s_mul_i32', 's26', 's26', 2304))
    e(salu('s_lshr_b32', 's27', 's18', 4))
    e(salu('s_mul_i32', 's27', 's27', 1152))
    e(salu('s_add_u32', 's26', 's26', 's27'))
    e(salu('s_and_b32', 's27', 's20', 1))
    e(salu('s_mul_i32', 's27', 's27', 576))
    e(salu('s_add_u32', 's26', 's26', 's27'))
    e(salu('s_lshl_b32', 's27', 's22', 6))
    e(salu('s_add_u32', 's26', 's26', 's27'))
    e(valu('v_and_b32', V(2), 15, V(0)))
    e(valu('v_mul_u32_u24', V(2), 2304, V(2)))
    e(valu('v_lshrrev_b32', V(3), 4, V(0)))
    e(valu('v_lshl_add_u32', V(2), V(3), 3, V(2)))
    ACC = 8
    for qt in range(3):
        for hg in range(8):
            e(wait(vm=('p', qt, hg)))
            for r in range(4):
                src = V(LD + (qt * 8 + hg) * 4 + r)
                if hg == 0:
                    e(valu('v_lshlrev_b32', V(ACC + 2 * r), 16, src))
                    e(valu('v_and_b32', V(ACC + 2 * r + 1), 0xffff0000, src))
                else:
                    e(valu('v_lshlrev_b32', V(4), 16, src))
                    e(valu('v_and_b32', V(5), 0xffff0000, src))
                    e(valu('v_add_f32', V(ACC + 2 * r), V(ACC + 2 * r), V(4)))
                    e(valu('v_add_f32', V(ACC + 2 * r + 1), V(ACC + 2 * r + 1), V(5)))
        o = LD + qt * 32
        for r in range(4):
            e(valu('v_cvt_pk_bf16_f32', V(o + r), V(ACC + 2 * r), V(ACC + 2 * r + 1)))
        e(buf_store(V(o, 2), V(2), 's[12:15]', 's26', 0))
        e(buf_store(V(o + 2, 2), V(2), 's[12:15]', 's26', 32))
        e(salu('s_add_u32', 's26', 's26', 16 * 2304))
    e(raw('s_endpgm', 'branch'))
    resolve_waits(c)
    while hazards(c):
        pass
    return render(c)


def kd(name, vgpr, sgpr=102):
    return ['.p2align 6', f'.amdhsa_kernel {name}', f'  .amdhsa_next_free_vgpr {vgpr}', f'  .amdhsa_next_free_sgpr {sgpr}',
            f'  .amdhsa_accum_offset {(vgpr + 3) // 4 * 4}', '  .amdhsa_group_segment_fixed_size 0', '  .amdhsa_kernarg_size 104',
            '  .amdhsa_user_sgpr_count 2', '  .amdhsa_user_sgpr_kernarg_segment_ptr 1', '  .amdhsa_system_sgpr_workgroup_id_x 1',
            '.end_amdhsa_kernel']


def kern(name, lines):
    return [f'.globl {name}', '.p2align 8', f'.type {name},@function', f'{name}:'] + lines


if __name__ == '__main__':
    which = sys.argv[2] if len(sys.argv) > 2 else '123'
    STAMPS = 's' in which
    for kv in sys.argv[3:]:
        k, v = kv.split('='); OPT[k] = int(v) if v.lstrip('-').isdigit() else v
    out = []
    single = '3' not in which
    k1 = NAME + '_kernel' if single else 'k1_kernel'
    if single:
        out.append(f'; @launch grid=(256,1,1) block=(512,1,1) lds={LDS_BYTES}')
    else:
        OPT['inred'] = 0
        out.append(f'; @launch kernel=k1_kernel grid=(256,1,1) block=(512,1,1) lds={LDS_BYTES}')
        out.append('; @launch kernel=k3_kernel grid=(1728,1,1) block=(256,1,1) lds=0' if OPT.get('k3old') else '; @launch kernel=k3_kernel grid=(256,1,1) block=(576,1,1) lds=0')
    out += ['.amdgcn_target "amdgcn-amd-amdhsa--gfx950"', '.text']
    out += kern(k1, build_k1())
    if not single: out += kern('k3_kernel', build_k3_old() if OPT.get('k3old') else build_k3())
    out += ['.section .rodata,"a"'] + kd(k1, 256) + ([] if single else kd('k3_kernel', 48 if OPT.get('k3old') else 112, 32))
    open(sys.argv[1], 'w').write('\n'.join(out) + '\n')
```

```python
import sys, math
sys.path.insert(0, 'gen')
from asmlib import *

NAME = 'concat_heads__mha_block_cached__mha_block_cached__near_ridge'
CSCALE = math.log2(math.e) / math.sqrt(128.0)
THR = 1024.0

KV_BASE = 0
WQ_BASE = 65536
NWQ = 4
WSLOT = {}
XB_BASE = WQ_BASE + NWQ * 8192
H_BASE = XB_BASE + 16384
LDS_BYTES = 163840

SRD_K, SRD_V, SRD_WQ, SRD_X, SRD_WS, SRD_WO = 's[8:11]', 's[12:15]', 's[16:19]', 's[20:23]', 's[24:27]', 's[28:31]'
S_W = 's50'
S_WAVE = 's39'
S_ID = 's51'

PART_WS_OFF = 0


STAMPS = False
OPT = {}
STAMP_OFF = 120 * 1024 * 1024
def stamp(k):
    if not STAMPS: return []
    assert k < 12
    return [raw(f's_memtime s[{76 + 2 * k}:{77 + 2 * k}]')]
def stamp_init():
    if not STAMPS: return []
    return [salu('s_mov_b32', f's{r}', 0) for r in range(76, 100)] + [raw('s_memrealtime s[100:101]')]
def stamp_out(t0=V(8, 4), a=V(1)):
    if not STAMPS: return []
    c = [raw('s_memrealtime s[52:53]'), raw('s_waitcnt vmcnt(0) lgkmcnt(0)'), salu('s_lshl_b32', 's54', 's2', 3), salu('s_add_u32', 's54', 's54', S_WAVE),
         salu('s_lshl_b32', 's54', 's54', 7), salu('s_add_u32', 's54', 's54', STAMP_OFF), salu('s_mov_b32', 's26', STAMP_OFF + 1024 * 1024),
         valu('v_mov_b32', a, 0), raw('s_mov_b64 exec, 1')]
    regs = list(range(76, 102)) + [52, 53]
    for k in range(7):
        for r in range(4):
            c.append(valu('v_mov_b32', V(t0.n + r), f's{regs[4 * k + r]}'))
        c.append(buf_store(t0, a, SRD_WS, 's54', 16 * k))
        c.append(nop(3))
    return c


PHYS = {7: 0, 1: 1, 2: 2, 4: 3, 3: 4, 5: 5, 6: 6, 0: 7}
def dbg_out():
    if not OPT.get('dbg'): return []
    c = [raw('s_memtime s[92:93]'), raw('s_memrealtime s[94:95]'), raw('s_waitcnt vmcnt(0) lgkmcnt(0)'),
         salu('s_cmp_eq_u32', S_WAVE, 0), raw('s_cbranch_scc0 L_dbg_skip', 'branch'),
         salu('s_cmp_lt_u32', 's2', 8), raw('s_cbranch_scc0 L_dbg_skip', 'branch'),
         salu('s_sub_u32', 's92', 's92', 's96'), salu('s_sub_u32', 's94', 's94', 's98'),
         salu('s_mov_b32', 's12', 's6'), salu('s_mov_b32', 's13', 's7'), salu('s_mov_b32', 's14', 60000000), salu('s_mov_b32', 's15', 0x20000),
         salu('s_lshl_b32', 's54', 's2', 3), salu('s_add_u32', 's54', 's54', 58000000), valu('v_mov_b32', V(8), 's92'), valu('v_mov_b32', V(9), 's94'), valu('v_mov_b32', V(1), 0),
         buf_store(V(8, 2), V(1), 's[12:15]', 's54', 0), label('L_dbg_skip')]
    return c


def kslot(t): return t % 4
def vslot(t): return 4 + t % 4
def wslot0(k): return 8 + k % 6
XS = [4, 5, 6, 16, 17, 18, 19, 14, 15]
XBASE = 14 * 8192
def xslot(M, qt): return XS[(M % 3) * 3 + qt]
S_SET = 's3'


def common_prologue(e, nwg=256):
    e(raw(f's_cmp_ge_u32 s2, {nwg}'))
    e(raw('s_cbranch_scc0 L_go'))
    e(raw('s_endpgm'))
    e(label('L_go'))
    e(raw('s_load_dwordx2 s[4:5], s[0:1], 80'))
    if OPT.get('dbg'): e(raw('s_memtime s[96:97]')); e(raw('s_memrealtime s[98:99]'))
    e(raw('s_load_dwordx2 s[6:7], s[0:1], 96'))
    e(raw('s_load_dwordx2 s[72:73], s[0:1], 88'))
    e(salu('s_and_b32', 's32', 's2', 7))
    e(salu('s_lshr_b32', 's33', 's2', 3))
    if OPT.get('map', 0) == 1:
        e(salu('s_lshr_b32', 's34', 's32', 2))
        e(salu('s_lshl_b32', 's34', 's34', 4))
        e(salu('s_lshr_b32', 's35', 's33', 1))
        e(salu('s_add_u32', 's34', 's34', 's35'))
        e(salu('s_and_b32', 's35', 's32', 3))
        e(salu('s_lshl_b32', 's35', 's35', 1))
        e(salu('s_and_b32', 's33', 's33', 1))
        e(salu('s_add_u32', 's35', 's35', 's33'))
    elif OPT.get('map', 0) == 2:
        e(salu('s_lshr_b32', 's34', 's32', 1))
        e(salu('s_lshl_b32', 's34', 's34', 3))
        e(salu('s_lshr_b32', 's35', 's33', 2))
        e(salu('s_add_u32', 's34', 's34', 's35'))
        e(salu('s_and_b32', 's35', 's32', 1))
        e(salu('s_lshl_b32', 's35', 's35', 2))
        e(salu('s_and_b32', 's33', 's33', 3))
        e(salu('s_add_u32', 's35', 's35', 's33'))
    else:
        e(salu('s_lshl_b32', 's34', 's32', 2))
        e(salu('s_lshr_b32', 's35', 's33', 3))
        e(salu('s_add_u32', 's34', 's34', 's35'))
        e(salu('s_and_b32', 's35', 's33', 7))
    e(salu('s_lshr_b32', 's36', 's34', 4))
    e(salu('s_and_b32', 's37', 's34', 15))
    e(salu('s_lshl_b32', S_ID, 's34', 3))
    e(salu('s_add_u32', S_ID, S_ID, 's35'))
    e(salu('s_mul_i32', 's38', 's36', 40))
    e(salu('s_add_u32', 's52', 's0', 's38'))
    e(salu('s_addc_u32', 's53', 's1', 0))
    e(raw('s_load_dwordx4 s[40:43], s[52:53], 0'))
    e(raw('s_load_dwordx4 s[44:47], s[52:53], 16'))
    e(raw('s_load_dwordx2 s[48:49], s[52:53], 32'))
    e(valu('v_lshrrev_b32', V(1), 6, V(0)))
    e(valu('v_readfirstlane_b32', S_WAVE, V(1)))
    e(valu('v_and_b32', V(0), 63, V(0)))
    e(salu('s_and_b32', S_W, S_WAVE, 3))
    e(salu('s_lshr_b32', S_SET, S_WAVE, 2))
    e(salu('s_lshl_b32', 's58', S_SET, 9))
    e(salu('s_add_u32', 's58', 's58', 65536))
    e(salu('s_lshl_b32', 's62', S_W, 11))
    e(salu('s_lshl_b32', 's63', S_SET, 10))
    e(salu('s_add_u32', 's63', 's63', 's62'))
    e(salu('s_add_u32', 's62', 's62', 's58'))
    q_dma_addrs(e)
    e(raw('s_waitcnt lgkmcnt(0)'))
    e(salu('s_lshl_b32', 's54', 's35', 10))
    e(salu('s_add_u32', 's16', 's46', 's54')); e(salu('s_addc_u32', 's17', 's47', 0))
    e(salu('s_sub_u32', 's18', 576 * 8192, 's54')); e(salu('s_mov_b32', 's19', 0x20000))
    e(salu('s_mul_i32', 's54', 's37', 221184))
    e(salu('s_add_u32', 's20', 's40', 's54')); e(salu('s_addc_u32', 's21', 's41', 0))
    e(salu('s_mov_b32', 's22', 221184)); e(salu('s_mov_b32', 's23', 0x20000))
    for x in wq0_dma(0) + x0_dma(0) + wq0_dma(1) + wq0_dma(2) + x0_dma(1) + wq0_dma(3) + wq0_dma(4) + x0_dma(2) + wq0_dma(5): e(x)
    e(salu('s_lshl_b32', 's54', 's37', 3))
    e(salu('s_add_u32', 's54', 's54', 's35'))
    e(salu('s_lshl_b32', 's54', 's54', 19))
    e(salu('s_add_u32', 's8', 's42', 's54')); e(salu('s_addc_u32', 's9', 's43', 0))
    e(salu('s_mov_b32', 's10', 524288)); e(salu('s_mov_b32', 's11', 0x20000))
    e(salu('s_add_u32', 's12', 's44', 's54')); e(salu('s_addc_u32', 's13', 's45', 0))
    e(salu('s_mov_b32', 's14', 524288)); e(salu('s_mov_b32', 's15', 0x20000))
    e(salu('s_mov_b32', 's24', 's6')); e(salu('s_mov_b32', 's25', 's7'))
    e(salu('s_mov_b32', 's26', PART_WS_OFF + 256 * 221184)); e(salu('s_mov_b32', 's27', 0x20000))
    e(salu('s_mul_i32', 's54', 's35', 589824))
    e(salu('s_add_u32', 's28', 's48', 's54')); e(salu('s_addc_u32', 's29', 's49', 0))
    e(salu('s_mov_b32', 's30', 589824)); e(salu('s_mov_b32', 's31', 0x20000))
    if OPT.get('cpf', 1):
        e(raw('s_getpc_b64 s[52:53]'))
        e(label('L_cpf'))
        e(salu('s_lshr_b32', 's54', 's2', 3))
        e(salu('s_lshl_b32', 's54', 's54', 3))
        e(salu('s_add_u32', 's54', 's54', S_WAVE))
        e(salu('s_lshl_b32', 's54', 's54', 9))
        e(valu('v_and_b32', V(20), 3, V(0)))
        e(valu('v_lshlrev_b32', V(20), 7, V(20)))
        e(valu('v_add_u32', V(20), 's54', V(20)))
        e(valu('v_min_u32', V(20), 'L_k1_end-L_cpf-8', V(20)))
        e(Ins('global_load_dword v21, v20, s[52:53]', 'vm', rd=[20], wr=[21]))
    for x in stamp_init() + stamp(0): e(x)


CODE_BYTES = 90000


def wq0_dma(k):
    return [salu('s_add_u32', 'm0', 's63', wslot0(k) * 8192), salu('s_mov_b32', 's66', k * 262144), dma(A.vWd, SRD_WQ, 's66', 0, tag=('W0', k))]


def x0_dma(M):
    o = []
    for qt in range(3):
        o += [salu('s_add_u32', 'm0', 's63', xslot(M, qt) * 8192), salu('s_mov_b32', 's66', M * 128 + qt * 18432),
              dma(A.vXd, SRD_X, 's66', 0, tag=('X0', M))]
    return o


def kv0_dma(kind, t):
    if kind == 'K':
        assert kslot(t + 1) == kslot(t) + 1
        return [salu('s_add_u32', 'm0', 's68', kslot(t) * 8192), salu('s_add_u32', 's66', 's70', t * 8192),
                dma(A.vKd, SRD_K, 's66', 0, tag=('K0', t), pol='nt'), dma(A.vKd, SRD_K, 's66', 1024, tag=('K0', t), pol='nt')]
    assert vslot(t + 1) == vslot(t) + 1
    return [salu('s_add_u32', 'm0', 's69', vslot(t) * 8192), salu('s_add_u32', 's66', 's70', t * 8192),
            dma(A.vVd, SRD_V, 's66', 0, tag=('V0', t), pol='nt'), dma(A.vVd, SRD_V, 's66', 2048, tag=('V0', t), pol='nt')]


def q_dma_addrs(e):
    t0, t1 = A.T0, A.T1
    e(salu('s_and_b32', 's54', S_W, 1))
    e(valu('v_and_b32', t0, 3, V(0)))
    e(valu('v_xor_b32', t0, 's54', t0))
    e(valu('v_lshrrev_b32', t1, 4, V(0)))
    e(valu('v_lshl_add_u32', t0, t1, 2, t0))
    e(valu('v_lshlrev_b32', t0, 4, t0))
    e(valu('v_bfe_u32', t1, V(0), 2, 2))
    e(valu('v_lshl_add_u32', t0, t1, 13, t0))
    e(salu('s_lshl_b32', 's54', S_W, 16))
    e(salu('s_lshl_b32', 's55', S_SET, 15))
    e(salu('s_add_u32', 's54', 's54', 's55'))
    e(valu('v_add_u32', A.vWd, 's54', t0))
    e(salu('s_lshl_b32', 's54', S_SET, 2))
    e(valu('v_lshrrev_b32', t1, 4, V(0)))
    e(valu('v_add_u32', t1, 's54', t1))
    e(valu('v_and_b32', t0, 7, V(0)))
    e(valu('v_xor_b32', t0, t0, t1))
    e(valu('v_lshrrev_b32', t1, 3, V(0)))
    e(valu('v_mul_u32_u24', t1, 1152, t1))
    e(valu('v_lshl_add_u32', t0, t0, 4, t1))
    e(salu('s_mul_i32', 's54', S_W, 48 * 1152))
    e(salu('s_mul_i32', 's55', S_SET, 8 * 1152))
    e(salu('s_add_u32', 's54', 's54', 's55'))
    e(valu('v_add_u32', A.vXd, 's54', t0))


def q_rd_addrs(e):
    t0, t1 = A.T0, A.T1
    e(valu('v_and_b32', t0, 3, V(0)))
    e(valu('v_bfe_u32', t1, V(0), 4, 1))
    e(valu('v_xor_b32', t0, t0, t1))
    e(valu('v_bfe_u32', t1, V(0), 2, 2))
    e(valu('v_lshl_add_u32', t0, t1, 2, t0))
    e(valu('v_lshrrev_b32', t1, 4, V(0)))
    e(valu('v_lshl_add_u32', t0, t1, 7, t0))
    e(valu('v_lshlrev_b32', t0, 4, t0))
    e(valu('v_and_b32', t1, 1, V(0)))
    e(valu('v_lshl_add_u32', t0, t1, 3, t0))
    e(valu('v_add_u32', A.vW0, 's58', t0))
    e(valu('v_xor_b32', A.vW1, 8, A.vW0))
    e(valu('v_lshrrev_b32', t0, 4, V(0)))
    e(valu('v_bfe_u32', t1, V(0), 1, 3))
    e(valu('v_xor_b32', t0, t0, t1))
    e(valu('v_lshlrev_b32', t0, 4, t0))
    e(valu('v_and_b32', t1, 15, V(0)))
    e(valu('v_lshl_add_u32', t0, t1, 7, t0))
    e(salu('s_lshl_b32', 's54', S_W, 11))
    e(salu('s_add_u32', 's54', 's54', XBASE))
    e(valu('v_add_u32', A.vXr0, 's54', t0))
    e(valu('v_xor_b32', A.vXr1, 64, A.vXr0))
    e(valu('v_subrev_u32', A.vXr2, XBASE, A.vXr0))
    e(valu('v_subrev_u32', A.vXr3, XBASE, A.vXr1))


def q0_wread(n):
    if n >= 72: return []
    k, f = divmod(n, 4)
    i, t = f >> 1, f & 1
    buf = A.F + (n % 4) * 4
    va = A.vW0 if t == 0 else A.vW1
    off = (wslot0(k) - 8) * 8192 + i * 256
    return [ds_read('ds_read_b64_tr_b16', V(buf, 2), va, off, tag=('pf0', n)), ds_read('ds_read_b64_tr_b16', V(buf + 2, 2), va, off + 1024, tag=('pf0', n))]


def q0_xread(k):
    o = []
    for qt in range(3):
        a = xslot(k // 2, qt) * 8192
        va, off = ((A.vXr1 if k % 2 else A.vXr0), a - XBASE) if a >= XBASE else ((A.vXr3 if k % 2 else A.vXr2), a)
        o.append(ds_read('ds_read_b128', V(A.xf(k, qt), 4), va, off, tag=('xf0', k)))
    return o


def q_conv(i):
    ops = []
    for qt in range(3):
        tm = A.P[0] + qt * 4
        for t in range(2):
            a = A.o(qt, 2 * i + t)
            for r in range(4): ops.append(valu('v_mul_f32', V(a + r), 's59', V(a + r)))
            ops.append(valu('v_cvt_pk_bf16_f32', V(tm + 2 * t), V(a), V(a + 1)))
            ops.append(valu('v_cvt_pk_bf16_f32', V(tm + 2 * t + 1), V(a + 2), V(a + 3)))
        q = A.q(qt, i)
        for k in range(2):
            ops.append(valu('v_cndmask_b32', V(q + k), V(tm + k), V(tm + 2 + k), 's[64:65]'))
            ops.append(valu('v_cndmask_b32', V(q + 2 + k), V(tm + 2 + k), V(tm + k), 's[64:65]'))
    return ops


def q0_phase():
    c = []; e = c.append
    q_rd_addrs(e)
    kv_dma_addrs(e, A.vKd, A.vVd, A.T0, A.T1)
    e(salu('s_lshl_b32', 's70', S_SET, 13))
    e(salu('s_add_u32', 's68', 's56', 's70'))
    e(salu('s_add_u32', 's69', 's57', 's70'))
    e(salu('s_mov_b32', 's59', CSCALE))
    e(salu('s_mov_b32', 's64', 0xffff0000)); e(salu('s_mov_b32', 's65', 0xffff0000))
    e(wait(vm=[('W0', 0), ('X0', 0)]))
    e(barrier())
    c += stamp(1)
    c += q0_wread(0) + q0_wread(1) + q0_wread(2) + q0_xread(0)
    gaps = [[] for _ in range(72 * 3 + 1)]

    def chain(ops, lo, hi):
        for a, o in enumerate(ops): gaps[min(lo + (a * (hi - lo + 1)) // len(ops), 216)].append(o)
    wn = 6
    kvq = {OPT.get('kv0', 8): kv0_dma('K', 0), OPT.get('kv1', 14): kv0_dma('V', 0), OPT.get('kv2', 12): kv0_dma('K', 2), OPT.get('kv3', 16): kv0_dma('V', 2)}
    for k in range(18):
        g0 = (4 * k + 1) * 3
        ops = []
        if k < 17:
            for j, x in enumerate(q0_xread(k + 1)): gaps[g0 + 2 * j].append(x)
        while wn < 18 and wn - 6 <= k - 1:
            ops += wq0_dma(wn); wn += 1
        if k % 2 == 1 and (k - 1) // 2 + 3 <= 8: ops += x0_dma((k - 1) // 2 + 3)
        ops += kvq.get(k, [])
        if ops: chain(ops, g0, g0 + 10)
    for n in range(72):
        k, f = divmod(n, 4)
        if f == 1 and k < 17:
            c.append(wait(vm=[('W0', k + 1), ('X0', (k + 1) // 2)]))
            c.append(barrier())
        c.append(wait(lg=[('pf0', n)] + ([('xf0', k)] if f == 0 else [])))
        rd = q0_wread(n + 3)
        for qt in range(3):
            d = A.o(qt, f)
            c.append(mfma(d, A.F + (n % 4) * 4, A.xf(k, qt), d if k else None))
            if qt < len(rd): c.append(rd[qt])
            c += gaps[n * 3 + qt]
    c += stamp(2)
    c += q_conv(0) + q_conv(1)
    return c


QT_BASE = 8 * 8192


def kv_dma_addrs(e, vK, vV, t0, t1):
    e(salu('s_and_b32', 's54', S_W, 1))
    e(salu('s_lshl_b32', 's55', 's54', 1))
    e(valu('v_and_b32', t0, 3, V(0)))
    e(valu('v_xor_b32', t0, 's55', t0))
    e(valu('v_lshrrev_b32', t1, 4, V(0)))
    e(valu('v_lshl_add_u32', t0, t1, 2, t0))
    e(valu('v_lshlrev_b32', t0, 4, t0))
    e(valu('v_bfe_u32', t1, V(0), 2, 2))
    e(valu('v_lshl_add_u32', t0, t1, 8, t0))
    e(salu('s_lshl_b32', 's56', S_W, 11))
    e(salu('s_lshr_b32', 's57', S_W, 1))
    e(salu('s_lshl_b32', 's57', 's57', 2))
    e(salu('s_add_u32', 's57', 's57', 's54'))
    e(salu('s_lshl_b32', 's57', 's57', 10))
    e(valu('v_add_u32', vK, 's56', t0))
    e(valu('v_add_u32', vV, 's57', t0))


def k_dma(vK, t):
    if OPT.get('nokv') and t >= 4: return [Ins('s_nop 0', 'dma', tag=('K', t))]
    return [salu('s_add_u32', 'm0', 's56', KV_BASE + kslot(t) * 8192), salu('s_mov_b32', 's58', t * 8192),
            dma(vK, SRD_K, 's58', 0, tag=('K', t), pol='nt'), dma(vK, SRD_K, 's58', 1024, tag=('K', t), pol='nt')]


def v_dma(vV, t):
    if OPT.get('nokv') and t >= 4: return [Ins('s_nop 0', 'dma', tag=('V', t))]
    return [salu('s_add_u32', 'm0', 's57', KV_BASE + vslot(t) * 8192), salu('s_mov_b32', 's59', t * 8192),
            dma(vV, SRD_V, 's59', 0, tag=('V', t), pol='nt'), dma(vV, SRD_V, 's59', 2048, tag=('V', t), pol='nt')]


class A:
    vK, vV0, vV1, vH, vO = V(2), V(3), V(4), V(5), V(6)
    T0, T1 = V(1), V(7)
    E = 8
    TA, TB = 16, 17
    TS = 18
    L = 21
    LI = 24
    MX = 27
    NM = 28
    F = 40
    S = (56, 68)
    P = (80, 92)
    Q = 104
    O = 152
    X = 248
    vWd, vXd, vW0, vW1, vXr0, vXr1, vKd, vVd = V(8), V(9), V(10), V(11), V(12), V(13), V(14), V(15)
    vXr2, vXr3 = V(16), V(17)
    XF = 56
    @staticmethod
    def xf(k, qt): return A.XF + ((k % 2) * 3 + qt) * 4

    @staticmethod
    def q(qt, ks): return A.Q + (qt * 4 + ks) * 4
    @staticmethod
    def o(qt, dt): return A.O + (qt * 8 + dt) * 4
    @staticmethod
    def s(kt, qt): return A.S[kt] + qt * 4
    @staticmethod
    def p(par, qt): return A.P[par] + qt * 4
    @staticmethod
    def nm(qt): return A.NM + qt * 4


rare_variants = {}
rare_sites = []


def sm_groups(kt, par, site, variant, first, pending):
    g = []
    pend = list(pending)

    def E(q, i): return V(A.E + (q % 2) * 4 + i)
    def ex(q, i): return valu('v_exp_f32', E(q, i), V(A.s(kt, q) + i))
    def ad1(q): return valu('v_add_f32', V(A.TA), E(q, 0), E(q, 1))
    def cv1(q): return valu('v_cvt_pk_bf16_f32', V(A.p(par, q) + 2 * kt), E(q, 0), E(q, 1))
    def ad2(q): return valu('v_add_f32', V(A.TB), E(q, 2), E(q, 3))
    def cv2(q): return valu('v_cvt_pk_bf16_f32', V(A.p(par, q) + 2 * kt + 1), E(q, 2), E(q, 3))
    def ts(q): return valu('v_add_f32', V(A.TS + q), V(A.TA), V(A.TB))
    pend = pend + [None] * 3
    g = [[ex(0, 0)], [ex(0, 1)], [ex(0, 2)], [pend[0], pend[1]], [ex(0, 3)], [ad1(0), cv1(0)], [ex(1, 0)], [ad2(0), cv2(0)],
         [ex(1, 1)], [pend[2], ts(0)], [ex(1, 2)], [ad1(1)], [ex(1, 3)], [cv1(1)], [ex(2, 0)], [ad2(1), cv2(1)],
         [ex(2, 1)], [ts(1)], [ex(2, 2)], [ad1(2), cv1(2)], [ex(2, 3)], [ad2(2), ts(2)]]
    g = [[x for x in y if x is not None] for y in g]
    if variant is not None:
        g.append([valu('v_max3_f32', V(A.MX), V(A.TS), V(A.TS + 1), V(A.TS + 2)), valu('v_cmp_lt_f32', 'vcc', 's60', V(A.MX))])
        g.append([cv2(2), Ins(f's_cbranch_vccnz TR_{site}', 'branch', srd=['vcc']), label(f'RET_{site}')])
        if variant not in rare_variants:
            rare_variants[variant] = f'RARE_{len(rare_variants)}'
        if (site, rare_variants[variant]) not in rare_sites:
            rare_sites.append((site, rare_variants[variant]))
    else:
        g.append([cv2(2)])
        g.append([])
    if first:
        left = [valu('v_mov_b32', V(A.L + q), V(A.TS + q)) for q in range(3)]
    else:
        left = [valu('v_add_f32', V(A.L + q), V(A.L + q), V(A.TS + q)) for q in range(3)]
    g = [x for x in g]
    assert len(g) == 24
    return g, left


def xlane(op, r, tmp):
    return [valu('v_mov_b32', tmp, r), valu('v_permlane32_swap_b32', r, tmp), valu(op, r, r, tmp),
            valu('v_mov_b32', tmp, r), valu('v_permlane16_swap_b32', r, tmp), valu(op, r, r, tmp)]


def init_ops():
    ops = []
    for q in range(3):
        m = V(A.nm(q)); t = V(A.nm(q) + 1); s = A.s(0, q)
        ops.append(valu('v_max3_f32', m, V(s), V(s + 1), V(s + 2)))
        ops.append(valu('v_max_f32', m, m, V(s + 3)))
    xl = [xlane('v_max_f32', V(A.nm(q)), V(A.nm(q) + 1)) for q in range(3)]
    for k in range(6):
        for q in range(3):
            ops.append(xl[q][k])
    for q in range(3):
        ops.append(valu('v_ceil_f32', V(A.nm(q)), V(A.nm(q))))
    for q in range(3):
        ops.append(valu('v_sub_f32', V(A.nm(q)), 0, V(A.nm(q))))
    for q in range(3):
        s = A.s(0, q)
        for i in range(4):
            ops.append(valu('v_add_f32', V(s + i), V(A.nm(q)), V(s + i)))
    for q in range(3):
        for i in range(1, 4):
            ops.append(valu('v_mov_b32', V(A.nm(q) + i), V(A.nm(q))))
    return ops


def init_sb_ops():
    ops = []
    for q in range(3):
        s = A.s(1, q)
        for i in range(4):
            ops.append(valu('v_add_f32', V(s + i), V(A.nm(q)), V(s + i)))
    return ops


def linv_ops():
    ops = []
    for q in range(3):
        ops.append(valu('v_mov_b32', V(A.LI + q), V(A.L + q)))
    xl = [xlane('v_add_f32', V(A.LI + q), V(A.X + q)) for q in range(3)]
    for k in range(6):
        for q in range(3):
            ops.append(xl[q][k])
    for q in range(3):
        ops.append(valu('v_rcp_f32', V(A.LI + q), V(A.LI + q)))
    return ops


def epilogue_ops(sink, dst=None):
    ops = []
    n = 0
    for i in range(4):
        for qt in range(3):
            buf = A.X + (n % 2) * 4 if dst is None else dst(qt, i)
            n += 1
            for half in range(2):
                o = A.o(qt, 2 * i + half)
                for r in range(4):
                    ops.append(valu('v_mul_f32', V(o + r), V(A.LI + qt), V(o + r)))
                ops.append(valu('v_cvt_pk_bf16_f32', V(buf + 2 * half), V(o), V(o + 1)))
                ops.append(valu('v_cvt_pk_bf16_f32', V(buf + 2 * half + 1), V(o + 2), V(o + 3)))
            ops.extend(sink(qt, i, V(buf, 4)))
    return ops


def rare_code(variant, lab):
    kt, par, do_o, do_l, presc, adj = variant
    c = [label(lab), nop(16)]
    n = V(A.TA); f = V(A.TB); t = V(A.MX)
    for q in range(3):
        s = A.s(kt, q)
        c.append(valu('v_max3_f32', n, V(s), V(s + 1), V(s + 2)))
        c.append(valu('v_max_f32', n, n, V(s + 3)))
        c.extend(xlane('v_max_f32', n, t))
        c.append(valu('v_ceil_f32', n, n))
        c.append(valu('v_max_f32', n, 0, n))
        c.append(valu('v_sub_f32', f, 0, n))
        c.append(valu('v_exp_f32', f, f))
        for i in range(4):
            c.append(valu('v_sub_f32', V(s + i), V(s + i), n))
            if adj:
                so = A.s(1 - kt, q)
                c.append(valu('v_sub_f32', V(so + i), V(so + i), n))
            c.append(valu('v_sub_f32', V(A.nm(q) + i), V(A.nm(q) + i), n))
        if do_l:
            c.append(valu('v_mul_f32', V(A.L + q), f, V(A.L + q)))
        if do_o:
            for r in range(32):
                c.append(valu('v_mul_f32', V(A.o(q, 0) + r), f, V(A.o(q, 0) + r)))
        for (pp, off) in presc:
            r = V(A.p(pp, q) + off)
            lo, hi = V(A.E), V(A.E + 1)
            c.append(valu('v_lshlrev_b32', lo, 16, r))
            c.append(valu('v_and_b32', hi, 0xffff0000, r))
            c.append(valu('v_mul_f32', lo, f, lo))
            c.append(valu('v_mul_f32', hi, f, hi))
            c.append(valu('v_cvt_pk_bf16_f32', r, lo, hi))
        for i in range(4):
            c.append(valu('v_exp_f32', V(A.E + i), V(s + i)))
        c.append(valu('v_cvt_pk_bf16_f32', V(A.p(par, q) + 2 * kt), V(A.E), V(A.E + 1)))
        c.append(valu('v_cvt_pk_bf16_f32', V(A.p(par, q) + 2 * kt + 1), V(A.E + 2), V(A.E + 3)))
        c.append(valu('v_add_f32', V(A.E), V(A.E), V(A.E + 1)))
        c.append(valu('v_add_f32', V(A.E + 2), V(A.E + 2), V(A.E + 3)))
        c.append(valu('v_add_f32', V(A.TS + q), V(A.E), V(A.E + 2)))
    c.append(valu('v_exp_f32', V(A.E), V(A.s(1 - kt, 0))))
    c.append(nop(4))
    c.append(raw('s_setpc_b64 s[62:63]', 'branch'))
    return c


class AGen:
    def __init__(self, osink):
        self.pendL = []
        self.osink = osink

    @staticmethod
    def frag(nu):
        t, j = nu // 16 - 1, nu % 16
        if j % 2 == 0:
            return ('K', t + 1, j // 8, (j // 2) % 4) if t + 1 <= 63 else None
        tile, dt = (t - 1, 4 + (j - 1) // 2) if j < 8 else (t, (j - 9) // 2)
        return ('V', tile, dt, 0) if 0 <= tile <= 63 else None

    def read(self, nu):
        f = self.frag(nu)
        if f is None:
            return []
        kind, tile, a, b = f
        buf = A.F + (nu % 4) * 4
        if kind == 'K':
            return [ds_read('ds_read_b128', V(buf, 4), A.vK, KV_BASE + kslot(tile) * 8192 + a * 4096 + b * 256, tag=('f', nu))]
        va = A.vV0 if a % 2 == 0 else A.vV1
        off = KV_BASE + vslot(tile) * 8192 + (a >> 1) * 256
        return [ds_read('ds_read_b64_tr_b16', V(buf, 2), va, off, tag=('f', nu)),
                ds_read('ds_read_b64_tr_b16', V(buf + 2, 2), va, off + 4096, tag=('f', nu))]

    def iteration(self, t, more=None, bar=None):
        T = t + 1
        j16 = t % 16
        nu0 = 16 * (t + 1)
        has_qk = T <= 63
        newhead = has_qk and T % 16 == 0
        def loc(u):
            return f'p{u + 1}' if u <= 0 else (f't{u}' if u >= 62 else f'{u % 16}')
        pos = [dict(pre=[], m=None, w=[], rd=[], post=[]) for _ in range(48)]
        for m in range(48):
            j, qt = divmod(m, 3)
            f = self.frag(nu0 + j)
            if f is None:
                continue
            kind, tile, a, b = f
            fb = A.F + ((nu0 + j) % 4) * 4
            tags = [('f', nu0 + j)]
            if kind == 'K':
                d = A.s(a, qt)
                pos[m]['m'] = mfma(d, fb, A.q(qt, b), d if b else (None if newhead else A.nm(qt)))
                if newhead and t >= 0 and a == 0: tags.append(('q', T, b))
            else:
                d = A.o(qt, a)
                pos[m]['m'] = mfma(d, fb, A.p(tile % 2, qt), d if tile % 16 else None)
            if qt == 0:
                if m > 0 and pos[m - 1]['m'] is not None: pos[m - 1]['w'].append(wait(lg=tags))
                else: pos[m]['pre'].append(wait(lg=tags))
        for i in range(8):
            v = self.read(nu0 + 2 * i + 3)
            if v: pos[6 * i + 1]['rd'].append(v[1])
            pos[6 * i + 3]['rd'] += self.read(nu0 + 2 * i + 4)
            v = self.read(nu0 + 2 * i + 5)
            if v: pos[6 * i + 5]['rd'].append(v[0])
        if bar: pos[OPT.get('barpos', 6)]['w'] = list(bar) + pos[OPT.get('barpos', 6)]['w']
        extra = [[] for _ in range(48)]

        def spread(ops, lo, hi):
            n = len(ops)
            for k, o in enumerate(ops):
                extra[lo + (k * (hi - lo + 1)) // n].append(o)
        SH = 2

        def place(g, base):
            for k, ops in enumerate(g):
                gp = base + k - SH
                if k == 23 and ops and ops[-1].kind == 'label':
                    pos[base + 23]['br'] = ops[-2:]
                    ops = ops[:-2]
                if gp >= 0: pos[gp]['post'].extend(ops)
        if 0 <= t <= 63:
            par = t % 2
            var = (1, par, t % 16 != 0, True, ((par, 0), (par, 1)), t % 16 != 15)
            g1, self.pendL = sm_groups(1, par, f'Y{loc(t)}', var, False, self.pendL)
            place(g1, 0)
        early = [[valu('v_exp_f32', V(A.E + i), V(A.s(1, 0) + i))] for i in range(SH)] if has_qk else []
        par = T % 2
        if newhead:
            pre = list(self.pendL)
            if t >= 0: pre += linv_ops()
            spread(pre + init_ops(), 24, 35)
            g0, self.pendL = sm_groups(0, par, None, None, True, [])
            for k, g in enumerate(g0): extra[36 + k // 2].extend(g)
            extra[47].extend(init_sb_ops())
            for x in early: extra[47].extend(x)
        elif has_qk:
            var = (0, par, True, True, tuple((t % 2, k) for k in range(4)), True)
            g0, self.pendL = sm_groups(0, par, f'X{loc(t)}', var, False, self.pendL)
            place(g0, 24)
            for k, x in enumerate(early): pos[48 - SH + k]['post'].extend(x)
        elif t == 63:
            spread(self.pendL + linv_ops(), 24, 40); self.pendL = []
        if j16 == 0 and 0 < t < 64:
            eo = epilogue_ops(self.osink(t // 16 - 1))
            half = len(eo) // 2
            spread(eo[:half], 0, 25)
            spread(eo[half:], 27, 45)
        if more: spread(more, 3, 23)
        if has_qk and T % 16 == 15:
            for ks in range(4):
                for qt in range(3):
                    pos[27 + 6 * ks + qt]['rd'].append(ds_read('ds_read_b128', V(A.q(qt, ks), 4), A.vH, (qt * 4 + ks) * 1024, tag=('q', T + 1, ks)))
        out = []
        for m in range(48):
            out.extend(pos[m]['pre'])
            if pos[m]['m'] is not None:
                out.append(pos[m]['m'])
            out += pos[m]['w'] + pos[m]['rd']
            if 'br' in pos[m]:
                out += extra[m] + pos[m]['br'] + pos[m]['post']
            else:
                out += pos[m]['post'] + extra[m]
        return out


def a_setup(e):
    t0, t1 = A.T0, A.T1
    e(valu('v_lshrrev_b32', t0, 4, V(0)))
    e(valu('v_bfe_u32', t1, V(0), 3, 1))
    e(valu('v_lshlrev_b32', t1, 1, t1))
    e(valu('v_xor_b32', t0, t0, t1))
    e(valu('v_and_b32', t1, 3, V(0)))
    e(valu('v_lshl_add_u32', t0, t1, 2, t0))
    e(valu('v_bfe_u32', t1, V(0), 2, 2))
    e(valu('v_lshl_add_u32', t0, t1, 6, t0))
    e(valu('v_lshlrev_b32', A.vK, 4, t0))
    e(valu('v_bfe_u32', t0, V(0), 1, 1))
    e(valu('v_bfe_u32', t1, V(0), 4, 1))
    e(valu('v_lshl_add_u32', t0, t1, 1, t0))
    e(valu('v_bfe_u32', t1, V(0), 2, 2))
    e(valu('v_lshl_add_u32', t0, t1, 2, t0))
    e(valu('v_lshrrev_b32', t1, 4, V(0)))
    e(valu('v_lshl_add_u32', t0, t1, 6, t0))
    e(valu('v_lshlrev_b32', t0, 4, t0))
    e(valu('v_and_b32', t1, 1, V(0)))
    e(valu('v_lshl_add_u32', A.vV0, t1, 3, t0))
    e(valu('v_xor_b32', A.vV1, 32, A.vV0))
    e(salu('s_mul_i32', 's54', S_W, 12288))
    e(salu('s_add_u32', 's54', 's54', H_BASE))
    e(valu('v_lshlrev_b32', t0, 4, V(0)))
    e(valu('v_add_u32', A.vH, 's54', t0))
    e(valu('v_mov_b32', A.vO, t0))
    e(salu('s_mov_b32', 's60', THR))


class P:
    vKd, vVd, vWd, vX, vW0, vW1, vH0, vH1, vBw, vBr = V(2), V(3), V(4), V(5), V(6), V(7), V(8), V(9), V(10), V(11)
    T0, T1 = V(1), V(12)
    PK = 12
    F = 16
    ACC = 32
    XF = 128
    X = 152
    vX1 = V(200)
    vBr1 = V(201)
    vBw2 = V(202)

    @staticmethod
    def acc(qt, i, t): return P.ACC + ((qt * 4 + i) * 2 + t) * 4
    @staticmethod
    def x(M, qt, j): return P.X + ((M % 2) * 6 + qt * 2 + j) * 4
    @staticmethod
    def xf(k, qt): return P.XF + ((k % 2) * 3 + qt) * 4


def p_setup(e):
    t0, t1 = P.T0, P.T1
    kv_dma_addrs(e, P.vKd, P.vVd, t0, t1)
    e(salu('s_and_b32', 's54', S_W, 1))
    e(valu('v_and_b32', t0, 3, V(0)))
    e(valu('v_xor_b32', t0, 's54', t0))
    e(valu('v_lshrrev_b32', t1, 4, V(0)))
    e(valu('v_lshl_add_u32', t0, t1, 2, t0))
    e(valu('v_lshlrev_b32', t0, 4, t0))
    e(valu('v_bfe_u32', t1, V(0), 2, 2))
    e(valu('v_lshl_add_u32', t0, t1, 13, t0))
    e(salu('s_lshl_b32', 's54', S_W, 16))
    e(valu('v_add_u32', P.vWd, 's54', t0))
    e(salu('s_and_b32', 's54', 's34', 3))
    e(salu('s_lshl_b32', 's54', 's54', 1))
    e(salu('s_add_u32', 's54', 's54', 's35'))
    if not OPT.get('rot'): e(salu('s_mov_b32', 's54', 0))
    e(salu('s_lshl_b32', 's54', 's54', 7))
    for m in range(9):
        e(salu('s_sub_u32', 's55', 's54', 1152))
        e(salu('s_cmp_ge_u32', 's54', 1152))
        e(salu('s_cselect_b32', f's{40 + m}', 's55', 's54'))
        e(salu('s_add_u32', 's54', f's{40 + m}', 128))
    e(salu('s_mul_i32', 's54', S_W, 48 * 1152))
    e(valu('v_and_b32', t0, 7, V(0)))
    e(valu('v_lshrrev_b32', t1, 3, V(0)))
    e(valu('v_mul_u32_u24', t1, 1152, t1))
    e(valu('v_lshl_add_u32', t0, t0, 4, t1))
    e(valu('v_add_u32', P.vX, 's54', t0))
    e(valu('v_xor_b32', t0, 32, P.vX))
    e(valu('v_add_u32', P.vX1, 8 * 1152, t0))


def p_setup2(e):
    t0, t1 = P.T0, P.T1
    e(salu('s_lshl_b32', 's54', S_W, 12))
    e(salu('s_add_u32', 's54', 's54', XB_BASE))
    e(valu('v_and_b32', t0, 3, V(0)))
    e(valu('v_lshrrev_b32', t1, 3, V(0)))
    e(valu('v_lshl_add_u32', t0, t1, 2, t0))
    e(valu('v_lshlrev_b32', t0, 4, t0))
    e(valu('v_bfe_u32', t1, V(0), 2, 1))
    e(valu('v_xor_b32', t1, 1, t1))
    e(valu('v_mul_u32_u24', t1, 1024 + 64, t1))
    e(valu('v_xor_b32', t0, t0, t1))
    e(valu('v_add_u32', P.vBw, 's54', t0))
    e(valu('v_and_b32', t1, 1024, t1))
    e(valu('v_add_u32', P.vBw2, P.vBw, t1))
    e(valu('v_bfe_u32', t0, V(0), 3, 1))
    e(valu('v_lshlrev_b32', t0, 1, t0))
    e(valu('v_lshrrev_b32', t1, 4, V(0)))
    e(valu('v_xor_b32', t0, t0, t1))
    e(valu('v_and_b32', t1, 15, V(0)))
    e(valu('v_lshl_add_u32', t0, t1, 2, t0))
    e(valu('v_lshlrev_b32', t0, 4, t0))
    e(valu('v_add_u32', P.vBr, 's54', t0))
    e(valu('v_xor_b32', P.vBr1, 64, P.vBr))
    e(valu('v_and_b32', t0, 3, V(0)))
    e(valu('v_bfe_u32', t1, V(0), 4, 1))
    e(valu('v_xor_b32', t0, t0, t1))
    e(valu('v_bfe_u32', t1, V(0), 2, 2))
    e(valu('v_lshl_add_u32', t0, t1, 2, t0))
    e(valu('v_lshrrev_b32', t1, 4, V(0)))
    e(valu('v_lshl_add_u32', t0, t1, 7, t0))
    e(valu('v_lshlrev_b32', t0, 4, t0))
    e(valu('v_and_b32', t1, 1, V(0)))
    e(valu('v_lshl_add_u32', t0, t1, 3, t0))
    e(valu('v_add_u32', P.vW0, WQ_BASE, t0))
    e(valu('v_xor_b32', P.vW1, 8, P.vW0))
    e(salu('s_mul_i32', 's54', S_W, 12288))
    e(salu('s_add_u32', 's54', 's54', H_BASE))
    e(valu('v_lshlrev_b32', t0, 4, V(0)))
    e(valu('v_bfe_u32', t1, V(0), 4, 1))
    e(valu('v_lshl_add_u32', t0, t1, 3, t0))
    e(valu('v_add_u32', P.vH0, 's54', t0))
    e(valu('v_xor_b32', P.vH1, 8, P.vH0))
    e(salu('s_mov_b32', 's61', CSCALE))


def wq_dma(k):
    h, j = divmod(k, 18)
    so = (j & 1) * 262144 + h * 256
    pol = OPT.get('wqpol', '')
    if OPT.get('rot') == 2 and h == 0:
        a66 = [salu('s_mov_b32', 's66', j * 262144)]
    else:
        a66 = [salu('s_lshl_b32', 's66', f's{40 + j // 2}', 12), salu('s_add_u32', 's66', 's66', so)]
    return [salu('s_add_u32', 'm0', 's56', WQ_BASE + WSLOT[k] * 8192)] + a66 + [dma(P.vWd, SRD_WQ, 's66', 0, tag=('W', k), pol=pol),
            salu('s_add_u32', 's67', 's66', 32768 - 1024), dma(P.vWd, SRD_WQ, 's67', 1024, tag=('W', k), pol=pol)]


def x_load(M, idx):
    qt, j = divmod(idx, 2)
    so = f's{40 + M % 9}'
    pre = []
    if M >= 11:
        pre.append(wait(lg=('xw', M - 2, idx)))
    if OPT.get('rot') == 2 and M < 9:
        pre.append(salu('s_mov_b32', 's64', M * 128 + qt * 18432))
        so = 's64'
    elif qt:
        pre.append(salu('s_add_u32', 's64', so, qt * 18432))
        so = 's64'
    return pre + [buf_load(V(P.x(M, qt, j), 4), P.vX1 if j else P.vX, SRD_X, so, 0, tag=('X', M, idx), pol=OPT.get('xpol', ''))]


def x_write(M, idx):
    qt, j = divmod(idx, 2)
    va, off = ((P.vBw, 0), (P.vBw, 2048), (P.vBw2, 1024))[qt]
    return [wait(vm=('X', M, idx)), ds_write('ds_write_b128', va, V(P.x(M, qt, j), 4), off + j * 512, tag=('xw', M, idx))]


def x_read_even(M, qt):
    return [ds_read('ds_read_b128', V(P.xf(0, qt), 4), P.vBr1, (1024, 3072, 3072)[qt], tag=('xf', 2 * M))]


def x_read_odd(M):
    return [ds_read('ds_read_b128', V(P.xf(1, qt), 4), P.vBr, (0, 2048, 1024)[qt], tag=('xf', 2 * M + 1)) for qt in range(3)]


def q_handoff_tile(qt, i, t, n):
    a = P.acc(qt, i, t)
    pk = P.PK + (n % 2) * 2
    ops = [valu('v_mul_f32', V(a + r), 's61', V(a + r)) for r in range(4)]
    ops.append(valu('v_cvt_pk_bf16_f32', V(pk), V(a), V(a + 1)))
    ops.append(valu('v_cvt_pk_bf16_f32', V(pk + 1), V(a + 2), V(a + 3)))
    ops.append(ds_write('ds_write_b64', P.vH0 if t == 0 else P.vH1, V(pk, 2), (qt * 4 + i) * 1024, tag='hw'))
    return ops


class G2:
    def __init__(self, name, cset, order, o, acc, F, PK, vT0, vT1, vS, slot_off, sstore):
        self.name, self.cset, self.order, self.o = name, cset, order, o
        self.ACC, self.F, self.PK, self.vT0, self.vT1, self.vS = acc, F, PK, vT0, vT1, vS
        self.slot_off = slot_off
        self.sstore = sstore
        self.fr = [(u, kb, nt) for u in range(36) for kb in range(4) for nt in range(2)]

    def acc(self, qt, nt): return self.ACC + (qt * 2 + nt) * 4

    def dma(self, u, vD):
        p, hi = divmod(u, 4)
        so = self.order[hi] * 128 * 1152 + self.cset * 576
        pol = OPT.get('wopol', '')
        return [salu('s_add_u32', 'm0', 's56', self.slot_off(u)[0]), salu('s_add_u32', 's66', f's{40 + p}', so),
                dma(vD, SRD_WO, 's66', 0, tag=('U', self.name, u), pol=pol),
                salu('s_add_u32', 's67', 's66', 18432 - 1024), dma(vD, SRD_WO, 's67', 1024, tag=('U', self.name, u), pol=pol)]

    def rd(self, n):
        if n >= len(self.fr):
            return []
        u, kb, nt = self.fr[n]
        buf = self.F + (n % 4) * 4
        va = self.vT0 if nt == 0 else self.vT1
        off = self.slot_off(u)[1] + kb * 2048
        return [ds_read('ds_read_b64_tr_b16', V(buf, 2), va, off, tag=('gf', n)),
                ds_read('ds_read_b64_tr_b16', V(buf + 2, 2), va, off + 1024, tag=('gf', n))]

    def start(self):
        return self.rd(0) + self.rd(1) + self.rd(2)

    def unit(self, u, atoms=(), otag=None):
        out = []
        q = list(atoms)
        if getattr(self, 'pend', None):
            q.insert(len(q) // 2, self.pend.pop(0))
        p, hi = divmod(u, 4)
        h = self.order[hi]
        for kb in range(4):
            for nt in range(2):
                n = u * 8 + kb * 2 + nt
                tags = [('gf', n)]
                if otag and nt == 0:
                    tags.append(otag(kb))
                out.append(wait(lg=tags))
                for qt in range(3):
                    d = self.acc(qt, nt)
                    out.append(mfma(d, self.F + (n % 4) * 4, self.o(h, qt, kb), None if (hi == 0 and kb == 0) else d))
                    if qt == 0:
                        out.extend(self.rd(n + 3))
                    elif q:
                        out.extend(q.pop(0))
        for x in q:
            out.extend(x)
        if hi == 3:
            sts = []
            for qt in range(3):
                pk = self.PKS[qt]
                for t2 in range(2):
                    a = self.acc(qt, t2)
                    out.append(valu('v_cvt_pk_bf16_f32', V(pk + 2 * t2), V(a), V(a + 1)))
                    out.append(valu('v_cvt_pk_bf16_f32', V(pk + 2 * t2 + 1), V(a + 2), V(a + 3)))
                st = [] if OPT.get('nopst') else [buf_store(V(pk, 4), self.vS, SRD_WS, self.sstore, qt * 1024, tag=('st', self.name, p), pol=OPT.get('ppol', 'sc1').replace('+', ' '))]
                if qt == 2:
                    st += [salu('s_add_u32', self.sstore, self.sstore, 3072), salu('s_sub_u32', 's55', self.sstore, 27648),
                           salu('s_cmp_ge_u32', self.sstore, 's75'), salu('s_cselect_b32', self.sstore, 's55', self.sstore)]
                sts.append(st)
            if p == 8 or OPT.get('stburst'):
                for st in sts:
                    out.extend(st)
            else:
                self.pend = sts
        return out


def g2_setup(e, cset, vT0, vT1, vS, base, t0, t1, sstore):
    e(valu('v_bfe_u32', t0, V(0), 1, 1))
    e(valu('v_bfe_u32', t1, V(0), 4, 1))
    e(valu('v_lshl_add_u32', t0, t1, 1, t0))
    e(valu('v_lshrrev_b32', t1, 2, V(0)))
    e(valu('v_lshl_add_u32', t0, t1, 2, t0))
    e(valu('v_lshlrev_b32', t0, 4, t0))
    e(valu('v_and_b32', t1, 1, V(0)))
    e(valu('v_lshl_add_u32', t0, t1, 3, t0))
    e(valu('v_add_u32', vT0, base, t0))
    e(valu('v_xor_b32', vT1, 32, vT0))
    e(valu('v_lshlrev_b32', vS, 4, V(0)))
    e(salu('s_mul_i32', sstore, S_ID, 221184))
    e(salu('s_mul_i32', 's54', S_W, 2 * 27648))
    e(salu('s_add_u32', sstore, sstore, 's54'))
    e(salu('s_add_u32', sstore, sstore, PART_WS_OFF + cset * 27648))
    e(salu('s_add_u32', 's75', sstore, 27648))
    e(salu('s_and_b32', 's54', 's34', 3 if OPT.get('prot', 1) else 0))
    e(salu('s_mul_i32', 's55', 's54', 2 * 3072))
    e(salu('s_add_u32', sstore, sstore, 's55'))
    if cset == 1:
        e(salu('s_lshl_b32', 's54', 's54', 7))
        for m in range(9):
            e(salu('s_sub_u32', 's55', 's54', 576))
            e(salu('s_cmp_ge_u32', 's54', 576))
            e(salu('s_cselect_b32', f's{40 + m}', 's55', 's54'))
            e(salu('s_add_u32', 's54', f's{40 + m}', 64))


def wo_vd(e, vD, t0, t1):
    e(valu('v_bfe_u32', t1, V(0), 4, 1))
    e(valu('v_lshlrev_b32', t1, 1, t1))
    e(valu('v_and_b32', t0, 3, V(0)))
    e(valu('v_xor_b32', t0, t0, t1))
    e(valu('v_lshlrev_b32', t0, 4, t0))
    e(valu('v_lshrrev_b32', t1, 2, V(0)))
    e(valu('v_mul_u32_u24', t1, 1152, t1))
    e(valu('v_add_u32', t0, t0, t1))
    e(salu('s_mul_i32', 's54', S_W, 32 * 1152))
    e(valu('v_add_u32', vD, 's54', t0))


A_RING = [0, 1, 2, 4, 3, 5, 6, 7]
P_PARK = {0: 208, 1: 160, 2: 112, 3: 64}
A_PARK = {3: 56, 2: A.Q, 0: 152, 1: 200}


def h_read(base, vaddr, tag):
    return [ds_read('ds_read_b128', V(base + (qt * 4 + i) * 4, 4), vaddr, (qt * 4 + i) * 1024, tag=(tag, i)) for i in range(4) for qt in range(3)]


def h_write(base, vaddr, tag):
    return [ds_write('ds_write_b128', vaddr, V(base + (qt * 4 + i) * 4, 4), (qt * 4 + i) * 1024, tag=tag) for i in range(4) for qt in range(3)]


def split_atoms(ops):
    at, cur = [], []
    for o in ops:
        cur.append(o)
        if o.kind in ('dma', 'vm'):
            at.append(cur); cur = []
    assert not cur
    return at


def p_wread(n):
    k, f = divmod(n, 8)
    i, t = f >> 1, f & 1
    buf = P.F + (n % 4) * 4
    va = P.vW0 if t == 0 else P.vW1
    off = WSLOT[k] * 8192 + i * 256
    return [ds_read('ds_read_b64_tr_b16', V(buf, 2), va, off, tag=('pf', n)),
            ds_read('ds_read_b64_tr_b16', V(buf + 2, 2), va, off + 1024, tag=('pf', n))]


def reduce_frag(ld, acc, vS, vO, s_src, s_dst, t0, t1, tagp):
    loads = []
    for hg in range(8):
        loads.append(salu('s_add_u32', 's64', s_src, hg * 221184))
        loads.append(buf_load(V(ld + 4 * hg, 4), vS, SRD_WS, 's64', 0, tag=(tagp, hg), pol='sc1'))
    comp = []
    for hg in range(8):
        comp.append(wait(vm=(tagp, hg)))
        for r in range(4):
            src = V(ld + 4 * hg + r)
            if hg == 0:
                comp.append(valu('v_lshlrev_b32', V(acc + 2 * r), 16, src))
                comp.append(valu('v_and_b32', V(acc + 2 * r + 1), 0xffff0000, src))
            else:
                comp.append(valu('v_lshlrev_b32', t0, 16, src))
                comp.append(valu('v_and_b32', t1, 0xffff0000, src))
                comp.append(valu('v_add_f32', V(acc + 2 * r), V(acc + 2 * r), t0))
                comp.append(valu('v_add_f32', V(acc + 2 * r + 1), V(acc + 2 * r + 1), t1))
    for r in range(4):
        comp.append(valu('v_cvt_pk_bf16_f32', V(ld + r), V(acc + 2 * r), V(acc + 2 * r + 1)))
    comp.append(buf_store(V(ld, 2), vO, SRD_OUT, s_dst, 0))
    comp.append(buf_store(V(ld + 2, 2), vO, SRD_OUT, s_dst, 32))
    return loads, comp


SRD_OUT, SRD_DBG = 's[8:11]', 's[12:15]'


def red_setup(e, vO, t0):
    e(salu('s_mov_b32', 's8', 's4')); e(salu('s_mov_b32', 's9', 's5'))
    e(salu('s_mov_b32', 's10', 16 * 192 * 1152 * 2)); e(salu('s_mov_b32', 's11', 0x20000))
    e(salu('s_mov_b32', 's12', 's72')); e(salu('s_mov_b32', 's13', 's73'))
    e(salu('s_mov_b32', 's14', 256)); e(salu('s_mov_b32', 's15', 0x20000))
    e(salu('s_and_b32', 's54', 's35', 3))
    e(salu('s_lshr_b32', 's55', 's35', 2))
    e(salu('s_mul_i32', 's68', 's34', 8 * 221184))
    e(salu('s_mul_i32', 's64', 's54', 2 * 27648))
    e(salu('s_add_u32', 's68', 's68', 's64'))
    e(salu('s_mul_i32', 's64', 's55', 27648))
    e(salu('s_add_u32', 's68', 's68', 's64'))
    if PART_WS_OFF: e(salu('s_add_u32', 's68', 's68', PART_WS_OFF))
    e(salu('s_mul_i32', 's69', 's37', 192 * 2304))
    e(salu('s_mul_i32', 's64', 's54', 48 * 2304))
    e(salu('s_add_u32', 's69', 's69', 's64'))
    e(salu('s_mul_i32', 's64', 's36', 1152))
    e(salu('s_add_u32', 's69', 's69', 's64'))
    e(salu('s_mul_i32', 's64', 's55', 576))
    e(salu('s_add_u32', 's69', 's69', 's64'))
    e(salu('s_lshl_b32', 's70', 's34', 2))
    e(valu('v_and_b32', vO, 15, V(0)))
    e(valu('v_mul_u32_u24', vO, 2304, vO))
    e(valu('v_lshrrev_b32', t0, 4, V(0)))
    e(valu('v_lshl_add_u32', vO, t0, 3, vO))


def signal(lab, t0, t1):
    return [salu('s_cmp_eq_u32', S_WAVE, 4), raw(f's_cbranch_scc0 {lab}', 'branch'),
            salu('s_lshl_b32', 's64', 's35', 2), salu('s_lshl_b32', 's64', 1, 's64'),
            valu('v_mov_b32', t0, 's64'), valu('v_mov_b32', t1, 0), raw('s_mov_b64 exec, 1'),
            Ins(f'buffer_atomic_add {t0}, {t1}, {SRD_DBG}, s70 offen sc1', 'salu', rd=[t0.n, t1.n]),
            raw('s_mov_b64 exec, -1'), label(lab)]


def poll(lab, level, t0, t1):
    c = [valu('v_mov_b32', t1, 0), salu('s_mov_b32', 's65', 0), label(lab),
         raw(f'buffer_load_dword {t0}, {t1}, {SRD_DBG}, s70 offen sc1'), raw('s_waitcnt vmcnt(0)'),
         valu('v_readfirstlane_b32', 's64', t0)]
    if level == 1:
        c += [nop(2), salu('s_lshr_b32', 's66', 's64', 1), salu('s_or_b32', 's64', 's64', 's66'), salu('s_and_b32', 's64', 's64', 0x11111111),
              salu('s_cmp_eq_u32', 's64', 0x11111111)]
    else:
        c += [nop(2), salu('s_cmp_eq_u32', 's64', 0x22222222)]
    c += [raw(f's_cbranch_scc1 {lab}_ok', 'branch'), salu('s_add_u32', 's65', 's65', 1), raw('s_sleep 2'),
          salu('s_cmp_lt_u32', 's65', 1 << 22), raw(f's_cbranch_scc1 {lab}', 'branch'), label(f'{lab}_ok')]
    return c


def frag_offsets(sidx):
    return [salu('s_lshl_b32', 's66', sidx, 10), salu('s_add_u32', 's66', 's66', 's68'),
            salu('s_mul_i32', 's64', sidx, 43), salu('s_lshr_b32', 's64', 's64', 7),
            salu('s_mul_i32', 's65', 's64', 3), salu('s_sub_u32', 's65', sidx, 's65'),
            salu('s_mul_i32', 's65', 's65', 16 * 2304), salu('s_lshl_b32', 's64', 's64', 6),
            salu('s_add_u32', 's67', 's69', 's65'), salu('s_add_u32', 's67', 's67', 's64')]


def build_k1():
    INK = OPT.get('inred', 1)
    head = []
    e = head.append
    common_prologue(e)
    head += q0_phase()
    e(salu('s_cmp_ge_u32', S_WAVE, 4))
    e(raw('s_cbranch_scc0 L_A', 'branch'))
    e(raw('s_branch L_P', 'branch'))

    names = [('IT', t) for t in range(-1, 64)]
    quota = {n: 0 for n in names}
    T0 = 0
    QE, QN, QC = OPT.get('qe', 9), OPT.get('qn', 9), OPT.get('qc', 9)
    def fill(ts, total, fixed):
        rest = [t for t in ts if t not in fixed]
        rem = total - sum(fixed.values())
        for i, t in enumerate(rest):
            quota[('IT', t)] = (rem * (i + 1)) // len(rest) - (rem * i) // len(rest)
        for t, v in fixed.items():
            quota[('IT', t)] = v
    if OPT.get('kal', 0):
        for t in range(0, 45): quota[('IT', t)] = 8
        for t in (2, 4, 6, 8, 10, 18, 23, 34, 39): quota[('IT', t)] = 16
    else:
        fill(range(0, 14), 150, {0: 8})
        fill(range(14, 30), 144, {15: QN, 16: QE, 28: QC, 29: QC})
        fill(range(30, 46), 138, {31: QN, 32: QE, 44: QC, 45: 0})
    start = {}
    c = 144
    for n in names:
        start[n] = c; c += quota[n]
    assert c == 576
    iv_of = {}
    for idx, n in enumerate(names):
        for fr in range(start[n], start[n] + quota[n]):
            iv_of[fr] = idx
    hdead = {1: ('IT', 13), 2: ('IT', 29), 3: ('IT', 45)}
    for hq in (1, 2): assert start[hdead[hq]] + quota[hdead[hq]] >= 144 * hq + 150
    front = {}

    NG = 576 * 3
    gaps = [[] for _ in range(NG + 1)]

    ZF = OPT.get('zone', 62)
    pref = [False] * (NG + 64)
    for n in names:
        if n[0] == 'IT':
            for g in range(start[n] * 3, start[n] * 3 + (quota[n] * 3 * ZF) // 100):
                pref[g] = True
        else:
            for g in range(start[n] * 3, (start[n] + quota[n]) * 3):
                pref[g] = True

    def chain(atoms, lo, hi, zone=True):
        n = len(atoms)
        Z = [g for g in range(lo, hi + 1) if pref[g]] if zone else []
        if len(Z) * 2 < n or not Z:
            Z = list(range(lo, hi + 1))
        for a, at in enumerate(atoms):
            g = Z[(a * (len(Z) - 1)) // max(n - 1, 1)]
            gaps[min(g, NG)].append(at)
    for k in range(18, 72):
        M = k // 2
        g0 = k * 24
        at = []
        if k % 2 == 0:
            at.append(x_read_odd(M))
            lw = [x_write(M + 1, i) for i in range(3)] if M + 1 < 36 else []
            ll = [x_load(M + 2, i) for i in range(3, 6)] if M + 2 < 36 else []
            while lw or ll:
                if ll: at.append(ll.pop(0))
                if lw: at.append(lw.pop(0))
        elif M + 1 < 36:
            ll = [x_load(M + 3, i) for i in range(3)] if M + 3 < 36 else [[], [], []]
            at += [x_write(M + 1, 3), x_read_even(M + 1, 0) + x_read_even(M + 1, 1), ll[0], x_write(M + 1, 4), ll[1], x_write(M + 1, 5),
                   x_read_even(M + 1, 2), ll[2]]
        if OPT.get('kal', 0) and any(start[n] == k * 8 and quota[n] for n in names):
            front[k * 8] = at
        else:
            chain(at, g0 + 1, g0 + 21)
        if k % 18 == 17:
            cv = []
            nn = 0
            for f in range(8):
                for qt in range(3):
                    o = q_handoff_tile(qt, f >> 1, f & 1, nn); nn += 1
                    cv += [o[:4], o[4:]]
            chain(cv, g0 + 6, g0 + 39, zone=False)
        if k in (52, 70):
            hr = [valu('v_and_b32', P.T0, ~15, P.vH0)] + h_read(P_PARK[0 if k == 52 else 1], P.T0, ('po', k))
            chain([hr[:4], hr[4:7], hr[7:10], hr[10:]], g0 + 8, g0 + 20)

    pslot = {}
    free = list(range(6))
    for u in range(36):
        if u == 13: free += [6, 7]
        pslot[u] = None
    seq = list(range(6))
    gA = G2('A', 0, [3, 2, 0, 1], lambda h, qt, i: A_PARK[h] + (qt * 4 + i) * 4, acc=8, F=32, PK=0, vT0=V(2), vT1=V(3), vS=V(4),
            slot_off=lambda u: (A_RING[u % 8] * 8192, A_RING[u % 8] * 8192), sstore='s74')
    gP = G2('P', 1, [0, 1, 2, 3], lambda h, qt, i: P_PARK[h] + (qt * 4 + i) * 4, acc=32, F=16, PK=0, vT0=V(6), vT1=V(7), vS=V(5),
            slot_off=lambda u: (WQ_BASE + pslot[u] * 8192, pslot[u] * 8192), sstore='s74')
    gA.PKS = [48, 52, 248]
    gP.PKS = [56, 60, 12]
    p_issue = {}
    fl = list(range(6))
    nxt = 0
    for u in range(5):
        pslot[u] = fl.pop(0); nxt += 1
    for sv in range(36):
        if sv >= 1:
            fl.append(pslot[sv - 1])
        if sv == 7:
            fl += [6, 7]
        lst = []
        while fl and nxt < 36 and len(lst) < 2:
            pslot[nxt] = fl.pop(0); lst.append(nxt); nxt += 1
        p_issue[sv] = lst

    w_issue = {}
    fl = [3]
    wn = 18
    for idx in range(len(names)):
        if idx == 1: fl += [0, 1, 2]
        for k in range(18, wn):
            if iv_of[k * 8 + 7] == idx - 1:
                fl.append(WSLOT[k])
        lst = []
        while wn < 72 and fl:
            WSLOT[wn] = fl.pop(0); lst.append(wn); wn += 1
        w_issue[idx] = lst

    pc = [label('L_P')]
    if OPT.get('prioP'): pc.append(salu('s_setprio', OPT['prioP']))
    pc.append(salu('s_mul_i32', 's54', S_W, 6144))
    pc.append(salu('s_add_u32', 's54', 's54', QT_BASE))
    pc.append(valu('v_lshlrev_b32', P.T0, 4, V(0)))
    pc.append(valu('v_add_u32', P.T0, 's54', P.T0))
    for i in range(2):
        for qt in range(3):
            pc.append(ds_write('ds_write_b128', P.T0, V(A.q(qt, i), 4), (qt * 2 + i) * 1024, tag='qt'))
    pc.append(wait(vm=[('K0', 0)], lg='qt'))
    pc.append(barrier())
    p_setup(pc.append)
    for i in range(6): pc.extend(x_load(9, i))
    for i in range(6): pc.extend(x_load(10, i))
    p_setup2(pc.append)
    vHl = V(8)
    published = set()
    pc.append(salu('s_mul_i32', 's75', 's37', 36864))
    pc.append(salu('s_mul_i32', 's55', S_W, 9216))
    pc.append(salu('s_add_u32', 's75', 's75', 's55'))
    pc.append(salu('s_sub_u32', 's75', 's75', 9 * 128))
    pc.append(valu('v_lshlrev_b32', V(203), 7, V(0)))
    pc.append(valu('v_mov_b32', V(204), 0x7fffff00))
    pc.append(valu('v_cmp_gt_u32', 'vcc', 9, V(0)))
    pc.append(valu('v_cndmask_b32', V(203), V(204), V(203), 'vcc'))
    vD = V(4)
    rd_next = 144
    for idx, n in enumerate(names):
        side = []
        need = []
        post = []
        lg = None
        t = n[1] if n[0] == 'IT' else None
        f0, q = start[n], quota[n]
        for k in w_issue[idx]:
            side += split_atoms(wq_dma(k))
        newpub = set()
        if idx + 1 < len(names):
            n2 = names[idx + 1]
            newpub = {fr // 8 for fr in range(start[n2], start[n2] + quota[n2])}
            need += [('W', k) for k in sorted(newpub)]
        if n in hdead.values():
            lg = 'hw'
        if n[0] == 'IT':
            if 0 <= t and t + 4 <= 63:
                side += split_atoms(k_dma(P.vKd, t + 4))
            if 2 <= t and t + 2 <= 63:
                side += split_atoms(v_dma(P.vVd, t + 2))
            if 4 <= t + 1 <= 63:
                need.append(('V', t + 1))
            if 4 <= t + 3 <= 63:
                need.append(('K', t + 3))
            if OPT.get('wot', 'p') == 'p' and t in range(3, 35, 4):
                side.append([salu('s_add_u32', 's75', 's75', 9 * 128), buf_load(V(204), V(203), SRD_WO, 's75', 0)])
            if t == -1:
                need += [('V0', 0), ('K0', 2), ('V0', 2)]
            if t == T0 - 1:
                for i in range(4): post.extend(x_write(9, i))
                post.extend(x_read_even(9, 0) + x_read_even(9, 1) + x_write(9, 4) + x_write(9, 5) + x_read_even(9, 2))
                for i in range(3): post.extend(x_load(11, i))
            if t == 45:
                for at in gaps[NG]: post.extend(at)
            if t == 47:
                wo_vd(post.append, vD, P.T0, V(12))
                g2_setup(post.append, 1, gP.vT0, gP.vT1, gP.vS, WQ_BASE, P.T0, V(12), 's74')
                post.append(valu('v_and_b32', vHl, ~15, P.vH0))
            if t == 50:
                post += h_read(P_PARK[2], vHl, ('po', t)); lg = 'all'
            if 54 <= t <= 58:
                post += gP.dma(t - 54, vD)
            if t == 59:
                need += [('U', 'P', 0), ('U', 'P', 1)]
            if t == 60:
                post += gA.dma(0, vD)
            if t in (61, 62, 63):
                v = t - 61
                if t == 61:
                    post += gP.start()
                at = []
                for u in p_issue[v]:
                    at += split_atoms(gP.dma(u, vD))
                for u in ([1], [2, 3], [4, 5])[v]: at += split_atoms(gA.dma(u, vD))
                post += gP.unit(v, at)
                need.append(('U', 'P', v + 2))
                if t == 63:
                    need += [('U', 'A', 0), ('U', 'A', 1)]
        boost = OPT.get('boost') and n[0] == 'IT' and t in (15, 16, 31, 32)
        if boost: pc.append(salu('s_setprio', 2))
        if q:
            while rd_next < min(f0 + 3, 576) and rd_next // 8 in published:
                pc.extend(p_wread(rd_next)); rd_next += 1
            tgt = {}
            if OPT.get('kal', 0):
                if OPT.get('fprio'): pc.append(salu('s_setprio', 2))
                for at in front.get(f0, []) + side: pc.extend(at)
                if OPT.get('fprio'): pc.append(salu('s_setprio', OPT.get('mprio', 0)))
            else:
                if side:
                    pc.extend(side.pop(0))
                ng = max(1, (q * 3 * ZF) // 100)
                for a, at in enumerate(side):
                    tgt.setdefault((a * ng) // len(side), []).append(at)
            for fr in range(f0, f0 + q):
                k, f = divmod(fr, 8)
                i, tt = f >> 1, f & 1
                pc.append(wait(lg=[('pf', fr)] + ([('xf', k)] if f == 0 else [])))
                rd = []
                if rd_next == fr + 3 and rd_next < 576 and rd_next // 8 in published:
                    rd = p_wread(rd_next); rd_next += 1
                for qt in range(3):
                    d = P.acc(qt, i, tt)
                    pc.append(mfma(d, P.F + (fr % 4) * 4, P.xf(k, qt), d if k % 18 else None))
                    if qt < len(rd): pc.append(rd[qt])
                    for at in gaps[fr * 3 + qt]:
                        pc.extend(at)
                    for at in tgt.get((fr - f0) * 3 + qt, []):
                        pc.extend(at)
                if OPT.get('pfine') == t and fr - f0 < 10: pc.extend(stamp(fr - f0 + 2))
        else:
            for at in side:
                pc.extend(at)
        pc.extend(post)
        if boost: pc.append(salu('s_setprio', 0))
        pc.append(wait(vm=need, lg=lg))
        pc.append(barrier())
        published |= newpub
        if OPT.get('novm') and n == ('IT', 0): novm0 = len(pc)
        if OPT.get('novm') and n == ('IT', 52):
            for x in pc[novm0:]:
                if x.kind in ('dma', 'vm'):
                    kk = 'kv' if x.tag and x.tag[0] in 'KV' else ('w' if x.tag and x.tag[0] == 'W' else 'x')
                    if OPT['novm'] == 'all' or kk in OPT['novm'].split('+'):
                        x.text = 's_nop 0'
        st = {('IT', -1): 3, ('IT', 0): 4, ('IT', 16): 5, ('IT', 32): 6, ('IT', 48): 7, ('IT', 63): 8}
        if OPT.get('stpro'):
            st = {('PRO', k): i + 1 for i, k in enumerate([0, 1, 3, 5, 7, 9, 11, 13, 15, 17])}; st[('HND', 0)] = 11
        if OPT.get('stit') is not None:
            st = {('IT', OPT['stit'] + i): i + 1 for i in range(11)}
        if 'stg' in OPT: st = {}
        if 'pfine' in OPT: st = {('IT', OPT['pfine'] - 1): 1}
        if n in st:
            pc.extend(stamp(st[n]))
    nost = OPT.get('stpro') or 'stit' in OPT or 'stg' in OPT or 'pfine' in OPT
    for g in range(33):
        v = g + 3
        at = []
        need = []
        for u in p_issue[v]:
            at += split_atoms(gP.dma(u, vD))
        if g == 0:
            at += split_atoms(gA.dma(6, vD))
        if g + 7 < 36:
            at += split_atoms(gA.dma(g + 7, vD))
        if v + 2 < 36:
            need.append(('U', 'P', v + 2))
        need.append(('U', 'A', g + 2 if g < 32 else 35))
        lg = None
        otag = None
        if g == 0:
            pc += h_read(P_PARK[3], vHl, 'po3')
            otag = lambda kb: ('po3', kb)
            hw = h_write(P_PARK[0], vHl, 'hw0'); at = [[x] for x in hw] + at; lg = 'hw0'
        if g == 2:
            hw = h_write(P_PARK[1], vHl, 'hw1'); at = [[x] for x in hw] + at; lg = 'hw1'
        if g == 5 and INK:
            rs = []; red_setup(rs.append, V(9), V(1)); at = [rs[i:i + 4] for i in range(0, len(rs), 4)] + at
        if g == 30 and INK:
            need.append(('st', 'P', 6))
        if g == 31 and INK:
            pc += signal('L_sig1', V(1), V(2))
        pc += gP.unit(v, at, otag)
        pc.append(wait(vm=need, lg=lg))
        pc.append(barrier())
        if 'stg' in OPT and 0 <= g - OPT['stg'] < 11: pc.extend(stamp(g - OPT['stg'] + 1))
    if not nost: pc.extend(stamp(9))
    if INK:
        pc += poll('L_poll1', 1, V(1), V(2))
        NF = 6
        lc = []
        for r in range(NF):
            pre = [salu('s_add_u32', 's71', S_W, 4 * r), salu('s_min_u32', 's71', 's71', 20)] + frag_offsets('s71') + \
                  [salu('s_mov_b32', f's{40 + r}', 's67')]
            ld, cp = reduce_frag(64 + 32 * r, 16, gP.vS, V(9), 's66', f's{40 + r}', V(1), V(2), ('r1', r))
            lc.append((pre + ld, cp))
        for r in range(NF):
            pc += lc[r][0]
        for r in range(NF):
            pc += lc[r][1]
        pc.append(wait(vm=('st', 'P', 8)))
        pc.append(barrier())
        if not nost: pc.extend(stamp(10))
        pc += signal('L_sig2', V(1), V(2))
        pc += [salu('s_cmp_ge_u32', S_W, 2), raw('s_cbranch_scc1 L_P_end', 'branch')]
        pc += poll('L_poll2p', 2, V(1), V(2))
        pc += [salu('s_add_u32', 's71', S_W, 25)] + frag_offsets('s71')
        ld, cp = reduce_frag(64, 16, gP.vS, V(9), 's66', 's67', V(1), V(2), 'r2')
        pc += ld + cp
        pc.append(label('L_P_end'))
    if not nost: pc.extend(stamp(11))
    pc.extend(stamp_out())
    pc.append(raw('s_endpgm', 'branch'))
    resolve_waits(head + pc)
    while hazards(head + pc):
        pass

    def osink(h):
        def sink(qt, i, buf):
            return [ds_write('ds_write_b128', A.vH, buf, (qt * 4 + i) * 1024, tag='ow')]
        return sink
    ag = AGen(osink)
    apro = [label('L_A')]
    e = apro.append
    if OPT.get('prioA', 1): e(salu('s_setprio', OPT.get('prioA', 1)))

    a_setup(e)
    e(salu('s_mov_b32', 's71', 0))
    e(salu('s_mul_i32', 's54', S_W, 6144))
    e(salu('s_add_u32', 's54', 's54', QT_BASE))
    e(valu('v_add_u32', A.T0, 's54', A.vO))
    e(wait(vm=[('K0', 0)]))
    e(barrier())
    for n in (0, 2):
        apro.extend(ag.read(n))
    for i in range(2):
        for qt in range(3):
            e(ds_read('ds_read_b128', V(A.q(qt, 2 + i), 4), A.T0, (qt * 2 + i) * 1024, tag='qt'))
    e(wait(lg='qt'))
    def bar(t):
        b = []
        if t == 0: b.append(wait(vm='all'))
        if t % 16 == 1: b.append(wait(lg='ow' if t > 1 else None))
        b.append(barrier())
        if t == 0: b += stamp(3)
        def cst(k):
            if not STAMPS: return []
            return [salu('s_cmp_eq_u32', 's71', OPT.get('sth', 3)), raw(f's_cbranch_scc0 L_cs{k}', 'branch')] + stamp(k) + [label(f'L_cs{k}')]
        if t % 16 == 5: b += cst(5)
        if t % 16 == 6: b = cst(6) + b + cst(7)
        return b
    apro.extend(ag.iteration(-1))
    apro.extend(ag.iteration(0, bar=bar(0))); apro.extend(stamp(4))
    bodies = []
    for h in range(4):
        b = []
        for j in range(1, 14):
            b.extend(ag.iteration(16 * h + j, bar=bar(16 * h + j)))
        b.append(salu('s_cmp_eq_u32', 's71', 3))
        b.append(raw('s_cbranch_scc1 L_A_tail', 'branch'))
        if h < 3:
            for j in (14, 15, 16):
                b.extend(ag.iteration(16 * h + j, bar=bar(16 * h + j)))
            b.append(salu('s_add_u32', 's71', 's71', 1))
            b.append(raw('s_branch L_A_loop', 'branch'))
        bodies.append(b)
    tail = [label('L_A_tail')]
    tail.extend(ag.iteration(62, bar=bar(62)))
    tail.extend(ag.iteration(63, bar=bar(63)))
    eo = epilogue_ops(osink(3), dst=lambda qt, i: A_PARK[3] + (qt * 4 + i) * 4)
    tail.extend(ag.iteration(64))
    tail.extend(eo)
    g2_setup(tail.append, 0, gA.vT0, gA.vT1, gA.vS, 0, A.T0, A.T1, 's74')
    tail.append(wait(lg='all'))
    tail.append(barrier())
    tail.extend(stamp(8))
    if OPT.get('prio2') is not None: tail.append(salu('s_setprio', OPT['prio2']))
    tail += gA.start()
    for g in range(36):
        at = []
        otag = None
        lg = None
        vmn = None
        if g == 1:
            at = [[x] for x in h_read(A_PARK[0], A.vH, 'ao0')]; lg = ('ao0', 3)
        if g == 3:
            tail += h_read(A_PARK[1], A.vH, 'ao1')
            otag = lambda kb: ('ao1', kb)
        if g == 5 and INK:
            rs = []; red_setup(rs.append, V(6), V(1)); at = [rs[i:i + 4] for i in range(0, len(rs), 4)]
        if g == 30 and INK:
            vmn = ('st', 'A', 6)
        tail += gA.unit(g, at, otag)
        if g <= 32:
            tail.append(wait(lg=lg, vm=vmn))
            tail.append(barrier())
    tail.extend(stamp(9))
    if INK:
        tail.append(wait(vm='all'))
        tail.append(barrier())
        tail.extend(stamp(10))
        tail += poll('L_poll2a', 2, V(1), V(7))
        tail += [salu('s_add_u32', 's71', S_W, 21)] + frag_offsets('s71')
        ld, cp = reduce_frag(64, 16, gA.vS, V(6), 's66', 's67', V(1), V(7), 'r2')
        tail += ld + cp
    tail.extend(stamp(11))
    tail.extend(stamp_out())
    tail.extend(dbg_out())
    tail.append(raw('s_endpgm', 'branch'))
    resolve_waits(head + apro + bodies[0] + bodies[1] + bodies[2] + bodies[3] + tail)
    body = fold(bodies)
    npre = len(bodies[3])
    while hazards(head + apro + body + body + body[:npre] + tail):
        pass
    rare = []
    for site, lab in rare_sites:
        rare += [label(f'TR_{site}'), raw(f's_call_b64 s[62:63], {lab}', 'branch'), raw(f's_branch RET_{site}', 'branch')]
    for var, lab in rare_variants.items():
        rc = rare_code(var, lab)
        while hazards(rc):
            pass
        rare += rc
    nb = lambda q: sum(1 for i in q if i.kind == 'barrier')
    na = nb(apro) + 3 * nb(body) + nb(body[:npre]) + nb(tail)
    assert na == nb(pc), (na, nb(pc))
    print(stats(apro, 'A pro'), file=sys.stderr); print(stats(body, 'A body'), file=sys.stderr)
    print(stats(tail, 'A tail'), file=sys.stderr); print(stats(pc, 'P'), file=sys.stderr); print(stats(rare, 'rare'), file=sys.stderr)
    lines = render(head) + render(apro) + ['.p2align 6', 'L_A_loop:'] + render(body) + render(rare) + render(tail) + ['.p2align 6'] + render(pc) + ['L_k1_end:']
    return lines

def build_k3_old():
    c = []
    e = c.append
    e(raw('s_cmp_ge_u32 s2, 1728')); e(raw('s_cbranch_scc0 L3_go')); e(raw('s_endpgm')); e(label('L3_go'))
    e(raw('s_load_dwordx2 s[4:5], s[0:1], 80'))
    e(raw('s_load_dwordx2 s[6:7], s[0:1], 96'))
    e(valu('v_lshrrev_b32', V(1), 6, V(0)))
    e(valu('v_readfirstlane_b32', 's16', V(1)))
    e(valu('v_and_b32', V(0), 63, V(0)))
    if OPT.get('k3x', 1):
        e(salu('s_and_b32', 's17', 's2', 7))
        e(salu('s_mul_i32', 's17', 's17', 216))
        e(salu('s_lshr_b32', 's18', 's2', 3))
        e(salu('s_add_u32', 's17', 's17', 's18'))
        e(salu('s_lshl_b32', 's17', 's17', 2))
    else:
        e(salu('s_lshl_b32', 's17', 's2', 2))
    e(salu('s_add_u32', 's17', 's17', 's16'))
    e(salu('s_mul_hi_u32', 's18', 's17', (2 ** 32 + 215) // 216))
    e(salu('s_mul_i32', 's19', 's18', 216))
    e(salu('s_sub_u32', 's19', 's17', 's19'))
    e(salu('s_mul_hi_u32', 's20', 's19', (2 ** 32 + 26) // 27))
    e(salu('s_mul_i32', 's21', 's20', 27))
    e(salu('s_sub_u32', 's21', 's19', 's21'))
    e(salu('s_mul_hi_u32', 's22', 's21', (2 ** 32 + 2) // 3))
    e(salu('s_mul_i32', 's23', 's22', 3))
    e(salu('s_sub_u32', 's23', 's21', 's23'))
    e(raw('s_waitcnt lgkmcnt(0)'))
    e(salu('s_mov_b32', 's8', 's6')); e(salu('s_mov_b32', 's9', 's7'))
    e(salu('s_mov_b32', 's10', PART_WS_OFF + 256 * 221184)); e(salu('s_mov_b32', 's11', 0x20000))
    e(salu('s_mov_b32', 's12', 's4')); e(salu('s_mov_b32', 's13', 's5'))
    e(salu('s_mov_b32', 's14', 16 * 192 * 1152 * 2)); e(salu('s_mov_b32', 's15', 0x20000))
    e(salu('s_mul_i32', 's24', 's18', 8 * 221184))
    e(salu('s_lshl_b32', 's25', 's19', 10))
    e(salu('s_add_u32', 's24', 's24', 's25'))
    e(salu('s_add_u32', 's24', 's24', PART_WS_OFF))
    e(valu('v_lshlrev_b32', V(1), 4, V(0)))
    for hg in range(8):
        e(buf_load(V(8 + 4 * hg, 4), V(1), 's[8:11]', 's24', 0, tag=('p', hg), pol=OPT.get('rpol', '').replace('+', ' ')))
        e(salu('s_add_u32', 's24', 's24', 221184))
    e(salu('s_and_b32', 's26', 's18', 15))
    e(salu('s_mul_i32', 's26', 's26', 192))
    e(salu('s_lshr_b32', 's27', 's20', 1))
    e(salu('s_mul_i32', 's27', 's27', 48))
    e(salu('s_add_u32', 's26', 's26', 's27'))
    e(salu('s_lshl_b32', 's27', 's23', 4))
    e(salu('s_add_u32', 's26', 's26', 's27'))
    e(salu('s_mul_i32', 's26', 's26', 2304))
    e(salu('s_lshr_b32', 's27', 's18', 4))
    e(salu('s_mul_i32', 's27', 's27', 1152))
    e(salu('s_add_u32', 's26', 's26', 's27'))
    e(salu('s_and_b32', 's27', 's20', 1))
    e(salu('s_mul_i32', 's27', 's27', 576))
    e(salu('s_add_u32', 's26', 's26', 's27'))
    e(salu('s_lshl_b32', 's27', 's22', 6))
    e(salu('s_add_u32', 's26', 's26', 's27'))
    e(valu('v_and_b32', V(2), 15, V(0)))
    e(valu('v_mul_u32_u24', V(2), 2304, V(2)))
    e(valu('v_lshrrev_b32', V(3), 4, V(0)))
    e(valu('v_lshl_add_u32', V(2), V(3), 3, V(2)))
    ACC = 40
    for hg in range(8):
        e(wait(vm=('p', hg)))
        for r in range(4):
            src = V(8 + 4 * hg + r)
            if hg == 0:
                e(valu('v_lshlrev_b32', V(ACC + 2 * r), 16, src))
                e(valu('v_and_b32', V(ACC + 2 * r + 1), 0xffff0000, src))
            else:
                e(valu('v_lshlrev_b32', V(4), 16, src))
                e(valu('v_and_b32', V(5), 0xffff0000, src))
                e(valu('v_add_f32', V(ACC + 2 * r), V(ACC + 2 * r), V(4)))
                e(valu('v_add_f32', V(ACC + 2 * r + 1), V(ACC + 2 * r + 1), V(5)))
    for r in range(4):
        e(valu('v_cvt_pk_bf16_f32', V(8 + r), V(ACC + 2 * r), V(ACC + 2 * r + 1)))
    e(buf_store(V(8, 2), V(2), 's[12:15]', 's26', 0))
    e(buf_store(V(10, 2), V(2), 's[12:15]', 's26', 32))
    if OPT.get('dbg'):
        e(raw('s_load_dwordx2 s[28:29], s[0:1], 88'))
        e(salu('s_cmp_eq_u32', 's2', 0)); e(raw('s_cbranch_scc0 L3_nod', 'branch'))
        e(salu('s_mov_b32', 's10', 60000000)); e(salu('s_mov_b32', 's24', 58000000))
        e(valu('v_lshlrev_b32', V(1), 2, V(0)))
        e(buf_load(V(4), V(1), 's[8:11]', 's24', 0, tag='d'))
        e(raw('s_waitcnt vmcnt(0) lgkmcnt(0)'))
        e(salu('s_mov_b32', 's12', 's28')); e(salu('s_mov_b32', 's13', 's29')); e(salu('s_mov_b32', 's14', 64))
        e(buf_store(V(4), V(1), 's[12:15]', 0, 0))
        e(label('L3_nod'))
    e(raw('s_endpgm', 'branch'))
    resolve_waits(c)
    while hazards(c):
        pass
    return render(c)


def build_k3():
    c = []
    e = c.append
    e(raw('s_cmp_ge_u32 s2, 256')); e(raw('s_cbranch_scc0 L3_go')); e(raw('s_endpgm')); e(label('L3_go'))
    e(raw('s_load_dwordx2 s[4:5], s[0:1], 80'))
    e(raw('s_load_dwordx2 s[6:7], s[0:1], 96'))
    e(valu('v_lshrrev_b32', V(1), 6, V(0)))
    e(valu('v_readfirstlane_b32', 's22', V(1)))
    e(valu('v_and_b32', V(0), 63, V(0)))
    e(salu('s_and_b32', 's17', 's2', 7))
    e(salu('s_lshr_b32', 's19', 's2', 3))
    e(salu('s_lshl_b32', 's18', 's17', 2))
    e(salu('s_lshr_b32', 's20', 's19', 3))
    e(salu('s_add_u32', 's18', 's18', 's20'))
    e(salu('s_and_b32', 's20', 's19', 7))
    e(salu('s_mul_i32', 's24', 's18', 8 * 221184))
    e(salu('s_mul_i32', 's25', 's20', 27648))
    e(salu('s_add_u32', 's24', 's24', 's25'))
    e(salu('s_mul_i32', 's25', 's22', 3072))
    e(salu('s_add_u32', 's24', 's24', 's25'))
    if PART_WS_OFF: e(salu('s_add_u32', 's24', 's24', PART_WS_OFF))
    e(valu('v_lshlrev_b32', V(1), 4, V(0)))
    e(raw('s_waitcnt lgkmcnt(0)'))
    e(salu('s_mov_b32', 's8', 's6')); e(salu('s_mov_b32', 's9', 's7'))
    e(salu('s_mov_b32', 's10', PART_WS_OFF + 256 * 221184)); e(salu('s_mov_b32', 's11', 0x20000))
    LD = 16
    for qt in range(3):
        for hg in range(8):
            e(salu('s_add_u32', 's25', 's24', hg * 221184))
            e(buf_load(V(LD + (qt * 8 + hg) * 4, 4), V(1), 's[8:11]', 's25', qt * 1024, tag=('p', qt, hg), pol=OPT.get('rpol', '').replace('+', ' ')))
    e(salu('s_mov_b32', 's12', 's4')); e(salu('s_mov_b32', 's13', 's5'))
    e(salu('s_mov_b32', 's14', 16 * 192 * 1152 * 2)); e(salu('s_mov_b32', 's15', 0x20000))
    e(salu('s_and_b32', 's26', 's18', 15))
    e(salu('s_mul_i32', 's26', 's26', 192))
    e(salu('s_lshr_b32', 's27', 's20', 1))
    e(salu('s_mul_i32', 's27', 's27', 48))
    e(salu('s_add_u32', 's26', 's26', 's27'))
    e(salu('s_mul_i32', 's26', 's26', 2304))
    e(salu('s_lshr_b32', 's27', 's18', 4))
    e(salu('s_mul_i32', 's27', 's27', 1152))
    e(salu('s_add_u32', 's26', 's26', 's27'))
    e(salu('s_and_b32', 's27', 's20', 1))
    e(salu('s_mul_i32', 's27', 's27', 576))
    e(salu('s_add_u32', 's26', 's26', 's27'))
    e(salu('s_lshl_b32', 's27', 's22', 6))
    e(salu('s_add_u32', 's26', 's26', 's27'))
    e(valu('v_and_b32', V(2), 15, V(0)))
    e(valu('v_mul_u32_u24', V(2), 2304, V(2)))
    e(valu('v_lshrrev_b32', V(3), 4, V(0)))
    e(valu('v_lshl_add_u32', V(2), V(3), 3, V(2)))
    ACC = 8
    for qt in range(3):
        for hg in range(8):
            e(wait(vm=('p', qt, hg)))
            for r in range(4):
                src = V(LD + (qt * 8 + hg) * 4 + r)
                if hg == 0:
                    e(valu('v_lshlrev_b32', V(ACC + 2 * r), 16, src))
                    e(valu('v_and_b32', V(ACC + 2 * r + 1), 0xffff0000, src))
                else:
                    e(valu('v_lshlrev_b32', V(4), 16, src))
                    e(valu('v_and_b32', V(5), 0xffff0000, src))
                    e(valu('v_add_f32', V(ACC + 2 * r), V(ACC + 2 * r), V(4)))
                    e(valu('v_add_f32', V(ACC + 2 * r + 1), V(ACC + 2 * r + 1), V(5)))
        o = LD + qt * 32
        for r in range(4):
            e(valu('v_cvt_pk_bf16_f32', V(o + r), V(ACC + 2 * r), V(ACC + 2 * r + 1)))
        e(buf_store(V(o, 2), V(2), 's[12:15]', 's26', 0))
        e(buf_store(V(o + 2, 2), V(2), 's[12:15]', 's26', 32))
        e(salu('s_add_u32', 's26', 's26', 16 * 2304))
    e(raw('s_endpgm', 'branch'))
    resolve_waits(c)
    while hazards(c):
        pass
    return render(c)


def kd(name, vgpr, sgpr=102):
    return ['.p2align 6', f'.amdhsa_kernel {name}', f'  .amdhsa_next_free_vgpr {vgpr}', f'  .amdhsa_next_free_sgpr {sgpr}',
            f'  .amdhsa_accum_offset {(vgpr + 3) // 4 * 4}', '  .amdhsa_group_segment_fixed_size 0', '  .amdhsa_kernarg_size 104',
            '  .amdhsa_user_sgpr_count 2', '  .amdhsa_user_sgpr_kernarg_segment_ptr 1', '  .amdhsa_system_sgpr_workgroup_id_x 1',
            '.end_amdhsa_kernel']


def kern(name, lines):
    return [f'.globl {name}', '.p2align 8', f'.type {name},@function', f'{name}:'] + lines


if __name__ == '__main__':
    which = sys.argv[2] if len(sys.argv) > 2 else '123'
    STAMPS = 's' in which
    for kv in sys.argv[3:]:
        k, v = kv.split('='); OPT[k] = int(v) if v.lstrip('-').isdigit() else v
    out = []
    single = '3' not in which
    k1 = NAME + '_kernel' if single else 'k1_kernel'
    if single:
        out.append(f'; @launch grid=(256,1,1) block=(512,1,1) lds={LDS_BYTES}')
    else:
        OPT['inred'] = 0
        out.append(f'; @launch kernel=k1_kernel grid=(256,1,1) block=(512,1,1) lds={LDS_BYTES}')
        out.append('; @launch kernel=k3_kernel grid=(1728,1,1) block=(256,1,1) lds=0' if OPT.get('k3old') else '; @launch kernel=k3_kernel grid=(256,1,1) block=(576,1,1) lds=0')
    out += ['.amdgcn_target "amdgcn-amd-amdhsa--gfx950"', '.text']
    out += kern(k1, build_k1())
    if not single: out += kern('k3_kernel', build_k3_old() if OPT.get('k3old') else build_k3())
    out += ['.section .rodata,"a"'] + kd(k1, 256) + ([] if single else kd('k3_kernel', 48 if OPT.get('k3old') else 112, 32))
    open(sys.argv[1], 'w').write('\n'.join(out) + '\n')
```

```python
import sys, math
sys.path.insert(0, 'gen')
from asmlib import *

NAME = 'concat_heads__mha_block_cached__mha_block_cached__near_ridge'
CSCALE = math.log2(math.e) / math.sqrt(128.0)
THR = 1024.0

KV_BASE = 0
WQ_BASE = 65536
NWQ = 4
WSLOT = {}
XB_BASE = WQ_BASE + NWQ * 8192
H_BASE = XB_BASE + 16384
LDS_BYTES = 163840

SRD_K, SRD_V, SRD_WQ, SRD_X, SRD_WS, SRD_WO = 's[8:11]', 's[12:15]', 's[16:19]', 's[20:23]', 's[24:27]', 's[28:31]'
S_W = 's50'
S_WAVE = 's39'
S_ID = 's51'

PART_WS_OFF = 0


STAMPS = False
OPT = {}
STAMP_OFF = 120 * 1024 * 1024
def stamp(k):
    if not STAMPS or (OPT.get('dbg') and k >= 10): return []
    assert k < 12
    return [raw(f's_memtime s[{76 + 2 * k}:{77 + 2 * k}]')]
def stamp_init():
    if not STAMPS: return []
    return [salu('s_mov_b32', f's{r}', 0) for r in range(76, 96)] + [raw('s_memrealtime s[100:101]')]
def stamp_out(t0=V(8, 4), a=V(1)):
    if not STAMPS or OPT.get('dbg'): return []
    c = [raw('s_memrealtime s[52:53]'), raw('s_waitcnt vmcnt(0) lgkmcnt(0)'), salu('s_lshl_b32', 's54', 's2', 3), salu('s_add_u32', 's54', 's54', S_WAVE),
         salu('s_lshl_b32', 's54', 's54', 7), salu('s_add_u32', 's54', 's54', STAMP_OFF), salu('s_mov_b32', 's26', STAMP_OFF + 1024 * 1024),
         valu('v_mov_b32', a, 0), raw('s_mov_b64 exec, 1')]
    regs = list(range(76, 102)) + [52, 53]
    for k in range(7):
        for r in range(4):
            c.append(valu('v_mov_b32', V(t0.n + r), f's{regs[4 * k + r]}'))
        c.append(buf_store(t0, a, SRD_WS, 's54', 16 * k))
        c.append(nop(3))
    return c


PHYS = {7: 0, 1: 1, 2: 2, 4: 3, 3: 4, 5: 5, 6: 6, 0: 7}
def dbg_out():
    if not OPT.get('dbg'): return []
    c = [raw('s_memtime s[52:53]'), raw('s_waitcnt vmcnt(0) lgkmcnt(0)'), raw('s_memtime s[54:55]'), raw('s_waitcnt lgkmcnt(0)'),
         salu('s_cmp_eq_u32', S_WAVE, 4), raw('s_cbranch_scc0 L_dbg_skip', 'branch'),
         salu('s_cmp_eq_u32', 's2', OPT['dbg']), raw('s_cbranch_scc0 L_dbg_skip', 'branch'),
         salu('s_mov_b32', 's12', 's6'), salu('s_mov_b32', 's13', 's7'), salu('s_mov_b32', 's14', 60000000), salu('s_mov_b32', 's15', 0x20000),
         salu('s_mov_b32', 's58', 58000000), valu('v_mov_b32', V(1), 0)]
    regs = [76 + 2 * k for k in range(10)] + [52, 54]
    for k, r in enumerate(regs):
        c += [salu('s_sub_u32', 's59', f's{r}', 's98'), valu('v_mov_b32', V(8), 's59'), buf_store(V(8), V(1), 's[12:15]', 's58', 4 * k), nop(2)]
    c.append(label('L_dbg_skip'))
    return c


def kslot(t): return t % 4
def vslot(t): return 4 + t % 4
def wslot0(k): return 8 + k % 6
XS = [4, 5, 6, 16, 17, 18, 19, 14, 15]
XBASE = 14 * 8192
def xslot(M, qt): return XS[(M % 3) * 3 + qt]
S_SET = 's3'


def common_prologue(e, nwg=256):
    e(raw(f's_cmp_ge_u32 s2, {nwg}'))
    e(raw('s_cbranch_scc0 L_go'))
    e(raw('s_endpgm'))
    e(label('L_go'))
    e(raw('s_load_dwordx2 s[4:5], s[0:1], 80'))
    if OPT.get('dbg'): e(raw('s_memtime s[98:99]'))
    e(raw('s_load_dwordx2 s[6:7], s[0:1], 96'))
    e(raw('s_load_dwordx2 s[72:73], s[0:1], 88'))
    e(salu('s_and_b32', 's32', 's2', 7))
    e(salu('s_lshr_b32', 's33', 's2', 3))
    if OPT.get('map', 0) == 1:
        e(salu('s_lshr_b32', 's34', 's32', 2))
        e(salu('s_lshl_b32', 's34', 's34', 4))
        e(salu('s_lshr_b32', 's35', 's33', 1))
        e(salu('s_add_u32', 's34', 's34', 's35'))
        e(salu('s_and_b32', 's35', 's32', 3))
        e(salu('s_lshl_b32', 's35', 's35', 1))
        e(salu('s_and_b32', 's33', 's33', 1))
        e(salu('s_add_u32', 's35', 's35', 's33'))
    elif OPT.get('map', 0) == 2:
        e(salu('s_lshr_b32', 's34', 's32', 1))
        e(salu('s_lshl_b32', 's34', 's34', 3))
        e(salu('s_lshr_b32', 's35', 's33', 2))
        e(salu('s_add_u32', 's34', 's34', 's35'))
        e(salu('s_and_b32', 's35', 's32', 1))
        e(salu('s_lshl_b32', 's35', 's35', 2))
        e(salu('s_and_b32', 's33', 's33', 3))
        e(salu('s_add_u32', 's35', 's35', 's33'))
    else:
        e(salu('s_lshl_b32', 's34', 's32', 2))
        e(salu('s_lshr_b32', 's35', 's33', 3))
        e(salu('s_add_u32', 's34', 's34', 's35'))
        e(salu('s_and_b32', 's35', 's33', 7))
    e(salu('s_lshr_b32', 's36', 's34', 4))
    e(salu('s_and_b32', 's37', 's34', 15))
    e(salu('s_lshl_b32', S_ID, 's34', 3))
    e(salu('s_add_u32', S_ID, S_ID, 's35'))
    e(salu('s_mul_i32', 's38', 's36', 40))
    e(salu('s_add_u32', 's52', 's0', 's38'))
    e(salu('s_addc_u32', 's53', 's1', 0))
    e(raw('s_load_dwordx4 s[40:43], s[52:53], 0'))
    e(raw('s_load_dwordx4 s[44:47], s[52:53], 16'))
    e(raw('s_load_dwordx2 s[48:49], s[52:53], 32'))
    e(valu('v_lshrrev_b32', V(1), 6, V(0)))
    e(valu('v_readfirstlane_b32', S_WAVE, V(1)))
    e(valu('v_and_b32', V(0), 63, V(0)))
    e(salu('s_and_b32', S_W, S_WAVE, 3))
    e(salu('s_lshr_b32', S_SET, S_WAVE, 2))
    e(salu('s_lshl_b32', 's58', S_SET, 9))
    e(salu('s_add_u32', 's58', 's58', 65536))
    e(salu('s_lshl_b32', 's62', S_W, 11))
    e(salu('s_lshl_b32', 's63', S_SET, 10))
    e(salu('s_add_u32', 's63', 's63', 's62'))
    e(salu('s_add_u32', 's62', 's62', 's58'))
    q_dma_addrs(e)
    e(raw('s_waitcnt lgkmcnt(0)'))
    e(salu('s_lshl_b32', 's54', 's35', 10))
    e(salu('s_add_u32', 's16', 's46', 's54')); e(salu('s_addc_u32', 's17', 's47', 0))
    e(salu('s_sub_u32', 's18', 576 * 8192, 's54')); e(salu('s_mov_b32', 's19', 0x20000))
    e(salu('s_mul_i32', 's54', 's37', 221184))
    e(salu('s_add_u32', 's20', 's40', 's54')); e(salu('s_addc_u32', 's21', 's41', 0))
    e(salu('s_mov_b32', 's22', 221184)); e(salu('s_mov_b32', 's23', 0x20000))
    for x in wq0_dma(0) + x0_dma(0) + wq0_dma(1) + wq0_dma(2) + x0_dma(1) + wq0_dma(3) + wq0_dma(4) + x0_dma(2) + wq0_dma(5): e(x)
    e(salu('s_lshl_b32', 's54', 's37', 3))
    e(salu('s_add_u32', 's54', 's54', 's35'))
    e(salu('s_lshl_b32', 's54', 's54', 19))
    e(salu('s_add_u32', 's8', 's42', 's54')); e(salu('s_addc_u32', 's9', 's43', 0))
    e(salu('s_mov_b32', 's10', 524288)); e(salu('s_mov_b32', 's11', 0x20000))
    e(salu('s_add_u32', 's12', 's44', 's54')); e(salu('s_addc_u32', 's13', 's45', 0))
    e(salu('s_mov_b32', 's14', 524288)); e(salu('s_mov_b32', 's15', 0x20000))
    e(salu('s_mov_b32', 's24', 's6')); e(salu('s_mov_b32', 's25', 's7'))
    e(salu('s_mov_b32', 's26', PART_WS_OFF + 256 * 221184)); e(salu('s_mov_b32', 's27', 0x20000))
    e(salu('s_mul_i32', 's54', 's35', 589824))
    e(salu('s_add_u32', 's28', 's48', 's54')); e(salu('s_addc_u32', 's29', 's49', 0))
    e(salu('s_mov_b32', 's30', 589824)); e(salu('s_mov_b32', 's31', 0x20000))
    if OPT.get('cpf', 1):
        e(raw('s_getpc_b64 s[52:53]'))
        e(label('L_cpf'))
        e(salu('s_lshr_b32', 's54', 's2', 3))
        e(salu('s_lshl_b32', 's54', 's54', 3))
        e(salu('s_add_u32', 's54', 's54', S_WAVE))
        e(salu('s_lshl_b32', 's54', 's54', 9))
        e(valu('v_and_b32', V(20), 3, V(0)))
        e(valu('v_lshlrev_b32', V(20), 7, V(20)))
        e(valu('v_add_u32', V(20), 's54', V(20)))
        e(valu('v_min_u32', V(20), 'L_k1_end-L_cpf-8', V(20)))
        e(Ins('global_load_dword v21, v20, s[52:53]', 'vm', rd=[20], wr=[21]))
    for x in stamp_init() + stamp(0): e(x)


CODE_BYTES = 90000


def wq0_dma(k):
    return [salu('s_add_u32', 'm0', 's63', wslot0(k) * 8192), salu('s_mov_b32', 's66', k * 262144), dma(A.vWd, SRD_WQ, 's66', 0, tag=('W0', k))]


def x0_dma(M):
    o = []
    for qt in range(3):
        o += [salu('s_add_u32', 'm0', 's63', xslot(M, qt) * 8192), salu('s_mov_b32', 's66', M * 128 + qt * 18432),
              dma(A.vXd, SRD_X, 's66', 0, tag=('X0', M))]
    return o


def kv0_dma(kind, t):
    if kind == 'K':
        assert kslot(t + 1) == kslot(t) + 1
        return [salu('s_add_u32', 'm0', 's68', kslot(t) * 8192), salu('s_add_u32', 's66', 's70', t * 8192),
                dma(A.vKd, SRD_K, 's66', 0, tag=('K0', t), pol='nt'), dma(A.vKd, SRD_K, 's66', 1024, tag=('K0', t), pol='nt')]
    assert vslot(t + 1) == vslot(t) + 1
    return [salu('s_add_u32', 'm0', 's69', vslot(t) * 8192), salu('s_add_u32', 's66', 's70', t * 8192),
            dma(A.vVd, SRD_V, 's66', 0, tag=('V0', t), pol='nt'), dma(A.vVd, SRD_V, 's66', 2048, tag=('V0', t), pol='nt')]


def q_dma_addrs(e):
    t0, t1 = A.T0, A.T1
    e(salu('s_and_b32', 's54', S_W, 1))
    e(valu('v_and_b32', t0, 3, V(0)))
    e(valu('v_xor_b32', t0, 's54', t0))
    e(valu('v_lshrrev_b32', t1, 4, V(0)))
    e(valu('v_lshl_add_u32', t0, t1, 2, t0))
    e(valu('v_lshlrev_b32', t0, 4, t0))
    e(valu('v_bfe_u32', t1, V(0), 2, 2))
    e(valu('v_lshl_add_u32', t0, t1, 13, t0))
    e(salu('s_lshl_b32', 's54', S_W, 16))
    e(salu('s_lshl_b32', 's55', S_SET, 15))
    e(salu('s_add_u32', 's54', 's54', 's55'))
    e(valu('v_add_u32', A.vWd, 's54', t0))
    e(salu('s_lshl_b32', 's54', S_SET, 2))
    e(valu('v_lshrrev_b32', t1, 4, V(0)))
    e(valu('v_add_u32', t1, 's54', t1))
    e(valu('v_and_b32', t0, 7, V(0)))
    e(valu('v_xor_b32', t0, t0, t1))
    e(valu('v_lshrrev_b32', t1, 3, V(0)))
    e(valu('v_mul_u32_u24', t1, 1152, t1))
    e(valu('v_lshl_add_u32', t0, t0, 4, t1))
    e(salu('s_mul_i32', 's54', S_W, 48 * 1152))
    e(salu('s_mul_i32', 's55', S_SET, 8 * 1152))
    e(salu('s_add_u32', 's54', 's54', 's55'))
    e(valu('v_add_u32', A.vXd, 's54', t0))


def q_rd_addrs(e):
    t0, t1 = A.T0, A.T1
    e(valu('v_and_b32', t0, 3, V(0)))
    e(valu('v_bfe_u32', t1, V(0), 4, 1))
    e(valu('v_xor_b32', t0, t0, t1))
    e(valu('v_bfe_u32', t1, V(0), 2, 2))
    e(valu('v_lshl_add_u32', t0, t1, 2, t0))
    e(valu('v_lshrrev_b32', t1, 4, V(0)))
    e(valu('v_lshl_add_u32', t0, t1, 7, t0))
    e(valu('v_lshlrev_b32', t0, 4, t0))
    e(valu('v_and_b32', t1, 1, V(0)))
    e(valu('v_lshl_add_u32', t0, t1, 3, t0))
    e(valu('v_add_u32', A.vW0, 's58', t0))
    e(valu('v_xor_b32', A.vW1, 8, A.vW0))
    e(valu('v_lshrrev_b32', t0, 4, V(0)))
    e(valu('v_bfe_u32', t1, V(0), 1, 3))
    e(valu('v_xor_b32', t0, t0, t1))
    e(valu('v_lshlrev_b32', t0, 4, t0))
    e(valu('v_and_b32', t1, 15, V(0)))
    e(valu('v_lshl_add_u32', t0, t1, 7, t0))
    e(salu('s_lshl_b32', 's54', S_W, 11))
    e(salu('s_add_u32', 's54', 's54', XBASE))
    e(valu('v_add_u32', A.vXr0, 's54', t0))
    e(valu('v_xor_b32', A.vXr1, 64, A.vXr0))
    e(valu('v_subrev_u32', A.vXr2, XBASE, A.vXr0))
    e(valu('v_subrev_u32', A.vXr3, XBASE, A.vXr1))


def q0_wread(n):
    if n >= 72: return []
    k, f = divmod(n, 4)
    i, t = f >> 1, f & 1
    buf = A.F + (n % 4) * 4
    va = A.vW0 if t == 0 else A.vW1
    off = (wslot0(k) - 8) * 8192 + i * 256
    return [ds_read('ds_read_b64_tr_b16', V(buf, 2), va, off, tag=('pf0', n)), ds_read('ds_read_b64_tr_b16', V(buf + 2, 2), va, off + 1024, tag=('pf0', n))]


def q0_xread(k):
    o = []
    for qt in range(3):
        a = xslot(k // 2, qt) * 8192
        va, off = ((A.vXr1 if k % 2 else A.vXr0), a - XBASE) if a >= XBASE else ((A.vXr3 if k % 2 else A.vXr2), a)
        o.append(ds_read('ds_read_b128', V(A.xf(k, qt), 4), va, off, tag=('xf0', k)))
    return o


def q_conv(i):
    ops = []
    for qt in range(3):
        tm = A.P[0] + qt * 4
        for t in range(2):
            a = A.o(qt, 2 * i + t)
            for r in range(4): ops.append(valu('v_mul_f32', V(a + r), 's59', V(a + r)))
            ops.append(valu('v_cvt_pk_bf16_f32', V(tm + 2 * t), V(a), V(a + 1)))
            ops.append(valu('v_cvt_pk_bf16_f32', V(tm + 2 * t + 1), V(a + 2), V(a + 3)))
        q = A.q(qt, i)
        for k in range(2):
            ops.append(valu('v_cndmask_b32', V(q + k), V(tm + k), V(tm + 2 + k), 's[64:65]'))
            ops.append(valu('v_cndmask_b32', V(q + 2 + k), V(tm + 2 + k), V(tm + k), 's[64:65]'))
    return ops


def q0_phase():
    c = []; e = c.append
    q_rd_addrs(e)
    kv_dma_addrs(e, A.vKd, A.vVd, A.T0, A.T1)
    e(salu('s_lshl_b32', 's70', S_SET, 13))
    e(salu('s_add_u32', 's68', 's56', 's70'))
    e(salu('s_add_u32', 's69', 's57', 's70'))
    e(salu('s_mov_b32', 's59', CSCALE))
    e(salu('s_mov_b32', 's64', 0xffff0000)); e(salu('s_mov_b32', 's65', 0xffff0000))
    e(wait(vm=[('W0', 0), ('X0', 0)]))
    e(barrier())
    c += stamp(1)
    c += q0_wread(0) + q0_wread(1) + q0_wread(2) + q0_xread(0)
    gaps = [[] for _ in range(72 * 3 + 1)]

    def chain(ops, lo, hi):
        for a, o in enumerate(ops): gaps[min(lo + (a * (hi - lo + 1)) // len(ops), 216)].append(o)
    wn = 6
    kvq = {OPT.get('kv0', 8): kv0_dma('K', 0), OPT.get('kv1', 14): kv0_dma('V', 0), OPT.get('kv2', 12): kv0_dma('K', 2), OPT.get('kv3', 16): kv0_dma('V', 2)}
    for k in range(18):
        g0 = (4 * k + 1) * 3
        ops = []
        if k < 17:
            for j, x in enumerate(q0_xread(k + 1)): gaps[g0 + 2 * j].append(x)
        while wn < 18 and wn - 6 <= k - 1:
            ops += wq0_dma(wn); wn += 1
        if k % 2 == 1 and (k - 1) // 2 + 3 <= 8: ops += x0_dma((k - 1) // 2 + 3)
        ops += kvq.get(k, [])
        if ops: chain(ops, g0, g0 + 10)
    for n in range(72):
        k, f = divmod(n, 4)
        if f == 1 and k < 17:
            c.append(wait(vm=[('W0', k + 1), ('X0', (k + 1) // 2)]))
            c.append(barrier())
        c.append(wait(lg=[('pf0', n)] + ([('xf0', k)] if f == 0 else [])))
        rd = q0_wread(n + 3)
        for qt in range(3):
            d = A.o(qt, f)
            c.append(mfma(d, A.F + (n % 4) * 4, A.xf(k, qt), d if k else None))
            if qt < len(rd): c.append(rd[qt])
            c += gaps[n * 3 + qt]
    c += stamp(2)
    c += q_conv(0) + q_conv(1)
    return c


QT_BASE = 8 * 8192


def kv_dma_addrs(e, vK, vV, t0, t1):
    e(salu('s_and_b32', 's54', S_W, 1))
    e(salu('s_lshl_b32', 's55', 's54', 1))
    e(valu('v_and_b32', t0, 3, V(0)))
    e(valu('v_xor_b32', t0, 's55', t0))
    e(valu('v_lshrrev_b32', t1, 4, V(0)))
    e(valu('v_lshl_add_u32', t0, t1, 2, t0))
    e(valu('v_lshlrev_b32', t0, 4, t0))
    e(valu('v_bfe_u32', t1, V(0), 2, 2))
    e(valu('v_lshl_add_u32', t0, t1, 8, t0))
    e(salu('s_lshl_b32', 's56', S_W, 11))
    e(salu('s_lshr_b32', 's57', S_W, 1))
    e(salu('s_lshl_b32', 's57', 's57', 2))
    e(salu('s_add_u32', 's57', 's57', 's54'))
    e(salu('s_lshl_b32', 's57', 's57', 10))
    e(valu('v_add_u32', vK, 's56', t0))
    e(valu('v_add_u32', vV, 's57', t0))


def k_dma(vK, t):
    if OPT.get('nokv') and t >= 4: return [Ins('s_nop 0', 'dma', tag=('K', t))]
    return [salu('s_add_u32', 'm0', 's56', KV_BASE + kslot(t) * 8192), salu('s_mov_b32', 's58', t * 8192),
            dma(vK, SRD_K, 's58', 0, tag=('K', t), pol='nt'), dma(vK, SRD_K, 's58', 1024, tag=('K', t), pol='nt')]


def v_dma(vV, t):
    if OPT.get('nokv') and t >= 4: return [Ins('s_nop 0', 'dma', tag=('V', t))]
    return [salu('s_add_u32', 'm0', 's57', KV_BASE + vslot(t) * 8192), salu('s_mov_b32', 's59', t * 8192),
            dma(vV, SRD_V, 's59', 0, tag=('V', t), pol='nt'), dma(vV, SRD_V, 's59', 2048, tag=('V', t), pol='nt')]


class A:
    vK, vV0, vV1, vH, vO = V(2), V(3), V(4), V(5), V(6)
    T0, T1 = V(1), V(7)
    E = 8
    TA, TB = 16, 17
    TS = 18
    L = 21
    LI = 24
    MX = 27
    NM = 28
    F = 40
    S = (56, 68)
    P = (80, 92)
    Q = 104
    O = 152
    X = 248
    vWd, vXd, vW0, vW1, vXr0, vXr1, vKd, vVd = V(8), V(9), V(10), V(11), V(12), V(13), V(14), V(15)
    vXr2, vXr3 = V(16), V(17)
    XF = 56
    @staticmethod
    def xf(k, qt): return A.XF + ((k % 2) * 3 + qt) * 4

    @staticmethod
    def q(qt, ks): return A.Q + (qt * 4 + ks) * 4
    @staticmethod
    def o(qt, dt): return A.O + (qt * 8 + dt) * 4
    @staticmethod
    def s(kt, qt): return A.S[kt] + qt * 4
    @staticmethod
    def p(par, qt): return A.P[par] + qt * 4
    @staticmethod
    def nm(qt): return A.NM + qt * 4


rare_variants = {}
rare_sites = []


def sm_groups(kt, par, site, variant, first, pending):
    g = []
    pend = list(pending)

    def E(q, i): return V(A.E + (q % 2) * 4 + i)
    def ex(q, i): return valu('v_exp_f32', E(q, i), V(A.s(kt, q) + i))
    def ad1(q): return valu('v_add_f32', V(A.TA), E(q, 0), E(q, 1))
    def cv1(q): return valu('v_cvt_pk_bf16_f32', V(A.p(par, q) + 2 * kt), E(q, 0), E(q, 1))
    def ad2(q): return valu('v_add_f32', V(A.TB), E(q, 2), E(q, 3))
    def cv2(q): return valu('v_cvt_pk_bf16_f32', V(A.p(par, q) + 2 * kt + 1), E(q, 2), E(q, 3))
    def ts(q): return valu('v_add_f32', V(A.TS + q), V(A.TA), V(A.TB))
    pend = pend + [None] * 3
    g = [[ex(0, 0)], [ex(0, 1)], [ex(0, 2)], [pend[0], pend[1]], [ex(0, 3)], [ad1(0), cv1(0)], [ex(1, 0)], [ad2(0), cv2(0)],
         [ex(1, 1)], [pend[2], ts(0)], [ex(1, 2)], [ad1(1)], [ex(1, 3)], [cv1(1)], [ex(2, 0)], [ad2(1), cv2(1)],
         [ex(2, 1)], [ts(1)], [ex(2, 2)], [ad1(2), cv1(2)], [ex(2, 3)], [ad2(2), ts(2)]]
    g = [[x for x in y if x is not None] for y in g]
    if variant is not None:
        g.append([valu('v_max3_f32', V(A.MX), V(A.TS), V(A.TS + 1), V(A.TS + 2)), valu('v_cmp_lt_f32', 'vcc', 's60', V(A.MX))])
        g.append([cv2(2), Ins(f's_cbranch_vccnz TR_{site}', 'branch', srd=['vcc']), label(f'RET_{site}')])
        if variant not in rare_variants:
            rare_variants[variant] = f'RARE_{len(rare_variants)}'
        if (site, rare_variants[variant]) not in rare_sites:
            rare_sites.append((site, rare_variants[variant]))
    else:
        g.append([cv2(2)])
        g.append([])
    if first:
        left = [valu('v_mov_b32', V(A.L + q), V(A.TS + q)) for q in range(3)]
    else:
        left = [valu('v_add_f32', V(A.L + q), V(A.L + q), V(A.TS + q)) for q in range(3)]
    g = [x for x in g]
    assert len(g) == 24
    return g, left


def xlane(op, r, tmp):
    return [valu('v_mov_b32', tmp, r), valu('v_permlane32_swap_b32', r, tmp), valu(op, r, r, tmp),
            valu('v_mov_b32', tmp, r), valu('v_permlane16_swap_b32', r, tmp), valu(op, r, r, tmp)]


def init_ops():
    ops = []
    for q in range(3):
        m = V(A.nm(q)); t = V(A.nm(q) + 1); s = A.s(0, q)
        ops.append(valu('v_max3_f32', m, V(s), V(s + 1), V(s + 2)))
        ops.append(valu('v_max_f32', m, m, V(s + 3)))
    xl = [xlane('v_max_f32', V(A.nm(q)), V(A.nm(q) + 1)) for q in range(3)]
    for k in range(6):
        for q in range(3):
            ops.append(xl[q][k])
    for q in range(3):
        ops.append(valu('v_ceil_f32', V(A.nm(q)), V(A.nm(q))))
    for q in range(3):
        ops.append(valu('v_sub_f32', V(A.nm(q)), 0, V(A.nm(q))))
    for q in range(3):
        s = A.s(0, q)
        for i in range(4):
            ops.append(valu('v_add_f32', V(s + i), V(A.nm(q)), V(s + i)))
    for q in range(3):
        for i in range(1, 4):
            ops.append(valu('v_mov_b32', V(A.nm(q) + i), V(A.nm(q))))
    return ops


def init_sb_ops():
    ops = []
    for q in range(3):
        s = A.s(1, q)
        for i in range(4):
            ops.append(valu('v_add_f32', V(s + i), V(A.nm(q)), V(s + i)))
    return ops


def linv_ops():
    ops = []
    for q in range(3):
        ops.append(valu('v_mov_b32', V(A.LI + q), V(A.L + q)))
    xl = [xlane('v_add_f32', V(A.LI + q), V(A.X + q)) for q in range(3)]
    for k in range(6):
        for q in range(3):
            ops.append(xl[q][k])
    for q in range(3):
        ops.append(valu('v_rcp_f32', V(A.LI + q), V(A.LI + q)))
    return ops


def epilogue_ops(sink, dst=None):
    ops = []
    n = 0
    for i in range(4):
        for qt in range(3):
            buf = A.X + (n % 2) * 4 if dst is None else dst(qt, i)
            n += 1
            for half in range(2):
                o = A.o(qt, 2 * i + half)
                for r in range(4):
                    ops.append(valu('v_mul_f32', V(o + r), V(A.LI + qt), V(o + r)))
                ops.append(valu('v_cvt_pk_bf16_f32', V(buf + 2 * half), V(o), V(o + 1)))
                ops.append(valu('v_cvt_pk_bf16_f32', V(buf + 2 * half + 1), V(o + 2), V(o + 3)))
            ops.extend(sink(qt, i, V(buf, 4)))
    return ops


def rare_code(variant, lab):
    kt, par, do_o, do_l, presc, adj = variant
    c = [label(lab), nop(16)]
    n = V(A.TA); f = V(A.TB); t = V(A.MX)
    for q in range(3):
        s = A.s(kt, q)
        c.append(valu('v_max3_f32', n, V(s), V(s + 1), V(s + 2)))
        c.append(valu('v_max_f32', n, n, V(s + 3)))
        c.extend(xlane('v_max_f32', n, t))
        c.append(valu('v_ceil_f32', n, n))
        c.append(valu('v_max_f32', n, 0, n))
        c.append(valu('v_sub_f32', f, 0, n))
        c.append(valu('v_exp_f32', f, f))
        for i in range(4):
            c.append(valu('v_sub_f32', V(s + i), V(s + i), n))
            if adj:
                so = A.s(1 - kt, q)
                c.append(valu('v_sub_f32', V(so + i), V(so + i), n))
            c.append(valu('v_sub_f32', V(A.nm(q) + i), V(A.nm(q) + i), n))
        if do_l:
            c.append(valu('v_mul_f32', V(A.L + q), f, V(A.L + q)))
        if do_o:
            for r in range(32):
                c.append(valu('v_mul_f32', V(A.o(q, 0) + r), f, V(A.o(q, 0) + r)))
        for (pp, off) in presc:
            r = V(A.p(pp, q) + off)
            lo, hi = V(A.E), V(A.E + 1)
            c.append(valu('v_lshlrev_b32', lo, 16, r))
            c.append(valu('v_and_b32', hi, 0xffff0000, r))
            c.append(valu('v_mul_f32', lo, f, lo))
            c.append(valu('v_mul_f32', hi, f, hi))
            c.append(valu('v_cvt_pk_bf16_f32', r, lo, hi))
        for i in range(4):
            c.append(valu('v_exp_f32', V(A.E + i), V(s + i)))
        c.append(valu('v_cvt_pk_bf16_f32', V(A.p(par, q) + 2 * kt), V(A.E), V(A.E + 1)))
        c.append(valu('v_cvt_pk_bf16_f32', V(A.p(par, q) + 2 * kt + 1), V(A.E + 2), V(A.E + 3)))
        c.append(valu('v_add_f32', V(A.E), V(A.E), V(A.E + 1)))
        c.append(valu('v_add_f32', V(A.E + 2), V(A.E + 2), V(A.E + 3)))
        c.append(valu('v_add_f32', V(A.TS + q), V(A.E), V(A.E + 2)))
    c.append(valu('v_exp_f32', V(A.E), V(A.s(1 - kt, 0))))
    c.append(nop(4))
    c.append(raw('s_setpc_b64 s[62:63]', 'branch'))
    return c


class AGen:
    def __init__(self, osink):
        self.pendL = []
        self.osink = osink

    @staticmethod
    def frag(nu):
        t, j = nu // 16 - 1, nu % 16
        if j % 2 == 0:
            return ('K', t + 1, j // 8, (j // 2) % 4) if t + 1 <= 63 else None
        tile, dt = (t - 1, 4 + (j - 1) // 2) if j < 8 else (t, (j - 9) // 2)
        return ('V', tile, dt, 0) if 0 <= tile <= 63 else None

    def read(self, nu):
        f = self.frag(nu)
        if f is None:
            return []
        kind, tile, a, b = f
        buf = A.F + (nu % 4) * 4
        if kind == 'K':
            return [ds_read('ds_read_b128', V(buf, 4), A.vK, KV_BASE + kslot(tile) * 8192 + a * 4096 + b * 256, tag=('f', nu))]
        va = A.vV0 if a % 2 == 0 else A.vV1
        off = KV_BASE + vslot(tile) * 8192 + (a >> 1) * 256
        return [ds_read('ds_read_b64_tr_b16', V(buf, 2), va, off, tag=('f', nu)),
                ds_read('ds_read_b64_tr_b16', V(buf + 2, 2), va, off + 4096, tag=('f', nu))]

    def iteration(self, t, more=None, bar=None):
        T = t + 1
        j16 = t % 16
        nu0 = 16 * (t + 1)
        has_qk = T <= 63
        newhead = has_qk and T % 16 == 0
        def loc(u):
            return f'p{u + 1}' if u <= 0 else (f't{u}' if u >= 62 else f'{u % 16}')
        pos = [dict(pre=[], m=None, w=[], rd=[], post=[]) for _ in range(48)]
        for m in range(48):
            j, qt = divmod(m, 3)
            f = self.frag(nu0 + j)
            if f is None:
                continue
            kind, tile, a, b = f
            fb = A.F + ((nu0 + j) % 4) * 4
            tags = [('f', nu0 + j)]
            if kind == 'K':
                d = A.s(a, qt)
                pos[m]['m'] = mfma(d, fb, A.q(qt, b), d if b else (None if newhead else A.nm(qt)))
                if newhead and t >= 0 and a == 0: tags.append(('q', T, b))
            else:
                d = A.o(qt, a)
                pos[m]['m'] = mfma(d, fb, A.p(tile % 2, qt), d if tile % 16 else None)
            if qt == 0:
                if m > 0 and pos[m - 1]['m'] is not None: pos[m - 1]['w'].append(wait(lg=tags))
                else: pos[m]['pre'].append(wait(lg=tags))
        for i in range(8):
            v = self.read(nu0 + 2 * i + 3)
            if v: pos[6 * i + 1]['rd'].append(v[1])
            pos[6 * i + 3]['rd'] += self.read(nu0 + 2 * i + 4)
            v = self.read(nu0 + 2 * i + 5)
            if v: pos[6 * i + 5]['rd'].append(v[0])
        if bar: pos[OPT.get('barpos', 6)]['w'] = list(bar) + pos[OPT.get('barpos', 6)]['w']
        extra = [[] for _ in range(48)]

        def spread(ops, lo, hi):
            n = len(ops)
            for k, o in enumerate(ops):
                extra[lo + (k * (hi - lo + 1)) // n].append(o)
        SH = 2

        def place(g, base):
            for k, ops in enumerate(g):
                gp = base + k - SH
                if k == 23 and ops and ops[-1].kind == 'label':
                    pos[base + 23]['br'] = ops[-2:]
                    ops = ops[:-2]
                if gp >= 0: pos[gp]['post'].extend(ops)
        if 0 <= t <= 63:
            par = t % 2
            var = (1, par, t % 16 != 0, True, ((par, 0), (par, 1)), t % 16 != 15)
            g1, self.pendL = sm_groups(1, par, f'Y{loc(t)}', var, False, self.pendL)
            place(g1, 0)
        early = [[valu('v_exp_f32', V(A.E + i), V(A.s(1, 0) + i))] for i in range(SH)] if has_qk else []
        par = T % 2
        if newhead:
            pre = list(self.pendL)
            if t >= 0: pre += linv_ops()
            spread(pre + init_ops(), 24, 35)
            g0, self.pendL = sm_groups(0, par, None, None, True, [])
            for k, g in enumerate(g0): extra[36 + k // 2].extend(g)
            extra[47].extend(init_sb_ops())
            for x in early: extra[47].extend(x)
        elif has_qk:
            var = (0, par, True, True, tuple((t % 2, k) for k in range(4)), True)
            g0, self.pendL = sm_groups(0, par, f'X{loc(t)}', var, False, self.pendL)
            place(g0, 24)
            for k, x in enumerate(early): pos[48 - SH + k]['post'].extend(x)
        elif t == 63:
            spread(self.pendL + linv_ops(), 24, 40); self.pendL = []
        if j16 == 0 and 0 < t < 64:
            eo = epilogue_ops(self.osink(t // 16 - 1))
            half = len(eo) // 2
            spread(eo[:half], 0, 25)
            spread(eo[half:], 27, 45)
        if more: spread(more, 3, 23)
        if has_qk and T % 16 == 15:
            for ks in range(4):
                for qt in range(3):
                    pos[27 + 6 * ks + qt]['rd'].append(ds_read('ds_read_b128', V(A.q(qt, ks), 4), A.vH, (qt * 4 + ks) * 1024, tag=('q', T + 1, ks)))
        out = []
        for m in range(48):
            out.extend(pos[m]['pre'])
            if pos[m]['m'] is not None:
                out.append(pos[m]['m'])
            out += pos[m]['w'] + pos[m]['rd']
            if 'br' in pos[m]:
                out += extra[m] + pos[m]['br'] + pos[m]['post']
            else:
                out += pos[m]['post'] + extra[m]
        return out


def a_setup(e):
    t0, t1 = A.T0, A.T1
    e(valu('v_lshrrev_b32', t0, 4, V(0)))
    e(valu('v_bfe_u32', t1, V(0), 3, 1))
    e(valu('v_lshlrev_b32', t1, 1, t1))
    e(valu('v_xor_b32', t0, t0, t1))
    e(valu('v_and_b32', t1, 3, V(0)))
    e(valu('v_lshl_add_u32', t0, t1, 2, t0))
    e(valu('v_bfe_u32', t1, V(0), 2, 2))
    e(valu('v_lshl_add_u32', t0, t1, 6, t0))
    e(valu('v_lshlrev_b32', A.vK, 4, t0))
    e(valu('v_bfe_u32', t0, V(0), 1, 1))
    e(valu('v_bfe_u32', t1, V(0), 4, 1))
    e(valu('v_lshl_add_u32', t0, t1, 1, t0))
    e(valu('v_bfe_u32', t1, V(0), 2, 2))
    e(valu('v_lshl_add_u32', t0, t1, 2, t0))
    e(valu('v_lshrrev_b32', t1, 4, V(0)))
    e(valu('v_lshl_add_u32', t0, t1, 6, t0))
    e(valu('v_lshlrev_b32', t0, 4, t0))
    e(valu('v_and_b32', t1, 1, V(0)))
    e(valu('v_lshl_add_u32', A.vV0, t1, 3, t0))
    e(valu('v_xor_b32', A.vV1, 32, A.vV0))
    e(salu('s_mul_i32', 's54', S_W, 12288))
    e(salu('s_add_u32', 's54', 's54', H_BASE))
    e(valu('v_lshlrev_b32', t0, 4, V(0)))
    e(valu('v_add_u32', A.vH, 's54', t0))
    e(valu('v_mov_b32', A.vO, t0))
    e(salu('s_mov_b32', 's60', THR))


class P:
    vKd, vVd, vWd, vX, vW0, vW1, vH0, vH1, vBw, vBr = V(2), V(3), V(4), V(5), V(6), V(7), V(8), V(9), V(10), V(11)
    T0, T1 = V(1), V(12)
    PK = 12
    F = 16
    ACC = 32
    XF = 128
    X = 152
    vX1 = V(200)
    vBr1 = V(201)
    vBw2 = V(202)

    @staticmethod
    def acc(qt, i, t): return P.ACC + ((qt * 4 + i) * 2 + t) * 4
    @staticmethod
    def x(M, qt, j): return P.X + ((M % 2) * 6 + qt * 2 + j) * 4
    @staticmethod
    def xf(k, qt): return P.XF + ((k % 2) * 3 + qt) * 4


def p_setup(e):
    t0, t1 = P.T0, P.T1
    kv_dma_addrs(e, P.vKd, P.vVd, t0, t1)
    e(salu('s_and_b32', 's54', S_W, 1))
    e(valu('v_and_b32', t0, 3, V(0)))
    e(valu('v_xor_b32', t0, 's54', t0))
    e(valu('v_lshrrev_b32', t1, 4, V(0)))
    e(valu('v_lshl_add_u32', t0, t1, 2, t0))
    e(valu('v_lshlrev_b32', t0, 4, t0))
    e(valu('v_bfe_u32', t1, V(0), 2, 2))
    e(valu('v_lshl_add_u32', t0, t1, 13, t0))
    e(salu('s_lshl_b32', 's54', S_W, 16))
    e(valu('v_add_u32', P.vWd, 's54', t0))
    e(salu('s_and_b32', 's54', 's34', 3))
    e(salu('s_lshl_b32', 's54', 's54', 1))
    e(salu('s_add_u32', 's54', 's54', 's35'))
    if not OPT.get('rot'): e(salu('s_mov_b32', 's54', 0))
    e(salu('s_lshl_b32', 's54', 's54', 7))
    for m in range(9):
        e(salu('s_sub_u32', 's55', 's54', 1152))
        e(salu('s_cmp_ge_u32', 's54', 1152))
        e(salu('s_cselect_b32', f's{40 + m}', 's55', 's54'))
        e(salu('s_add_u32', 's54', f's{40 + m}', 128))
    e(salu('s_mul_i32', 's54', S_W, 48 * 1152))
    e(valu('v_and_b32', t0, 7, V(0)))
    e(valu('v_lshrrev_b32', t1, 3, V(0)))
    e(valu('v_mul_u32_u24', t1, 1152, t1))
    e(valu('v_lshl_add_u32', t0, t0, 4, t1))
    e(valu('v_add_u32', P.vX, 's54', t0))
    e(valu('v_xor_b32', t0, 32, P.vX))
    e(valu('v_add_u32', P.vX1, 8 * 1152, t0))


def p_setup2(e):
    t0, t1 = P.T0, P.T1
    e(salu('s_lshl_b32', 's54', S_W, 12))
    e(salu('s_add_u32', 's54', 's54', XB_BASE))
    e(valu('v_and_b32', t0, 3, V(0)))
    e(valu('v_lshrrev_b32', t1, 3, V(0)))
    e(valu('v_lshl_add_u32', t0, t1, 2, t0))
    e(valu('v_lshlrev_b32', t0, 4, t0))
    e(valu('v_bfe_u32', t1, V(0), 2, 1))
    e(valu('v_xor_b32', t1, 1, t1))
    e(valu('v_mul_u32_u24', t1, 1024 + 64, t1))
    e(valu('v_xor_b32', t0, t0, t1))
    e(valu('v_add_u32', P.vBw, 's54', t0))
    e(valu('v_and_b32', t1, 1024, t1))
    e(valu('v_add_u32', P.vBw2, P.vBw, t1))
    e(valu('v_bfe_u32', t0, V(0), 3, 1))
    e(valu('v_lshlrev_b32', t0, 1, t0))
    e(valu('v_lshrrev_b32', t1, 4, V(0)))
    e(valu('v_xor_b32', t0, t0, t1))
    e(valu('v_and_b32', t1, 15, V(0)))
    e(valu('v_lshl_add_u32', t0, t1, 2, t0))
    e(valu('v_lshlrev_b32', t0, 4, t0))
    e(valu('v_add_u32', P.vBr, 's54', t0))
    e(valu('v_xor_b32', P.vBr1, 64, P.vBr))
    e(valu('v_and_b32', t0, 3, V(0)))
    e(valu('v_bfe_u32', t1, V(0), 4, 1))
    e(valu('v_xor_b32', t0, t0, t1))
    e(valu('v_bfe_u32', t1, V(0), 2, 2))
    e(valu('v_lshl_add_u32', t0, t1, 2, t0))
    e(valu('v_lshrrev_b32', t1, 4, V(0)))
    e(valu('v_lshl_add_u32', t0, t1, 7, t0))
    e(valu('v_lshlrev_b32', t0, 4, t0))
    e(valu('v_and_b32', t1, 1, V(0)))
    e(valu('v_lshl_add_u32', t0, t1, 3, t0))
    e(valu('v_add_u32', P.vW0, WQ_BASE, t0))
    e(valu('v_xor_b32', P.vW1, 8, P.vW0))
    e(salu('s_mul_i32', 's54', S_W, 12288))
    e(salu('s_add_u32', 's54', 's54', H_BASE))
    e(valu('v_lshlrev_b32', t0, 4, V(0)))
    e(valu('v_bfe_u32', t1, V(0), 4, 1))
    e(valu('v_lshl_add_u32', t0, t1, 3, t0))
    e(valu('v_add_u32', P.vH0, 's54', t0))
    e(valu('v_xor_b32', P.vH1, 8, P.vH0))
    e(salu('s_mov_b32', 's61', CSCALE))


def wq_dma(k):
    h, j = divmod(k, 18)
    so = (j & 1) * 262144 + h * 256
    pol = OPT.get('wqpol', '')
    if OPT.get('rot') == 2 and h == 0:
        a66 = [salu('s_mov_b32', 's66', j * 262144)]
    else:
        a66 = [salu('s_lshl_b32', 's66', f's{40 + j // 2}', 12), salu('s_add_u32', 's66', 's66', so)]
    return [salu('s_add_u32', 'm0', 's56', WQ_BASE + WSLOT[k] * 8192)] + a66 + [dma(P.vWd, SRD_WQ, 's66', 0, tag=('W', k), pol=pol),
            salu('s_add_u32', 's67', 's66', 32768 - 1024), dma(P.vWd, SRD_WQ, 's67', 1024, tag=('W', k), pol=pol)]


def x_load(M, idx):
    qt, j = divmod(idx, 2)
    so = f's{40 + M % 9}'
    pre = []
    if M >= 11:
        pre.append(wait(lg=('xw', M - 2, idx)))
    if OPT.get('rot') == 2 and M < 9:
        pre.append(salu('s_mov_b32', 's64', M * 128 + qt * 18432))
        so = 's64'
    elif qt:
        pre.append(salu('s_add_u32', 's64', so, qt * 18432))
        so = 's64'
    return pre + [buf_load(V(P.x(M, qt, j), 4), P.vX1 if j else P.vX, SRD_X, so, 0, tag=('X', M, idx), pol=OPT.get('xpol', ''))]


def x_write(M, idx):
    qt, j = divmod(idx, 2)
    va, off = ((P.vBw, 0), (P.vBw, 2048), (P.vBw2, 1024))[qt]
    return [wait(vm=('X', M, idx)), ds_write('ds_write_b128', va, V(P.x(M, qt, j), 4), off + j * 512, tag=('xw', M, idx))]


def x_read_even(M, qt):
    return [ds_read('ds_read_b128', V(P.xf(0, qt), 4), P.vBr1, (1024, 3072, 3072)[qt], tag=('xf', 2 * M))]


def x_read_odd(M):
    return [ds_read('ds_read_b128', V(P.xf(1, qt), 4), P.vBr, (0, 2048, 1024)[qt], tag=('xf', 2 * M + 1)) for qt in range(3)]


def q_handoff_tile(qt, i, t, n):
    a = P.acc(qt, i, t)
    pk = P.PK + (n % 2) * 2
    ops = [valu('v_mul_f32', V(a + r), 's61', V(a + r)) for r in range(4)]
    ops.append(valu('v_cvt_pk_bf16_f32', V(pk), V(a), V(a + 1)))
    ops.append(valu('v_cvt_pk_bf16_f32', V(pk + 1), V(a + 2), V(a + 3)))
    ops.append(ds_write('ds_write_b64', P.vH0 if t == 0 else P.vH1, V(pk, 2), (qt * 4 + i) * 1024, tag='hw'))
    return ops


class G2:
    def __init__(self, name, cset, order, o, acc, F, PK, vT0, vT1, vS, slot_off, sstore):
        self.name, self.cset, self.order, self.o = name, cset, order, o
        self.ACC, self.F, self.PK, self.vT0, self.vT1, self.vS = acc, F, PK, vT0, vT1, vS
        self.slot_off = slot_off
        self.sstore = sstore
        self.fr = [(u, kb, nt) for u in range(36) for kb in range(4) for nt in range(2)]

    def acc(self, qt, nt): return self.ACC + (qt * 2 + nt) * 4

    def dma(self, u, vD):
        p, hi = divmod(u, 4)
        so = self.order[hi] * 128 * 1152 + self.cset * 576
        pol = OPT.get('wopol', '')
        return [salu('s_add_u32', 'm0', 's56', self.slot_off(u)[0]), salu('s_add_u32', 's66', f's{40 + p}', so),
                dma(vD, SRD_WO, 's66', 0, tag=('U', self.name, u), pol=pol),
                salu('s_add_u32', 's67', 's66', 18432 - 1024), dma(vD, SRD_WO, 's67', 1024, tag=('U', self.name, u), pol=pol)]

    def rd(self, n):
        if n >= len(self.fr):
            return []
        u, kb, nt = self.fr[n]
        buf = self.F + (n % 4) * 4
        va = self.vT0 if nt == 0 else self.vT1
        off = self.slot_off(u)[1] + kb * 2048
        return [ds_read('ds_read_b64_tr_b16', V(buf, 2), va, off, tag=('gf', n)),
                ds_read('ds_read_b64_tr_b16', V(buf + 2, 2), va, off + 1024, tag=('gf', n))]

    def start(self):
        return self.rd(0) + self.rd(1) + self.rd(2)

    def unit(self, u, atoms=(), otag=None):
        out = []
        q = list(atoms)
        if getattr(self, 'pend', None):
            q.insert(len(q) // 2, self.pend.pop(0))
        p, hi = divmod(u, 4)
        h = self.order[hi]
        for kb in range(4):
            for nt in range(2):
                n = u * 8 + kb * 2 + nt
                tags = [('gf', n)]
                if otag and nt == 0:
                    tags.append(otag(kb))
                out.append(wait(lg=tags))
                for qt in range(3):
                    d = self.acc(qt, nt)
                    out.append(mfma(d, self.F + (n % 4) * 4, self.o(h, qt, kb), None if (hi == 0 and kb == 0) else d))
                    if qt == 0:
                        out.extend(self.rd(n + 3))
                    elif q:
                        out.extend(q.pop(0))
        for x in q:
            out.extend(x)
        if hi == 3:
            sts = []
            for qt in range(3):
                pk = self.PKS[qt]
                for t2 in range(2):
                    a = self.acc(qt, t2)
                    out.append(valu('v_cvt_pk_bf16_f32', V(pk + 2 * t2), V(a), V(a + 1)))
                    out.append(valu('v_cvt_pk_bf16_f32', V(pk + 2 * t2 + 1), V(a + 2), V(a + 3)))
                st = [] if OPT.get('nopst') else [buf_store(V(pk, 4), self.vS, SRD_WS, self.sstore, qt * 1024, tag=('st', self.name, p), pol=OPT.get('ppol', 'sc1').replace('+', ' '))]
                if qt == 2:
                    st += [salu('s_add_u32', self.sstore, self.sstore, 3072), salu('s_sub_u32', 's55', self.sstore, 27648),
                           salu('s_cmp_ge_u32', self.sstore, 's75'), salu('s_cselect_b32', self.sstore, 's55', self.sstore)]
                sts.append(st)
            if p == 8 or OPT.get('stburst'):
                for st in sts:
                    out.extend(st)
            else:
                self.pend = sts
        return out


def g2_setup(e, cset, vT0, vT1, vS, base, t0, t1, sstore):
    e(valu('v_bfe_u32', t0, V(0), 1, 1))
    e(valu('v_bfe_u32', t1, V(0), 4, 1))
    e(valu('v_lshl_add_u32', t0, t1, 1, t0))
    e(valu('v_lshrrev_b32', t1, 2, V(0)))
    e(valu('v_lshl_add_u32', t0, t1, 2, t0))
    e(valu('v_lshlrev_b32', t0, 4, t0))
    e(valu('v_and_b32', t1, 1, V(0)))
    e(valu('v_lshl_add_u32', t0, t1, 3, t0))
    e(valu('v_add_u32', vT0, base, t0))
    e(valu('v_xor_b32', vT1, 32, vT0))
    e(valu('v_lshlrev_b32', vS, 4, V(0)))
    e(salu('s_mul_i32', sstore, S_ID, 221184))
    e(salu('s_mul_i32', 's54', S_W, 2 * 27648))
    e(salu('s_add_u32', sstore, sstore, 's54'))
    e(salu('s_add_u32', sstore, sstore, PART_WS_OFF + cset * 27648))
    e(salu('s_add_u32', 's75', sstore, 27648))
    e(salu('s_and_b32', 's54', 's34', 3 if OPT.get('prot', 1) else 0))
    e(salu('s_mul_i32', 's55', 's54', 2 * 3072))
    e(salu('s_add_u32', sstore, sstore, 's55'))
    if cset == 1:
        e(salu('s_lshl_b32', 's54', 's54', 7))
        for m in range(9):
            e(salu('s_sub_u32', 's55', 's54', 576))
            e(salu('s_cmp_ge_u32', 's54', 576))
            e(salu('s_cselect_b32', f's{40 + m}', 's55', 's54'))
            e(salu('s_add_u32', 's54', f's{40 + m}', 64))


def wo_vd(e, vD, t0, t1):
    e(valu('v_bfe_u32', t1, V(0), 4, 1))
    e(valu('v_lshlrev_b32', t1, 1, t1))
    e(valu('v_and_b32', t0, 3, V(0)))
    e(valu('v_xor_b32', t0, t0, t1))
    e(valu('v_lshlrev_b32', t0, 4, t0))
    e(valu('v_lshrrev_b32', t1, 2, V(0)))
    e(valu('v_mul_u32_u24', t1, 1152, t1))
    e(valu('v_add_u32', t0, t0, t1))
    e(salu('s_mul_i32', 's54', S_W, 32 * 1152))
    e(valu('v_add_u32', vD, 's54', t0))


A_RING = [0, 1, 2, 4, 3, 5, 6, 7]
P_PARK = {0: 208, 1: 160, 2: 112, 3: 64}
A_PARK = {3: 56, 2: A.Q, 0: 152, 1: 200}


def h_read(base, vaddr, tag):
    return [ds_read('ds_read_b128', V(base + (qt * 4 + i) * 4, 4), vaddr, (qt * 4 + i) * 1024, tag=(tag, i)) for i in range(4) for qt in range(3)]


def h_write(base, vaddr, tag):
    return [ds_write('ds_write_b128', vaddr, V(base + (qt * 4 + i) * 4, 4), (qt * 4 + i) * 1024, tag=tag) for i in range(4) for qt in range(3)]


def split_atoms(ops):
    at, cur = [], []
    for o in ops:
        cur.append(o)
        if o.kind in ('dma', 'vm'):
            at.append(cur); cur = []
    assert not cur
    return at


def p_wread(n):
    k, f = divmod(n, 8)
    i, t = f >> 1, f & 1
    buf = P.F + (n % 4) * 4
    va = P.vW0 if t == 0 else P.vW1
    off = WSLOT[k] * 8192 + i * 256
    return [ds_read('ds_read_b64_tr_b16', V(buf, 2), va, off, tag=('pf', n)),
            ds_read('ds_read_b64_tr_b16', V(buf + 2, 2), va, off + 1024, tag=('pf', n))]


def reduce_frag(ld, acc, vS, vO, s_src, s_dst, t0, t1, tagp):
    loads = []
    for hg in range(8):
        loads.append(salu('s_add_u32', 's64', s_src, hg * 221184))
        loads.append(buf_load(V(ld + 4 * hg, 4), vS, SRD_WS, 's64', 0, tag=(tagp, hg), pol='sc1'))
    comp = []
    for hg in range(8):
        comp.append(wait(vm=(tagp, hg)))
        for r in range(4):
            src = V(ld + 4 * hg + r)
            if hg == 0:
                comp.append(valu('v_lshlrev_b32', V(acc + 2 * r), 16, src))
                comp.append(valu('v_and_b32', V(acc + 2 * r + 1), 0xffff0000, src))
            else:
                comp.append(valu('v_lshlrev_b32', t0, 16, src))
                comp.append(valu('v_and_b32', t1, 0xffff0000, src))
                comp.append(valu('v_add_f32', V(acc + 2 * r), V(acc + 2 * r), t0))
                comp.append(valu('v_add_f32', V(acc + 2 * r + 1), V(acc + 2 * r + 1), t1))
    for r in range(4):
        comp.append(valu('v_cvt_pk_bf16_f32', V(ld + r), V(acc + 2 * r), V(acc + 2 * r + 1)))
    comp.append(buf_store(V(ld, 2), vO, SRD_OUT, s_dst, 0))
    comp.append(buf_store(V(ld + 2, 2), vO, SRD_OUT, s_dst, 32))
    return loads, comp


SRD_OUT, SRD_DBG = 's[8:11]', 's[12:15]'


def red_setup(e, vO, t0):
    e(salu('s_mov_b32', 's8', 's4')); e(salu('s_mov_b32', 's9', 's5'))
    e(salu('s_mov_b32', 's10', 16 * 192 * 1152 * 2)); e(salu('s_mov_b32', 's11', 0x20000))
    e(salu('s_mov_b32', 's12', 's72')); e(salu('s_mov_b32', 's13', 's73'))
    e(salu('s_mov_b32', 's14', 256)); e(salu('s_mov_b32', 's15', 0x20000))
    e(salu('s_and_b32', 's54', 's35', 3))
    e(salu('s_lshr_b32', 's55', 's35', 2))
    e(salu('s_mul_i32', 's68', 's34', 8 * 221184))
    e(salu('s_mul_i32', 's64', 's54', 2 * 27648))
    e(salu('s_add_u32', 's68', 's68', 's64'))
    e(salu('s_mul_i32', 's64', 's55', 27648))
    e(salu('s_add_u32', 's68', 's68', 's64'))
    if PART_WS_OFF: e(salu('s_add_u32', 's68', 's68', PART_WS_OFF))
    e(salu('s_mul_i32', 's69', 's37', 192 * 2304))
    e(salu('s_mul_i32', 's64', 's54', 48 * 2304))
    e(salu('s_add_u32', 's69', 's69', 's64'))
    e(salu('s_mul_i32', 's64', 's36', 1152))
    e(salu('s_add_u32', 's69', 's69', 's64'))
    e(salu('s_mul_i32', 's64', 's55', 576))
    e(salu('s_add_u32', 's69', 's69', 's64'))
    e(salu('s_lshl_b32', 's70', 's34', 2))
    e(valu('v_and_b32', vO, 15, V(0)))
    e(valu('v_mul_u32_u24', vO, 2304, vO))
    e(valu('v_lshrrev_b32', t0, 4, V(0)))
    e(valu('v_lshl_add_u32', vO, t0, 3, vO))


def signal(lab, t0, t1):
    return [salu('s_cmp_eq_u32', S_WAVE, 4), raw(f's_cbranch_scc0 {lab}', 'branch'),
            salu('s_lshl_b32', 's64', 's35', 2), salu('s_lshl_b32', 's64', 1, 's64'),
            valu('v_mov_b32', t0, 's64'), valu('v_mov_b32', t1, 0), raw('s_mov_b64 exec, 1'),
            Ins(f'buffer_atomic_add {t0}, {t1}, {SRD_DBG}, s70 offen sc1', 'salu', rd=[t0.n, t1.n]),
            raw('s_mov_b64 exec, -1'), label(lab)]


def poll(lab, level, t0, t1):
    c = [valu('v_mov_b32', t1, 0), salu('s_mov_b32', 's65', 0), label(lab),
         raw(f'buffer_load_dword {t0}, {t1}, {SRD_DBG}, s70 offen sc1'), raw('s_waitcnt vmcnt(0)'),
         valu('v_readfirstlane_b32', 's64', t0)]
    if level == 1:
        c += [nop(2), salu('s_lshr_b32', 's66', 's64', 1), salu('s_or_b32', 's64', 's64', 's66'), salu('s_and_b32', 's64', 's64', 0x11111111),
              salu('s_cmp_eq_u32', 's64', 0x11111111)]
    else:
        c += [nop(2), salu('s_cmp_eq_u32', 's64', 0x22222222)]
    c += [raw(f's_cbranch_scc1 {lab}_ok', 'branch'), salu('s_add_u32', 's65', 's65', 1), raw('s_sleep 2'),
          salu('s_cmp_lt_u32', 's65', 1 << 22), raw(f's_cbranch_scc1 {lab}', 'branch'), label(f'{lab}_ok')]
    return c


def frag_offsets(sidx):
    return [salu('s_lshl_b32', 's66', sidx, 10), salu('s_add_u32', 's66', 's66', 's68'),
            salu('s_mul_i32', 's64', sidx, 43), salu('s_lshr_b32', 's64', 's64', 7),
            salu('s_mul_i32', 's65', 's64', 3), salu('s_sub_u32', 's65', sidx, 's65'),
            salu('s_mul_i32', 's65', 's65', 16 * 2304), salu('s_lshl_b32', 's64', 's64', 6),
            salu('s_add_u32', 's67', 's69', 's65'), salu('s_add_u32', 's67', 's67', 's64')]


def build_k1():
    INK = OPT.get('inred', 1)
    head = []
    e = head.append
    common_prologue(e)
    head += q0_phase()
    e(salu('s_cmp_ge_u32', S_WAVE, 4))
    e(raw('s_cbranch_scc0 L_A', 'branch'))
    e(raw('s_branch L_P', 'branch'))

    names = [('IT', t) for t in range(-1, 64)]
    quota = {n: 0 for n in names}
    T0 = 0
    QE, QN, QC = OPT.get('qe', 9), OPT.get('qn', 9), OPT.get('qc', 9)
    def fill(ts, total, fixed):
        rest = [t for t in ts if t not in fixed]
        rem = total - sum(fixed.values())
        for i, t in enumerate(rest):
            quota[('IT', t)] = (rem * (i + 1)) // len(rest) - (rem * i) // len(rest)
        for t, v in fixed.items():
            quota[('IT', t)] = v
    if OPT.get('kal', 0):
        for t in range(0, 45): quota[('IT', t)] = 8
        for t in (2, 4, 6, 8, 10, 18, 23, 34, 39): quota[('IT', t)] = 16
    else:
        fill(range(0, 14), 150, {0: 8})
        fill(range(14, 30), 144, {15: QN, 16: QE, 28: QC, 29: QC})
        fill(range(30, 46), 138, {31: QN, 32: QE, 44: QC, 45: 0})
    start = {}
    c = 144
    for n in names:
        start[n] = c; c += quota[n]
    assert c == 576
    iv_of = {}
    for idx, n in enumerate(names):
        for fr in range(start[n], start[n] + quota[n]):
            iv_of[fr] = idx
    hdead = {1: ('IT', 13), 2: ('IT', 29), 3: ('IT', 45)}
    for hq in (1, 2): assert start[hdead[hq]] + quota[hdead[hq]] >= 144 * hq + 150
    front = {}

    NG = 576 * 3
    gaps = [[] for _ in range(NG + 1)]

    ZF = OPT.get('zone', 62)
    pref = [False] * (NG + 64)
    for n in names:
        if n[0] == 'IT':
            for g in range(start[n] * 3, start[n] * 3 + (quota[n] * 3 * ZF) // 100):
                pref[g] = True
        else:
            for g in range(start[n] * 3, (start[n] + quota[n]) * 3):
                pref[g] = True

    def chain(atoms, lo, hi, zone=True):
        n = len(atoms)
        Z = [g for g in range(lo, hi + 1) if pref[g]] if zone else []
        if len(Z) * 2 < n or not Z:
            Z = list(range(lo, hi + 1))
        for a, at in enumerate(atoms):
            g = Z[(a * (len(Z) - 1)) // max(n - 1, 1)]
            gaps[min(g, NG)].append(at)
    for k in range(18, 72):
        M = k // 2
        g0 = k * 24
        at = []
        if k % 2 == 0:
            at.append(x_read_odd(M))
            lw = [x_write(M + 1, i) for i in range(3)] if M + 1 < 36 else []
            ll = [x_load(M + 2, i) for i in range(3, 6)] if M + 2 < 36 else []
            while lw or ll:
                if ll: at.append(ll.pop(0))
                if lw: at.append(lw.pop(0))
        elif M + 1 < 36:
            ll = [x_load(M + 3, i) for i in range(3)] if M + 3 < 36 else [[], [], []]
            at += [x_write(M + 1, 3), x_read_even(M + 1, 0) + x_read_even(M + 1, 1), ll[0], x_write(M + 1, 4), ll[1], x_write(M + 1, 5),
                   x_read_even(M + 1, 2), ll[2]]
        if OPT.get('kal', 0) and any(start[n] == k * 8 and quota[n] for n in names):
            front[k * 8] = at
        else:
            chain(at, g0 + 1, g0 + 21)
        if k % 18 == 17:
            cv = []
            nn = 0
            for f in range(8):
                for qt in range(3):
                    o = q_handoff_tile(qt, f >> 1, f & 1, nn); nn += 1
                    cv += [o[:4], o[4:]]
            chain(cv, g0 + 6, g0 + 39, zone=False)
        if k in (52, 70):
            hr = [valu('v_and_b32', P.T0, ~15, P.vH0)] + h_read(P_PARK[0 if k == 52 else 1], P.T0, ('po', k))
            chain([hr[:4], hr[4:7], hr[7:10], hr[10:]], g0 + 8, g0 + 20)

    pslot = {}
    free = list(range(6))
    for u in range(36):
        if u == 13: free += [6, 7]
        pslot[u] = None
    seq = list(range(6))
    gA = G2('A', 0, [3, 2, 0, 1], lambda h, qt, i: A_PARK[h] + (qt * 4 + i) * 4, acc=8, F=32, PK=0, vT0=V(2), vT1=V(3), vS=V(4),
            slot_off=lambda u: (A_RING[u % 8] * 8192, A_RING[u % 8] * 8192), sstore='s74')
    gP = G2('P', 1, [0, 1, 2, 3], lambda h, qt, i: P_PARK[h] + (qt * 4 + i) * 4, acc=32, F=16, PK=0, vT0=V(6), vT1=V(7), vS=V(5),
            slot_off=lambda u: (WQ_BASE + pslot[u] * 8192, pslot[u] * 8192), sstore='s74')
    gA.PKS = [48, 52, 248]
    gP.PKS = [56, 60, 12]
    p_issue = {}
    fl = list(range(6))
    nxt = 0
    for u in range(5):
        pslot[u] = fl.pop(0); nxt += 1
    for sv in range(36):
        if sv >= 1:
            fl.append(pslot[sv - 1])
        if sv == 7:
            fl += [6, 7]
        lst = []
        while fl and nxt < 36 and len(lst) < 2:
            pslot[nxt] = fl.pop(0); lst.append(nxt); nxt += 1
        p_issue[sv] = lst

    w_issue = {}
    fl = [3]
    wn = 18
    for idx in range(len(names)):
        if idx == 1: fl += [0, 1, 2]
        for k in range(18, wn):
            if iv_of[k * 8 + 7] == idx - 1:
                fl.append(WSLOT[k])
        lst = []
        while wn < 72 and fl:
            WSLOT[wn] = fl.pop(0); lst.append(wn); wn += 1
        w_issue[idx] = lst

    pc = [label('L_P')]
    if OPT.get('prioP'): pc.append(salu('s_setprio', OPT['prioP']))
    pc.append(salu('s_mul_i32', 's54', S_W, 6144))
    pc.append(salu('s_add_u32', 's54', 's54', QT_BASE))
    pc.append(valu('v_lshlrev_b32', P.T0, 4, V(0)))
    pc.append(valu('v_add_u32', P.T0, 's54', P.T0))
    for i in range(2):
        for qt in range(3):
            pc.append(ds_write('ds_write_b128', P.T0, V(A.q(qt, i), 4), (qt * 2 + i) * 1024, tag='qt'))
    pc.append(wait(vm=[('K0', 0)], lg='qt'))
    pc.append(barrier())
    p_setup(pc.append)
    for i in range(6): pc.extend(x_load(9, i))
    for i in range(6): pc.extend(x_load(10, i))
    p_setup2(pc.append)
    vHl = V(8)
    published = set()
    pc.append(salu('s_mul_i32', 's75', 's37', 36864))
    pc.append(salu('s_mul_i32', 's55', S_W, 9216))
    pc.append(salu('s_add_u32', 's75', 's75', 's55'))
    pc.append(salu('s_sub_u32', 's75', 's75', 9 * 128))
    pc.append(valu('v_lshlrev_b32', V(203), 7, V(0)))
    pc.append(valu('v_mov_b32', V(204), 0x7fffff00))
    pc.append(valu('v_cmp_gt_u32', 'vcc', 9, V(0)))
    pc.append(valu('v_cndmask_b32', V(203), V(204), V(203), 'vcc'))
    vD = V(4)
    rd_next = 144
    for idx, n in enumerate(names):
        side = []
        need = []
        post = []
        lg = None
        t = n[1] if n[0] == 'IT' else None
        f0, q = start[n], quota[n]
        for k in w_issue[idx]:
            side += split_atoms(wq_dma(k))
        newpub = set()
        if idx + 1 < len(names):
            n2 = names[idx + 1]
            newpub = {fr // 8 for fr in range(start[n2], start[n2] + quota[n2])}
            need += [('W', k) for k in sorted(newpub)]
        if n in hdead.values():
            lg = 'hw'
        if n[0] == 'IT':
            if 0 <= t and t + 4 <= 63:
                side += split_atoms(k_dma(P.vKd, t + 4))
            if 2 <= t and t + 2 <= 63:
                side += split_atoms(v_dma(P.vVd, t + 2))
            if 4 <= t + 1 <= 63:
                need.append(('V', t + 1))
            if 4 <= t + 3 <= 63:
                need.append(('K', t + 3))
            if OPT.get('wot', 'p') == 'p' and t in range(3, 35, 4):
                side.append([salu('s_add_u32', 's75', 's75', 9 * 128), buf_load(V(204), V(203), SRD_WO, 's75', 0)])
            if t == -1:
                need += [('V0', 0), ('K0', 2), ('V0', 2)]
            if t == T0 - 1:
                for i in range(4): post.extend(x_write(9, i))
                post.extend(x_read_even(9, 0) + x_read_even(9, 1) + x_write(9, 4) + x_write(9, 5) + x_read_even(9, 2))
                for i in range(3): post.extend(x_load(11, i))
            if t == 45:
                for at in gaps[NG]: post.extend(at)
            if t == 47:
                wo_vd(post.append, vD, P.T0, V(12))
                g2_setup(post.append, 1, gP.vT0, gP.vT1, gP.vS, WQ_BASE, P.T0, V(12), 's74')
                post.append(valu('v_and_b32', vHl, ~15, P.vH0))
            if t == 50:
                post += h_read(P_PARK[2], vHl, ('po', t)); lg = 'all'
            if 54 <= t <= 58:
                post += gP.dma(t - 54, vD)
            if t == 59:
                need += [('U', 'P', 0), ('U', 'P', 1)]
            if t == 60:
                post += gA.dma(0, vD)
            if t in (61, 62, 63):
                v = t - 61
                if t == 61:
                    post += gP.start()
                at = []
                for u in p_issue[v]:
                    at += split_atoms(gP.dma(u, vD))
                for u in ([1], [2, 3], [4, 5])[v]: at += split_atoms(gA.dma(u, vD))
                post += gP.unit(v, at)
                need.append(('U', 'P', v + 2))
                if t == 63:
                    need += [('U', 'A', 0), ('U', 'A', 1)]
        boost = OPT.get('boost') and n[0] == 'IT' and t in (15, 16, 31, 32)
        if boost: pc.append(salu('s_setprio', 2))
        if q:
            while rd_next < min(f0 + 3, 576) and rd_next // 8 in published:
                pc.extend(p_wread(rd_next)); rd_next += 1
            tgt = {}
            if OPT.get('kal', 0):
                if OPT.get('fprio'): pc.append(salu('s_setprio', 2))
                for at in front.get(f0, []) + side: pc.extend(at)
                if OPT.get('fprio'): pc.append(salu('s_setprio', OPT.get('mprio', 0)))
            else:
                if side:
                    pc.extend(side.pop(0))
                ng = max(1, (q * 3 * ZF) // 100)
                for a, at in enumerate(side):
                    tgt.setdefault((a * ng) // len(side), []).append(at)
            for fr in range(f0, f0 + q):
                k, f = divmod(fr, 8)
                i, tt = f >> 1, f & 1
                pc.append(wait(lg=[('pf', fr)] + ([('xf', k)] if f == 0 else [])))
                rd = []
                if rd_next == fr + 3 and rd_next < 576 and rd_next // 8 in published:
                    rd = p_wread(rd_next); rd_next += 1
                for qt in range(3):
                    d = P.acc(qt, i, tt)
                    pc.append(mfma(d, P.F + (fr % 4) * 4, P.xf(k, qt), d if k % 18 else None))
                    if qt < len(rd): pc.append(rd[qt])
                    for at in gaps[fr * 3 + qt]:
                        pc.extend(at)
                    for at in tgt.get((fr - f0) * 3 + qt, []):
                        pc.extend(at)
                if OPT.get('pfine') == t and fr - f0 < 10: pc.extend(stamp(fr - f0 + 2))
        else:
            for at in side:
                pc.extend(at)
        pc.extend(post)
        if boost: pc.append(salu('s_setprio', 0))
        pc.append(wait(vm=need, lg=lg))
        pc.append(barrier())
        published |= newpub
        if OPT.get('novm') and n == ('IT', 0): novm0 = len(pc)
        if OPT.get('novm') and n == ('IT', 52):
            for x in pc[novm0:]:
                if x.kind in ('dma', 'vm'):
                    kk = 'kv' if x.tag and x.tag[0] in 'KV' else ('w' if x.tag and x.tag[0] == 'W' else 'x')
                    if OPT['novm'] == 'all' or kk in OPT['novm'].split('+'):
                        x.text = 's_nop 0'
        st = {('IT', -1): 3, ('IT', 0): 4, ('IT', 16): 5, ('IT', 32): 6, ('IT', 48): 7, ('IT', 63): 8}
        if OPT.get('stpro'):
            st = {('PRO', k): i + 1 for i, k in enumerate([0, 1, 3, 5, 7, 9, 11, 13, 15, 17])}; st[('HND', 0)] = 11
        if OPT.get('stit') is not None:
            st = {('IT', OPT['stit'] + i): i + 1 for i in range(11)}
        if 'stg' in OPT: st = {}
        if 'pfine' in OPT: st = {('IT', OPT['pfine'] - 1): 1}
        if n in st:
            pc.extend(stamp(st[n]))
    nost = OPT.get('stpro') or 'stit' in OPT or 'stg' in OPT or 'pfine' in OPT
    for g in range(33):
        v = g + 3
        at = []
        need = []
        for u in p_issue[v]:
            at += split_atoms(gP.dma(u, vD))
        if g == 0:
            at += split_atoms(gA.dma(6, vD))
        if g + 7 < 36:
            at += split_atoms(gA.dma(g + 7, vD))
        if v + 2 < 36:
            need.append(('U', 'P', v + 2))
        need.append(('U', 'A', g + 2 if g < 32 else 35))
        lg = None
        otag = None
        if g == 0:
            pc += h_read(P_PARK[3], vHl, 'po3')
            otag = lambda kb: ('po3', kb)
            hw = h_write(P_PARK[0], vHl, 'hw0'); at = [[x] for x in hw] + at; lg = 'hw0'
        if g == 2:
            hw = h_write(P_PARK[1], vHl, 'hw1'); at = [[x] for x in hw] + at; lg = 'hw1'
        if g == 5 and INK:
            rs = []; red_setup(rs.append, V(9), V(1)); at = [rs[i:i + 4] for i in range(0, len(rs), 4)] + at
        if g == 30 and INK:
            need.append(('st', 'P', 6))
        if g == 31 and INK:
            pc += signal('L_sig1', V(1), V(2))
        pc += gP.unit(v, at, otag)
        pc.append(wait(vm=need, lg=lg))
        pc.append(barrier())
        if 'stg' in OPT and 0 <= g - OPT['stg'] < 11: pc.extend(stamp(g - OPT['stg'] + 1))
    if not nost: pc.extend(stamp(9))
    if INK:
        pc += poll('L_poll1', 1, V(1), V(2))
        NF = 6
        lc = []
        for r in range(NF):
            pre = [salu('s_add_u32', 's71', S_W, 4 * r), salu('s_min_u32', 's71', 's71', 20)] + frag_offsets('s71') + \
                  [salu('s_mov_b32', f's{40 + r}', 's67')]
            ld, cp = reduce_frag(64 + 32 * r, 16, gP.vS, V(9), 's66', f's{40 + r}', V(1), V(2), ('r1', r))
            lc.append((pre + ld, cp))
        for r in range(NF):
            pc += lc[r][0]
        for r in range(NF):
            pc += lc[r][1]
        pc.append(wait(vm=('st', 'P', 8)))
        pc.append(barrier())
        if not nost: pc.extend(stamp(10))
        pc += signal('L_sig2', V(1), V(2))
        pc += [salu('s_cmp_ge_u32', S_W, 2), raw('s_cbranch_scc1 L_P_end', 'branch')]
        pc += poll('L_poll2p', 2, V(1), V(2))
        pc += [salu('s_add_u32', 's71', S_W, 25)] + frag_offsets('s71')
        ld, cp = reduce_frag(64, 16, gP.vS, V(9), 's66', 's67', V(1), V(2), 'r2')
        pc += ld + cp
        pc.append(label('L_P_end'))
    if not nost: pc.extend(stamp(11))
    pc.extend(stamp_out())
    pc.extend(dbg_out())
    pc.append(raw('s_endpgm', 'branch'))
    resolve_waits(head + pc)
    while hazards(head + pc):
        pass

    def osink(h):
        def sink(qt, i, buf):
            return [ds_write('ds_write_b128', A.vH, buf, (qt * 4 + i) * 1024, tag='ow')]
        return sink
    ag = AGen(osink)
    apro = [label('L_A')]
    e = apro.append
    if OPT.get('prioA', 1): e(salu('s_setprio', OPT.get('prioA', 1)))

    a_setup(e)
    e(salu('s_mov_b32', 's71', 0))
    e(salu('s_mul_i32', 's54', S_W, 6144))
    e(salu('s_add_u32', 's54', 's54', QT_BASE))
    e(valu('v_add_u32', A.T0, 's54', A.vO))
    e(wait(vm=[('K0', 0)]))
    e(barrier())
    for n in (0, 2):
        apro.extend(ag.read(n))
    for i in range(2):
        for qt in range(3):
            e(ds_read('ds_read_b128', V(A.q(qt, 2 + i), 4), A.T0, (qt * 2 + i) * 1024, tag='qt'))
    e(wait(lg='qt'))
    def bar(t):
        b = []
        if t == 0: b.append(wait(vm='all'))
        if t % 16 == 1: b.append(wait(lg='ow' if t > 1 else None))
        b.append(barrier())
        if t == 0: b += stamp(3)
        def cst(k):
            if not STAMPS: return []
            return [salu('s_cmp_eq_u32', 's71', OPT.get('sth', 3)), raw(f's_cbranch_scc0 L_cs{k}', 'branch')] + stamp(k) + [label(f'L_cs{k}')]
        if t % 16 == 5: b += cst(5)
        if t % 16 == 6: b = cst(6) + b + cst(7)
        return b
    apro.extend(ag.iteration(-1))
    apro.extend(ag.iteration(0, bar=bar(0))); apro.extend(stamp(4))
    bodies = []
    for h in range(4):
        b = []
        for j in range(1, 14):
            b.extend(ag.iteration(16 * h + j, bar=bar(16 * h + j)))
        b.append(salu('s_cmp_eq_u32', 's71', 3))
        b.append(raw('s_cbranch_scc1 L_A_tail', 'branch'))
        if h < 3:
            for j in (14, 15, 16):
                b.extend(ag.iteration(16 * h + j, bar=bar(16 * h + j)))
            b.append(salu('s_add_u32', 's71', 's71', 1))
            b.append(raw('s_branch L_A_loop', 'branch'))
        bodies.append(b)
    tail = [label('L_A_tail')]
    tail.extend(ag.iteration(62, bar=bar(62)))
    tail.extend(ag.iteration(63, bar=bar(63)))
    eo = epilogue_ops(osink(3), dst=lambda qt, i: A_PARK[3] + (qt * 4 + i) * 4)
    tail.extend(ag.iteration(64))
    tail.extend(eo)
    g2_setup(tail.append, 0, gA.vT0, gA.vT1, gA.vS, 0, A.T0, A.T1, 's74')
    tail.append(wait(lg='all'))
    tail.append(barrier())
    tail.extend(stamp(8))
    if OPT.get('prio2') is not None: tail.append(salu('s_setprio', OPT['prio2']))
    tail += gA.start()
    for g in range(36):
        at = []
        otag = None
        lg = None
        vmn = None
        if g == 1:
            at = [[x] for x in h_read(A_PARK[0], A.vH, 'ao0')]; lg = ('ao0', 3)
        if g == 3:
            tail += h_read(A_PARK[1], A.vH, 'ao1')
            otag = lambda kb: ('ao1', kb)
        if g == 5 and INK:
            rs = []; red_setup(rs.append, V(6), V(1)); at = [rs[i:i + 4] for i in range(0, len(rs), 4)]
        if g == 30 and INK:
            vmn = ('st', 'A', 6)
        tail += gA.unit(g, at, otag)
        if g <= 32:
            tail.append(wait(lg=lg, vm=vmn))
            tail.append(barrier())
    tail.extend(stamp(9))
    if INK:
        tail.append(wait(vm='all'))
        tail.append(barrier())
        tail.extend(stamp(10))
        tail += poll('L_poll2a', 2, V(1), V(7))
        tail += [salu('s_add_u32', 's71', S_W, 21)] + frag_offsets('s71')
        ld, cp = reduce_frag(64, 16, gA.vS, V(6), 's66', 's67', V(1), V(7), 'r2')
        tail += ld + cp
    tail.extend(stamp(11))
    tail.extend(stamp_out())
    tail.append(raw('s_endpgm', 'branch'))
    resolve_waits(head + apro + bodies[0] + bodies[1] + bodies[2] + bodies[3] + tail)
    body = fold(bodies)
    npre = len(bodies[3])
    while hazards(head + apro + body + body + body[:npre] + tail):
        pass
    rare = []
    for site, lab in rare_sites:
        rare += [label(f'TR_{site}'), raw(f's_call_b64 s[62:63], {lab}', 'branch'), raw(f's_branch RET_{site}', 'branch')]
    for var, lab in rare_variants.items():
        rc = rare_code(var, lab)
        while hazards(rc):
            pass
        rare += rc
    nb = lambda q: sum(1 for i in q if i.kind == 'barrier')
    na = nb(apro) + 3 * nb(body) + nb(body[:npre]) + nb(tail)
    assert na == nb(pc), (na, nb(pc))
    print(stats(apro, 'A pro'), file=sys.stderr); print(stats(body, 'A body'), file=sys.stderr)
    print(stats(tail, 'A tail'), file=sys.stderr); print(stats(pc, 'P'), file=sys.stderr); print(stats(rare, 'rare'), file=sys.stderr)
    lines = render(head) + render(apro) + ['.p2align 6', 'L_A_loop:'] + render(body) + render(rare) + render(tail) + ['.p2align 6'] + render(pc) + ['L_k1_end:']
    return lines

def build_k3_old():
    c = []
    e = c.append
    e(raw('s_cmp_ge_u32 s2, 1728')); e(raw('s_cbranch_scc0 L3_go')); e(raw('s_endpgm')); e(label('L3_go'))
    e(raw('s_load_dwordx2 s[4:5], s[0:1], 80'))
    e(raw('s_load_dwordx2 s[6:7], s[0:1], 96'))
    e(valu('v_lshrrev_b32', V(1), 6, V(0)))
    e(valu('v_readfirstlane_b32', 's16', V(1)))
    e(valu('v_and_b32', V(0), 63, V(0)))
    if OPT.get('k3x', 1):
        e(salu('s_and_b32', 's17', 's2', 7))
        e(salu('s_mul_i32', 's17', 's17', 216))
        e(salu('s_lshr_b32', 's18', 's2', 3))
        e(salu('s_add_u32', 's17', 's17', 's18'))
        e(salu('s_lshl_b32', 's17', 's17', 2))
    else:
        e(salu('s_lshl_b32', 's17', 's2', 2))
    e(salu('s_add_u32', 's17', 's17', 's16'))
    e(salu('s_mul_hi_u32', 's18', 's17', (2 ** 32 + 215) // 216))
    e(salu('s_mul_i32', 's19', 's18', 216))
    e(salu('s_sub_u32', 's19', 's17', 's19'))
    e(salu('s_mul_hi_u32', 's20', 's19', (2 ** 32 + 26) // 27))
    e(salu('s_mul_i32', 's21', 's20', 27))
    e(salu('s_sub_u32', 's21', 's19', 's21'))
    e(salu('s_mul_hi_u32', 's22', 's21', (2 ** 32 + 2) // 3))
    e(salu('s_mul_i32', 's23', 's22', 3))
    e(salu('s_sub_u32', 's23', 's21', 's23'))
    e(raw('s_waitcnt lgkmcnt(0)'))
    e(salu('s_mov_b32', 's8', 's6')); e(salu('s_mov_b32', 's9', 's7'))
    e(salu('s_mov_b32', 's10', PART_WS_OFF + 256 * 221184)); e(salu('s_mov_b32', 's11', 0x20000))
    e(salu('s_mov_b32', 's12', 's4')); e(salu('s_mov_b32', 's13', 's5'))
    e(salu('s_mov_b32', 's14', 16 * 192 * 1152 * 2)); e(salu('s_mov_b32', 's15', 0x20000))
    e(salu('s_mul_i32', 's24', 's18', 8 * 221184))
    e(salu('s_lshl_b32', 's25', 's19', 10))
    e(salu('s_add_u32', 's24', 's24', 's25'))
    e(salu('s_add_u32', 's24', 's24', PART_WS_OFF))
    e(valu('v_lshlrev_b32', V(1), 4, V(0)))
    for hg in range(8):
        e(buf_load(V(8 + 4 * hg, 4), V(1), 's[8:11]', 's24', 0, tag=('p', hg), pol=OPT.get('rpol', '').replace('+', ' ')))
        e(salu('s_add_u32', 's24', 's24', 221184))
    e(salu('s_and_b32', 's26', 's18', 15))
    e(salu('s_mul_i32', 's26', 's26', 192))
    e(salu('s_lshr_b32', 's27', 's20', 1))
    e(salu('s_mul_i32', 's27', 's27', 48))
    e(salu('s_add_u32', 's26', 's26', 's27'))
    e(salu('s_lshl_b32', 's27', 's23', 4))
    e(salu('s_add_u32', 's26', 's26', 's27'))
    e(salu('s_mul_i32', 's26', 's26', 2304))
    e(salu('s_lshr_b32', 's27', 's18', 4))
    e(salu('s_mul_i32', 's27', 's27', 1152))
    e(salu('s_add_u32', 's26', 's26', 's27'))
    e(salu('s_and_b32', 's27', 's20', 1))
    e(salu('s_mul_i32', 's27', 's27', 576))
    e(salu('s_add_u32', 's26', 's26', 's27'))
    e(salu('s_lshl_b32', 's27', 's22', 6))
    e(salu('s_add_u32', 's26', 's26', 's27'))
    e(valu('v_and_b32', V(2), 15, V(0)))
    e(valu('v_mul_u32_u24', V(2), 2304, V(2)))
    e(valu('v_lshrrev_b32', V(3), 4, V(0)))
    e(valu('v_lshl_add_u32', V(2), V(3), 3, V(2)))
    ACC = 40
    for hg in range(8):
        e(wait(vm=('p', hg)))
        for r in range(4):
            src = V(8 + 4 * hg + r)
            if hg == 0:
                e(valu('v_lshlrev_b32', V(ACC + 2 * r), 16, src))
                e(valu('v_and_b32', V(ACC + 2 * r + 1), 0xffff0000, src))
            else:
                e(valu('v_lshlrev_b32', V(4), 16, src))
                e(valu('v_and_b32', V(5), 0xffff0000, src))
                e(valu('v_add_f32', V(ACC + 2 * r), V(ACC + 2 * r), V(4)))
                e(valu('v_add_f32', V(ACC + 2 * r + 1), V(ACC + 2 * r + 1), V(5)))
    for r in range(4):
        e(valu('v_cvt_pk_bf16_f32', V(8 + r), V(ACC + 2 * r), V(ACC + 2 * r + 1)))
    e(buf_store(V(8, 2), V(2), 's[12:15]', 's26', 0))
    e(buf_store(V(10, 2), V(2), 's[12:15]', 's26', 32))
    if OPT.get('dbg'):
        e(raw('s_load_dwordx2 s[28:29], s[0:1], 88'))
        e(salu('s_cmp_eq_u32', 's2', 0)); e(raw('s_cbranch_scc0 L3_nod', 'branch'))
        e(salu('s_mov_b32', 's10', 60000000)); e(salu('s_mov_b32', 's24', 58000000))
        e(valu('v_lshlrev_b32', V(1), 2, V(0)))
        e(buf_load(V(4), V(1), 's[8:11]', 's24', 0, tag='d'))
        e(raw('s_waitcnt vmcnt(0) lgkmcnt(0)'))
        e(salu('s_mov_b32', 's12', 's28')); e(salu('s_mov_b32', 's13', 's29')); e(salu('s_mov_b32', 's14', 64))
        e(buf_store(V(4), V(1), 's[12:15]', 0, 0))
        e(label('L3_nod'))
    e(raw('s_endpgm', 'branch'))
    resolve_waits(c)
    while hazards(c):
        pass
    return render(c)


def build_k3():
    c = []
    e = c.append
    e(raw('s_cmp_ge_u32 s2, 256')); e(raw('s_cbranch_scc0 L3_go')); e(raw('s_endpgm')); e(label('L3_go'))
    e(raw('s_load_dwordx2 s[4:5], s[0:1], 80'))
    e(raw('s_load_dwordx2 s[6:7], s[0:1], 96'))
    e(valu('v_lshrrev_b32', V(1), 6, V(0)))
    e(valu('v_readfirstlane_b32', 's22', V(1)))
    e(valu('v_and_b32', V(0), 63, V(0)))
    e(salu('s_and_b32', 's17', 's2', 7))
    e(salu('s_lshr_b32', 's19', 's2', 3))
    e(salu('s_lshl_b32', 's18', 's17', 2))
    e(salu('s_lshr_b32', 's20', 's19', 3))
    e(salu('s_add_u32', 's18', 's18', 's20'))
    e(salu('s_and_b32', 's20', 's19', 7))
    e(salu('s_mul_i32', 's24', 's18', 8 * 221184))
    e(salu('s_mul_i32', 's25', 's20', 27648))
    e(salu('s_add_u32', 's24', 's24', 's25'))
    e(salu('s_mul_i32', 's25', 's22', 3072))
    e(salu('s_add_u32', 's24', 's24', 's25'))
    if PART_WS_OFF: e(salu('s_add_u32', 's24', 's24', PART_WS_OFF))
    e(valu('v_lshlrev_b32', V(1), 4, V(0)))
    e(raw('s_waitcnt lgkmcnt(0)'))
    e(salu('s_mov_b32', 's8', 's6')); e(salu('s_mov_b32', 's9', 's7'))
    e(salu('s_mov_b32', 's10', PART_WS_OFF + 256 * 221184)); e(salu('s_mov_b32', 's11', 0x20000))
    LD = 16
    for qt in range(3):
        for hg in range(8):
            e(salu('s_add_u32', 's25', 's24', hg * 221184))
            e(buf_load(V(LD + (qt * 8 + hg) * 4, 4), V(1), 's[8:11]', 's25', qt * 1024, tag=('p', qt, hg), pol=OPT.get('rpol', '').replace('+', ' ')))
    e(salu('s_mov_b32', 's12', 's4')); e(salu('s_mov_b32', 's13', 's5'))
    e(salu('s_mov_b32', 's14', 16 * 192 * 1152 * 2)); e(salu('s_mov_b32', 's15', 0x20000))
    e(salu('s_and_b32', 's26', 's18', 15))
    e(salu('s_mul_i32', 's26', 's26', 192))
    e(salu('s_lshr_b32', 's27', 's20', 1))
    e(salu('s_mul_i32', 's27', 's27', 48))
    e(salu('s_add_u32', 's26', 's26', 's27'))
    e(salu('s_mul_i32', 's26', 's26', 2304))
    e(salu('s_lshr_b32', 's27', 's18', 4))
    e(salu('s_mul_i32', 's27', 's27', 1152))
    e(salu('s_add_u32', 's26', 's26', 's27'))
    e(salu('s_and_b32', 's27', 's20', 1))
    e(salu('s_mul_i32', 's27', 's27', 576))
    e(salu('s_add_u32', 's26', 's26', 's27'))
    e(salu('s_lshl_b32', 's27', 's22', 6))
    e(salu('s_add_u32', 's26', 's26', 's27'))
    e(valu('v_and_b32', V(2), 15, V(0)))
    e(valu('v_mul_u32_u24', V(2), 2304, V(2)))
    e(valu('v_lshrrev_b32', V(3), 4, V(0)))
    e(valu('v_lshl_add_u32', V(2), V(3), 3, V(2)))
    ACC = 8
    for qt in range(3):
        for hg in range(8):
            e(wait(vm=('p', qt, hg)))
            for r in range(4):
                src = V(LD + (qt * 8 + hg) * 4 + r)
                if hg == 0:
                    e(valu('v_lshlrev_b32', V(ACC + 2 * r), 16, src))
                    e(valu('v_and_b32', V(ACC + 2 * r + 1), 0xffff0000, src))
                else:
                    e(valu('v_lshlrev_b32', V(4), 16, src))
                    e(valu('v_and_b32', V(5), 0xffff0000, src))
                    e(valu('v_add_f32', V(ACC + 2 * r), V(ACC + 2 * r), V(4)))
                    e(valu('v_add_f32', V(ACC + 2 * r + 1), V(ACC + 2 * r + 1), V(5)))
        o = LD + qt * 32
        for r in range(4):
            e(valu('v_cvt_pk_bf16_f32', V(o + r), V(ACC + 2 * r), V(ACC + 2 * r + 1)))
        e(buf_store(V(o, 2), V(2), 's[12:15]', 's26', 0))
        e(buf_store(V(o + 2, 2), V(2), 's[12:15]', 's26', 32))
        e(salu('s_add_u32', 's26', 's26', 16 * 2304))
    e(raw('s_endpgm', 'branch'))
    resolve_waits(c)
    while hazards(c):
        pass
    return render(c)


def kd(name, vgpr, sgpr=102):
    return ['.p2align 6', f'.amdhsa_kernel {name}', f'  .amdhsa_next_free_vgpr {vgpr}', f'  .amdhsa_next_free_sgpr {sgpr}',
            f'  .amdhsa_accum_offset {(vgpr + 3) // 4 * 4}', '  .amdhsa_group_segment_fixed_size 0', '  .amdhsa_kernarg_size 104',
            '  .amdhsa_user_sgpr_count 2', '  .amdhsa_user_sgpr_kernarg_segment_ptr 1', '  .amdhsa_system_sgpr_workgroup_id_x 1',
            '.end_amdhsa_kernel']


def kern(name, lines):
    return [f'.globl {name}', '.p2align 8', f'.type {name},@function', f'{name}:'] + lines


if __name__ == '__main__':
    which = sys.argv[2] if len(sys.argv) > 2 else '123'
    STAMPS = 's' in which
    for kv in sys.argv[3:]:
        k, v = kv.split('='); OPT[k] = int(v) if v.lstrip('-').isdigit() else v
    out = []
    single = '3' not in which
    k1 = NAME + '_kernel' if single else 'k1_kernel'
    if single:
        out.append(f'; @launch grid=(256,1,1) block=(512,1,1) lds={LDS_BYTES}')
    else:
        OPT['inred'] = 0
        out.append(f'; @launch kernel=k1_kernel grid=(256,1,1) block=(512,1,1) lds={LDS_BYTES}')
        out.append('; @launch kernel=k3_kernel grid=(1728,1,1) block=(256,1,1) lds=0' if OPT.get('k3old') else '; @launch kernel=k3_kernel grid=(256,1,1) block=(576,1,1) lds=0')
    out += ['.amdgcn_target "amdgcn-amd-amdhsa--gfx950"', '.text']
    out += kern(k1, build_k1())
    if not single: out += kern('k3_kernel', build_k3_old() if OPT.get('k3old') else build_k3())
    out += ['.section .rodata,"a"'] + kd(k1, 256) + ([] if single else kd('k3_kernel', 48 if OPT.get('k3old') else 112, 32))
    open(sys.argv[1], 'w').write('\n'.join(out) + '\n')
```

```python
import sys
sys.argv = ['x']
import gen8 as g
from asmlib import *
def build(drop, waves=4, nobar=False, al=None):
    g.OPT.clear(); g.STAMPS = True
    g.rare_variants.clear(); g.rare_sites.clear()
    c = []; e = c.append
    g.OPT['cpf'] = 0
    g.common_prologue(e)
    e(wait(vm='all'))
    g.a_setup(e)
    for r in range(8, 256): e(valu('v_mov_b32', V(r), 0))
    ag = g.AGen(lambda h: (lambda qt, i, buf: []))
    e(barrier())
    for n in (0, 2): c += ag.read(n)
    c += ag.iteration(-1); e(barrier())
    c += ag.iteration(0); e(barrier())
    for rep in range(2):
      pass
    body = []
    for t in range(1, 13):
        it = ag.iteration(t)
        body += it
        if not nobar: body.append(barrier())
    c += [salu('s_mov_b32', 's71', 0), label('L_lp')] + g.stamp(1) + body + g.stamp(2) + [salu('s_add_u32', 's71', 's71', 1), salu('s_cmp_lt_u32', 's71', 3), raw('s_cbranch_scc1 L_lp', 'branch')]
    c += g.stamp_out()
    e(raw('s_endpgm', 'branch'))
    resolve_waits(c)
    while hazards(c): pass
    bs = set(id(x) for x in body)
    def keep(x):
        if id(x) not in bs: return True
        if 'wait' in drop and x.kind == 'wait': return False
        if 'ds' in drop and x.kind in ('ds', 'wait'): return False
        if 'exp' in drop and x.kind == 'trans': return False
        if 'valu' in drop and x.kind == 'valu': return False
        if 'br' in drop and x.kind == 'branch': return False
        return True
    c = [x for x in c if keep(x)]
    rare = []
    have = {x.text.split()[1] for x in c if x.text.startswith('s_cbranch_vccnz')}
    for site, lab in g.rare_sites:
        if f'TR_{site}' in have:
            rare += [label(f'TR_{site}'), raw(f's_branch RET_{site}', 'branch')]
    out = [f'; @launch grid=(256,1,1) block=({waves*64},1,1) lds=163840', '.amdgcn_target "amdgcn-amd-amdhsa--gfx950"', '.text']
    L = render(c)
    if al:
        L, fx, bad = align8(L, al); print('align', fx, bad)
    out += g.kern(g.NAME + '_kernel', L + render(rare))
    out += ['.section .rodata,"a"'] + g.kd(g.NAME + '_kernel', 256)
    return '\n'.join(out) + '\n'
for n, d, kw in (('c9_w8', [], dict(waves=8)), ('c9_w8nb', [], dict(waves=8, nobar=True)), ('c9_w4', [], {}), ('c9_w8nobr', ['br'], dict(waves=8))):
    open(f'work/{n}.s', 'w').write(build(d, **kw))
```
